```python
import torch

def _softmax(x, axis=-1):
    return torch.softmax(x, dim=axis)
def _gelu(x):
    return torch.nn.functional.gelu(x, approximate="tanh")
def _silu(x):
    return torch.nn.functional.silu(x)
def _sigmoid(x):
    return torch.sigmoid(x)
def _layernorm(x, axis=-1, eps=1e-5):
    m = x.mean(dim=axis, keepdim=True)
    v = x.var(dim=axis, keepdim=True, unbiased=False)
    return (x - m) / torch.sqrt(v + eps)
def _scatter_add(tgt, idx, src, axis=0):
    return tgt.clone().index_add_(axis, idx, src)
def _segment_sum(src, seg, n):
    out = torch.zeros((n,) + src.shape[1:], dtype=src.dtype)
    return out.index_add_(0, seg, src)
def _pad(x, pw):
    flat = tuple(v for pair in reversed(pw) for v in pair)
    return torch.nn.functional.pad(x, flat)

kernel_name = 'concat_heads__gqa_block_cached__gqa_block_cached__near_ridge'

def setup_inputs():

    _w = (lambda a: (lambda t: t.to(torch.bfloat16) if t.is_floating_point() else t)(torch.as_tensor(a)))
    def _A_setup():
        B, Sq, D = 8, 64, 512
        Hq, Hkv, Sk, Dh = 32, 8, 512, 128
        assert Hq % Hkv == 0, (Hq, Hkv)
        return {
            "x": _w((lambda *s: torch.randn(*s, dtype=torch.bfloat16) * 0.8)(B, Sq, D)),
            "k_cache": _w((lambda *s: torch.randn(*s, dtype=torch.bfloat16) * 0.8)(B, Hkv, Sk, Dh)),
            "v_cache": _w((lambda *s: torch.randn(*s, dtype=torch.bfloat16) * 0.05)(B, Hkv, Sk, Dh)),
            "wq": _w((lambda *s: torch.randn(*s, dtype=torch.bfloat16) * 0.8)(D, Hq * Dh) * (D ** -0.5)),
            "wo": _w((lambda *s: torch.randn(*s, dtype=torch.bfloat16) * 0.05)(Hq * Dh, D) * ((Hq * Dh) ** -0.5)),
        }
    _A_in = _A_setup()

    def _B_setup():
        B, Sq, D = 8, 64, 512
        Hq, Hkv, Sk, Dh = 32, 8, 512, 128
        assert Hq % Hkv == 0, (Hq, Hkv)
        return {
            "x": _w((lambda *s: torch.randn(*s, dtype=torch.bfloat16) * 0.8)(B, Sq, D)),
            "k_cache": _w((lambda *s: torch.randn(*s, dtype=torch.bfloat16) * 0.8)(B, Hkv, Sk, Dh)),
            "v_cache": _w((lambda *s: torch.randn(*s, dtype=torch.bfloat16) * 0.05)(B, Hkv, Sk, Dh)),
            "wq": _w((lambda *s: torch.randn(*s, dtype=torch.bfloat16) * 0.8)(D, Hq * Dh) * (D ** -0.5)),
            "wo": _w((lambda *s: torch.randn(*s, dtype=torch.bfloat16) * 0.05)(Hq * Dh, D) * ((Hq * Dh) ** -0.5)),
        }
    _B_in = _B_setup()

    return {
        "A_x": _A_in["x"],
        "A_k_cache": _A_in["k_cache"],
        "A_v_cache": _A_in["v_cache"],
        "A_wq": _A_in["wq"],
        "A_wo": _A_in["wo"],
        "B_x": _B_in["x"],
        "B_k_cache": _B_in["k_cache"],
        "B_v_cache": _B_in["v_cache"],
        "B_wq": _B_in["wq"],
        "B_wo": _B_in["wo"],
    }

def reference(A_x, A_k_cache, A_v_cache, A_wq, A_wo, B_x, B_k_cache, B_v_cache, B_wq, B_wo):
    def _A_ref(x, k_cache, v_cache, wq, wo):
        B, Sq, D = x.shape
        Hq, Dh = 32, 128
        Hkv = k_cache.shape[1]
        rep = Hq // Hkv
        q = (lambda x, *d: x.permute(*d))((x @ wq).reshape(B, Sq, Hq, Dh), 0, 2, 1, 3)
        k = (lambda x, n, axis: torch.repeat_interleave(x, n, dim=axis))(k_cache, rep, axis=1)
        v = (lambda x, n, axis: torch.repeat_interleave(x, n, dim=axis))(v_cache, rep, axis=1)
        scores = torch.einsum("bhqd,bhkd->bhqk", q, k) * (Dh ** -0.5)
        p = _softmax(scores, axis=-1)
        o = torch.einsum("bhqk,bhkd->bhqd", p, v)
        return (lambda x, *d: x.permute(*d))(o, 0, 2, 1, 3).reshape(B, Sq, Hq * Dh) @ wo

    def _B_ref(x, k_cache, v_cache, wq, wo):
        B, Sq, D = x.shape
        Hq, Dh = 32, 128
        Hkv = k_cache.shape[1]
        rep = Hq // Hkv
        q = (lambda x, *d: x.permute(*d))((x @ wq).reshape(B, Sq, Hq, Dh), 0, 2, 1, 3)
        k = (lambda x, n, axis: torch.repeat_interleave(x, n, dim=axis))(k_cache, rep, axis=1)
        v = (lambda x, n, axis: torch.repeat_interleave(x, n, dim=axis))(v_cache, rep, axis=1)
        scores = torch.einsum("bhqd,bhkd->bhqk", q, k) * (Dh ** -0.5)
        p = _softmax(scores, axis=-1)
        o = torch.einsum("bhqk,bhkd->bhqd", p, v)
        return (lambda x, *d: x.permute(*d))(o, 0, 2, 1, 3).reshape(B, Sq, Hq * Dh) @ wo

    a = _A_ref(A_x, A_k_cache, A_v_cache, A_wq, A_wo)
    b = _B_ref(B_x, B_k_cache, B_v_cache, B_wq, B_wo)
    return torch.concatenate([a, b], axis=-1)
```

```python
import re

def R(a, n=1):
    return frozenset(range(a, a + n))

def vr(a, n=1):
    return f"v{a}" if n == 1 else f"v[{a}:{a+n-1}]"

def sr(a, n=1):
    return f"s{a}" if n == 1 else f"s[{a}:{a+n-1}]"

TRANS = ("v_exp_f32", "v_log_f32", "v_rcp_f32", "v_rsq_f32", "v_sqrt_f32")
E = frozenset()

class Ins:
    __slots__ = ("txt", "kind", "rd", "wr", "a", "b", "c", "swr", "srd", "perm", "rlane", "wide", "m0w", "dma", "states")
    def __init__(self, txt, kind, rd=E, wr=E, a=E, b=E, c=E, swr=E, srd=E, perm=False, rlane=False,
                 wide=E, m0w=False, dma=False, states=1):
        self.txt, self.kind, self.rd, self.wr, self.a, self.b, self.c = txt, kind, rd, wr, a, b, c
        self.swr, self.srd, self.perm, self.rlane, self.wide, self.m0w, self.dma, self.states = swr, srd, perm, rlane, wide, m0w, dma, states

def need(o, n):
    k = 0
    if o.kind == "mfma":
        D = o.wr
        if n.kind == "mfma":
            if n.c & D and n.c != D: k = max(k, 10)
            if (n.a | n.b) & D: k = max(k, 12)
            if n.wr & D and n.c != D: k = max(k, 10)
        else:
            if (n.rd | n.wr) & D: k = max(k, 12)
            if n.kind in ("valu", "trans") and n.wr & o.c: k = max(k, 7)
    if o.kind in ("valu", "trans"):
        if n.kind == "mfma" and (n.a | n.b | n.c) & o.wr: k = max(k, 2)
        if o.kind == "trans" and n.kind != "trans" and n.rd & o.wr: k = max(k, 1)
        if n.perm and n.rd & o.wr: k = max(k, 2)
        if n.rlane and n.rd & o.wr: k = max(k, 1)
        if o.swr & n.srd:
            k = max(k, 5 if n.kind == "vmem" else (2 if n.kind in ("valu", "trans") else 1))
    if o.wide and n.wr & o.wide:
        k = max(k, 2)
    if o.m0w and n.dma: k = max(k, 1)
    return k

_vre = re.compile(r"(?<![\w])v(\d+)\b|(?<![\w])v\[(\d+):(\d+)\]")
_sre = re.compile(r"(?<![\w])s(\d+)\b|(?<![\w])s\[(\d+):(\d+)\]")
def _regs(rx, s):
    out = set()
    for m in rx.finditer(s):
        if m.group(1) is not None: out.add(int(m.group(1)))
        else: out.update(range(int(m.group(2)), int(m.group(3)) + 1))
    return frozenset(out)
def _sregs(s):
    r = set(_regs(_sre, s))
    if re.search(r"\bvcc\b", s): r |= {106, 107}
    return frozenset(r)

class Em:
    def __init__(self):
        self.out = []
        self.hist = []
        self.pend = []
        self.nnop = 0
        self.nwait = 0
        self.maxv = 0
    def raw(self, txt):
        for l in txt.strip("\n").split("\n"): self.out.append(l)
    def label(self, name, reset=True):
        self.out.append(name + ":")
    def comment(self, t): self.out.append("; " + t)
    def _push(self, i):
        self.out.append("    " + i.txt)
        self.hist.append(i)
        if len(self.hist) > 24: self.hist.pop(0)
    def wait_regs(self, regs):
        idx = -1
        for j, p in enumerate(self.pend):
            if p & regs: idx = j
        if idx >= 0:
            n = len(self.pend) - 1 - idx
            n = min(n, 15)
            self._push(Ins(f"s_waitcnt lgkmcnt({n})", "other"))
            self.nwait += 1
            self.pend = self.pend[len(self.pend) - n:] if n else []
    def emit(self, i):
        allv = i.rd | i.wr | i.a | i.b | i.c
        if allv: self.maxv = max(self.maxv, max(allv))
        self.wait_regs(allv)
        dist = 0; pad = 0
        for o in reversed(self.hist):
            k = need(o, i)
            if k - dist > pad: pad = k - dist
            dist += o.states
            if dist >= 20: break
        while pad > 0:
            p = min(pad, 16)
            self._push(Ins(f"s_nop {p-1}", "other", states=p)); self.nnop += p
            pad -= p
        self._push(i)
    def nop(self, n):
        while n > 0:
            p = min(n, 16)
            self._push(Ins(f"s_nop {p-1}", "other", states=p)); n -= p
    def mfma(self, d, a, b, c):
        cs = vr(c, 16) if c is not None else "0"
        self.emit(Ins(f"v_mfma_f32_32x32x16_bf16 {vr(d,16)}, {vr(a,4)}, {vr(b,4)}, {cs}", "mfma",
                      wr=R(d, 16), a=R(a, 4), b=R(b, 4), c=(R(c, 16) if c is not None else E)))
    def v(self, txt):
        op, rest = txt.split(None, 1)
        ops = [x.strip() for x in rest.split(",")]
        dst = ops[0]; srcs = ",".join(ops[1:])
        wr = _regs(_vre, dst); swr = _sregs(dst)
        rd = _regs(_vre, srcs); srd = _sregs(srcs)
        perm = op.startswith("v_permlane")
        if perm: rd = rd | wr; wr = rd
        if op.startswith(("v_fmac", "v_dot2c", "v_writelane")): rd = rd | wr
        rl = op.startswith(("v_readfirstlane", "v_readlane"))
        kind = "trans" if op.replace("_e32", "").replace("_e64", "") in TRANS else "valu"
        self.emit(Ins(txt, kind, rd=rd, wr=wr, swr=swr, srd=srd, perm=perm, rlane=rl))
    def s(self, txt):
        for l in txt.strip("\n").split("\n"):
            l = l.strip()
            if not l: continue
            op = l.split()[0]
            rest = l[len(op):].split(";")[0]
            ops = [x.strip() for x in rest.split(",")]
            m0w = ops[0] == "m0" and not op.startswith("s_cmp")
            self.emit(Ins(l, "salu", srd=_sregs(rest), m0w=m0w))
    def ds_read(self, op, d, n, addr, off=0):
        assert 0 <= off < 65536, off
        for p in self.pend: assert not (p & R(d, n)), "WAW on pending ds_read dest"
        if len(self.pend) >= 15: self.lgkm(14)
        self.emit(Ins(f"{op} {vr(d,n)}, v{addr}" + (f" offset:{off}" if off else ""), "ds", rd=R(addr), wr=R(d, n)))
        self.pend.append(R(d, n))
    def ds128(self, d, addr, off=0): self.ds_read("ds_read_b128", d, 4, addr, off)
    def dstr(self, d, addr, off=0): self.ds_read("ds_read_b64_tr_b16", d, 2, addr, off)
    def ds32(self, d, addr, off=0): self.ds_read("ds_read_b32", d, 1, addr, off)
    def ds_write(self, op, addr, s, n, off=0):
        assert 0 <= off < 65536, off
        if len(self.pend) >= 15: self.lgkm(13)
        self.emit(Ins(f"{op} v{addr}, {vr(s,n)}" + (f" offset:{off}" if off else ""), "ds", rd=R(addr) | R(s, n)))
        self.pend.append(E)
    def lgkm(self, n=0):
        self._push(Ins(f"s_waitcnt lgkmcnt({n})", "other"))
        self.pend = self.pend[len(self.pend) - n:] if (n and n < len(self.pend)) else ([] if n == 0 else self.pend)
    def vmcnt(self, n): self._push(Ins(f"s_waitcnt vmcnt({n})", "other"))
    def barrier(self): self._push(Ins("s_barrier", "other"))
    def other(self, txt): self._push(Ins(txt, "other"))
    def dma(self, vaddr, srd, soff, off=0, flags=""):
        t = f"buffer_load_dwordx4 v{vaddr}, {sr(srd,4)}, {soff} offen" + (f" offset:{off}" if off else "") + (f" {flags}" if flags else "") + " lds"
        self.emit(Ins(t, "vmem", rd=R(vaddr), srd=_sregs(f"{sr(srd,4)} {soff}"), dma=True))
    def bload(self, op, d, n, vaddr, srd, soff, off=0, flags=""):
        t = f"{op} {vr(d,n)}, v{vaddr}, {sr(srd,4)}, {soff} offen" + (f" offset:{off}" if off else "") + (f" {flags}" if flags else "")
        self.emit(Ins(t, "vmem", rd=R(vaddr), wr=R(d, n), srd=_sregs(f"{sr(srd,4)} {soff}")))
    def bstore(self, op, s, n, vaddr, srd, soff, off=0, flags=""):
        t = f"{op} {vr(s,n)}, v{vaddr}, {sr(srd,4)}, {soff} offen" + (f" offset:{off}" if off else "") + (f" {flags}" if flags else "")
        self.emit(Ins(t, "vmem", rd=R(vaddr) | R(s, n), srd=_sregs(f"{sr(srd,4)} {soff}"), wide=(R(s, n) if n >= 3 else E)))
    def flush(self):
        self.lgkm(0); self.nop(12); self.hist = []
    def text(self): return "\n".join(self.out) + "\n"
```

```python
import sys, math, struct
from emit import *

NAME = "concat_heads__gqa_block_cached__gqa_block_cached__near_ridge"
KN = NAME + "_kernel"

def f2u(f): return struct.unpack("<I", struct.pack("<f", f))[0]

DEF = dict(
    LEAD=5, NF=8, WAIT2=1,
    r1b=(0, 0), r1h=0,
    r3b=(0, 0),
    fx="", fq="", fk="", fv="", fo="",
    kvpre=16,
    wopos=(2, 4, 6, 8, 10, 12),
    prio_c=0, prio_h=0,
    stamp=0, dump=None, FLAGLAG=1, touch=0, CAP=48, nodma=0, tab=None, nopub=0,
)

W0 = 0; KR = 98304; VR = 131072; LDS = 163840
XSLOT = [KR, KR + 8192, VR, KR + 16384, VR + 8192, KR + 24576, VR + 16384, VR + 24576]
WOSLOT = [0, 32768, 65536, VR, KR, 0, 32768, 65536]
WS_X = 0
WS_F = 16 << 20
WS_DBG = 17 << 20
WS_SIZE = 32 << 20
S_WAVE, S_BR, S_B, S_HP, S_D = 3, 4, 5, 6, 7
SRD_X, SRD_K, SRD_V, SRD_WQ, SRD_WO, SRD_WS, SRD_OUT, SRD_DBG = 8, 12, 16, 20, 24, 28, 32, 36
S_GRP, S_R1, S_R3, S_T0, S_T1, S_T2, S_T3 = 40, 41, 42, 43, 44, 45, 46
S_CX, S_CQ, S_CKV, S_CO, S_M2, S_M4, S_FIN, S_SC = 47, 48, 49, 50, 51, 52, 53, 54
S_CNT = 56
S_CLR = 100
S_STAMP = 60
V_LANE = 1
A_WQ = 2
A_X = 10
A_K = 14
A_V = 22
A_WO = 26
V_PUB, V_FLG, V_XW, V_XR, V_L0, V_L1 = 32, 33, 34, 35, 36, 37
T0 = 38
FR = 48
XB = 80
PP = 80
QP = 92
ACC = 128
SS = 192
CT = 224
OWN = 192
OTH = 128
AC3 = 160
PK = 224
V_ONE, V_RDY = 240, 241
H_X, H_Q, H_K, H_V, H_O = 2, 4, 8, 10, 12
H_G, H_F, H_OUT, H_T = 16, 17, 18, 19
H_ACC = 24
H_TMP = 32
H_BUF = 64


class Gen:
    def __init__(self, **kw):
        self.c = dict(DEF); self.c.update(kw)
        for k in kw: assert k in DEF, k
        self.e = Em()
        self.nst = {"c": 0, "h": 0}
        self.stamp_names = {"c": [], "h": []}

    def stamp(self, who, name):
        if not self.c["stamp"]: return
        k = self.nst[who]; self.nst[who] += 1
        assert k < 19
        self.stamp_names[who].append(name)
        self.e.other(f"{'s_memrealtime' if self.c['stamp'] == 2 else 's_memtime'} s[{S_STAMP+2*k}:{S_STAMP+2*k+1}]")

    def write_stamps(self, who):
        if not self.c["stamp"]: return
        e = self.e
        e.other("s_memrealtime s[98:99]")
        e.lgkm(0)
        e.v("v_mov_b32 v44, 0")
        for k in range(self.nst[who]): e.v(f"v_writelane_b32 v44, s{S_STAMP+2*k}, {k}")
        e.v("v_writelane_b32 v44, s98, 30"); e.v("v_writelane_b32 v44, s58, 31")
        e.v(f"v_lshlrev_b32 v45, 2, v{V_LANE}")
        e.s(f"s_lshl_b32 s{S_T0}, s2, 3\ns_add_u32 s{S_T0}, s{S_T0}, s{S_WAVE}\ns_lshl_b32 s{S_T0}, s{S_T0}, 8\ns_add_u32 s{S_T0}, s{S_T0}, {WS_DBG}")
        e.bstore("buffer_store_dword", 44, 1, 45, SRD_WS, f"s{S_T0}")

    def plan(self):
        c = self.c
        bars = [f"B1_{k}" for k in range(16)] + [f"BK_{k}" for k in range(17)] + ["BX"] + [f"B3_{k}" for k in range(1, 8)]
        bi = {n: i for i, n in enumerate(bars)}
        items = {}
        def add(name, lds, after, needed): items[name] = dict(name=name, lds=lds, after=after, need=needed)
        xfree = lambda cc: bi[f"B1_{2*cc+3}"] if cc <= 6 else bi["BK_0"]
        qfree = lambda kt: bi[f"B1_{kt+2}"] if kt <= 13 else bi["BK_0"]
        for cc in range(8): add(f"x{cc}", XSLOT[cc], -1, bi[f"B1_{2*cc}"])
        for kt in range(16): add(f"q{kt}", W0 + (kt % 6) * 16384, -1 if kt < 6 else qfree(kt - 6), bi[f"B1_{kt}"])
        for j in range(16):
            a = KR + (j % 4) * 8192
            add(f"k{j}", a, xfree(XSLOT.index(a)) if j < 4 else bi[f"BK_{max(j-3, 2)}"], bi[f"BK_{j}"])
            a = VR + (j % 4) * 8192
            add(f"v{j}", a, xfree(XSLOT.index(a)) if j < 4 else bi[f"BK_{j-1}"], bi[f"BK_{j+1}"])
        for i in range(8):
            for hf in range(2):
                a = WOSLOT[i] + hf * 16384
                if i < 3:
                    last = max(kt for kt in range(16) if (kt % 6) * 16384 == a)
                    aft = qfree(last)
                else: aft = bi["BX"] if i == 3 else bi[f"B3_{i-3}"]
                add(f"o{i}{'ab'[hf]}", a, aft, bi["BK_16"] if i == 0 else bi[f"B3_{i}"])
        order = []
        kvq = ["k0", "k1", "v0", "k2", "v1", "k3", "v2"]
        for kt in range(16):
            if kt % 2 == 0: order.append(f"x{kt//2}")
            order.append(f"q{kt}")
            if kt + 1 >= c["kvpre"] and kt < 15 and kvq and items[kvq[0]]["after"] <= items[f"q{kt}"]["after"]:
                order.append(kvq.pop(0))
        order += kvq
        wo = [f"o{i}{h}" for i in range(3) for h in "ab"]
        wp = list(c["wopos"])
        order.append("v3")
        for n in range(1, 16):
            if 4 <= n + 1 <= 15: order.append(f"v{n+1}")
            if n == 2: order.append("k4")
            if 5 <= n + 3 <= 15: order.append(f"k{n+3}")
            while wp and wp[0] <= n:
                nm = wo.pop(0); wp.pop(0)
                items[nm]["after"] = max(items[nm]["after"], bi[f"BK_{n}"])
                order.append(nm)
        order += wo
        order += [f"o{i}{h}" for i in range(3, 8) for h in "ab"]
        assert sorted(order) == sorted(items), (set(items) - set(order), len(order), len(items))
        cur = -1
        sched = {i: [] for i in range(-1, len(bars))}
        size = lambda n: 16 if n[0] in "qo" else 8
        issued = []
        nP1 = bi["BK_0"]
        for n in order:
            it = items[n]
            cur = max(cur, it["after"])
            while cur < nP1 and sum(size(m) for m in issued if items[m]["need"] > cur) + size(n) > c["CAP"]:
                cur += 1
            assert cur < it["need"], (n, bars[cur], bars[it["need"]])
            sched[cur].append(it); issued.append(n)
        self.bars, self.bi, self.items, self.sched, self.order = bars, bi, items, sched, order

    def prologue(self):
        e, c = self.e, self.c
        e.s("s_cmp_ge_u32 s2, 256\ns_cbranch_scc1 L_end")
        if c["stamp"]: e.other("s_memrealtime s[58:59]")
        e.s(f"""
s_and_b32 s{S_T0}, s2, 7
s_lshr_b32 s{S_BR}, s{S_T0}, 2
s_mul_i32 s{S_T1}, s{S_BR}, 40
s_add_u32 s{S_T2}, s0, s{S_T1}
s_addc_u32 s{S_T3}, s1, 0""")
        assert S_T3 == S_T2 + 1
        e.s(f"s_mov_b32 s56, s{S_T2}\ns_mov_b32 s57, s{S_T3}")
        for srd, off in ((SRD_X, 0), (SRD_WQ, 24), (SRD_K, 8), (SRD_V, 16), (SRD_WO, 32)):
            e.other(f"s_load_dwordx2 s[{srd}:{srd+1}], s[56:57], {off}")
        for srd, off in ((SRD_OUT, 80), (SRD_DBG, 88), (SRD_WS, 96)):
            e.other(f"s_load_dwordx2 s[{srd}:{srd+1}], s[0:1], {off}")
        self.stamp("c", "start"); self.nst["h"] = self.nst["c"]; self.stamp_names["h"] = list(self.stamp_names["c"])
        e.v(f"v_lshrrev_b32 v2, 6, v0")
        e.v(f"v_and_b32 v{V_LANE}, 63, v0")
        e.v(f"v_readfirstlane_b32 s{S_WAVE}, v2")
        for srd, n in ((SRD_X, 512 << 10), (SRD_K, 8 << 20), (SRD_V, 8 << 20), (SRD_WQ, 4 << 20), (SRD_WO, 4 << 20),
                       (SRD_WS, WS_SIZE), (SRD_OUT, 1 << 20), (SRD_DBG, 256)):
            e.s(f"s_mov_b32 s{srd+2}, {n}\ns_mov_b32 s{srd+3}, 0x20000")
        e.s(f"""
s_and_b32 s{S_T0}, s{S_T0}, 3
s_lshr_b32 s{S_T1}, s2, 3
s_and_b32 s{S_B}, s{S_T1}, 7
s_lshr_b32 s{S_T1}, s{S_T1}, 3
s_lshl_b32 s{S_T0}, s{S_T0}, 2
s_add_u32 s{S_HP}, s{S_T0}, s{S_T1}
s_lshl_b32 s{S_GRP}, s{S_BR}, 3
s_add_u32 s{S_GRP}, s{S_GRP}, s{S_B}
s_lshr_b32 s{S_T0}, s{S_B}, {c['r1b'][0]}
s_mul_i32 s{S_T0}, s{S_T0}, {c['r1b'][1]}
s_mul_i32 s{S_T1}, s{S_T1}, {c['r1h']}
s_add_u32 s{S_R1}, s{S_T0}, s{S_T1}
s_and_b32 s{S_R1}, s{S_R1}, 15
s_lshr_b32 s{S_T0}, s{S_B}, {c['r3b'][0]}
s_mul_i32 s{S_T0}, s{S_T0}, {2*c['r3b'][1]}
s_add_u32 s{S_D}, s{S_HP}, s{S_T0}
s_and_b32 s{S_D}, s{S_D}, 15
s_lshr_b32 s{S_R3}, s{S_D}, 1
s_add_u32 s{S_R3}, s{S_R3}, 1
s_and_b32 s{S_R3}, s{S_R3}, 7
s_cmp_ge_u32 s{S_WAVE}, 4
s_cbranch_scc1 L_helper""")

    def helper(self):
        e, c = self.e, self.c
        L = V_LANE
        e.label("L_helper"); e.hist = []
        HW = S_T3
        e.s(f"s_sub_u32 s{HW}, s{S_WAVE}, 4")
        if c["prio_h"]: e.other(f"s_setprio {c['prio_h']}")
        t, u = 20, 21
        e.v(f"v_lshrrev_b32 v{t}, 3, v{L}")
        e.s(f"s_lshl_b32 s{S_T0}, s{HW}, 4\ns_lshl_b32 s{S_T1}, s{S_B}, 6\ns_add_u32 s{S_T0}, s{S_T0}, s{S_T1}")
        e.v(f"v_add_lshl_u32 v{H_X}, v{t}, s{S_T0}, 10")
        e.v(f"v_lshrrev_b32 v{u}, 4, v{L}")
        e.v(f"v_and_b32 v22, 7, v{L}")
        e.v(f"v_xor_b32 v22, v22, v{u}")
        e.v(f"v_xor_b32 v23, 4, v22")
        e.v(f"v_lshl_add_u32 v{H_X+1}, v23, 4, v{H_X}")
        e.v(f"v_add_u32 v{H_X+1}, {8*1024-1024}, v{H_X+1}")
        e.v(f"v_lshl_add_u32 v{H_X}, v22, 4, v{H_X}")
        e.v(f"v_lshrrev_b32 v22, 5, v{L}")
        e.s(f"s_lshl_b32 s{S_T0}, s{HW}, 3\ns_lshl_b32 s{S_T1}, s{S_HP}, 9")
        e.v(f"v_add_lshl_u32 v23, v22, s{S_T0}, 13")
        e.v(f"v_add_u32 v23, s{S_T1}, v23")
        e.v(f"v_lshlrev_b32 v22, 2, v22")
        e.v(f"v_and_b32 v19, 31, v{L}")
        e.v(f"v_xor_b32 v22, v22, v19")
        e.v(f"v_lshl_add_u32 v{H_Q}, v22, 4, v23")
        e.v(f"v_xor_b32 v22, 8, v22")
        e.v(f"v_lshl_add_u32 v{H_Q+1}, v22, 4, v23")
        e.v(f"v_add_u32 v{H_Q+2}, {2*(16384-1024)}, v{H_Q}")
        e.v(f"v_add_u32 v{H_Q+3}, {3*(16384-1024)}, v{H_Q+1}")
        e.v(f"v_add_u32 v{H_Q+1}, {16384-1024}, v{H_Q+1}")
        e.s(f"""s_lshl_b32 s{S_CQ}, s{S_R1}, 18
s_lshl_b32 s{S_CX}, s{S_R1}, 6
s_lshl_b32 s{S_M2}, s{HW}, 11
s_lshl_b32 s{S_M4}, s{HW}, 12""")
        first = list(self.sched[-1])
        e.other("s_waitcnt lgkmcnt(0)")
        self.hseq = 0
        nfirst = 0
        while nfirst < len(first) and first[nfirst]["name"][0] in "xq" and nfirst < 3:
            self.issue(first[nfirst]); nfirst += 1
        e.s(f"""s_lshr_b32 s{S_T0}, s{S_HP}, 1
s_lshl_b32 s{S_T1}, s{S_B}, 3
s_add_u32 s{S_T0}, s{S_T0}, s{S_T1}
s_lshl_b32 s{S_T0}, s{S_T0}, 17
s_lshl_b32 s{S_T1}, s{HW}, 11
s_add_u32 s{S_T0}, s{S_T0}, s{S_T1}
s_and_b32 s{S_T1}, s{HW}, 1
s_lshl_b32 s{S_T1}, s{S_T1}, 3""")
        e.v(f"v_lshlrev_b32 v23, 8, v{u}")
        e.v(f"v_add_u32 v23, s{S_T0}, v23")
        e.v(f"v_and_b32 v19, 15, v{L}")
        e.v(f"v_add_u32 v22, s{S_T1}, v{u}")
        e.v(f"v_xor_b32 v22, v22, v19")
        e.v(f"v_lshl_add_u32 v{H_K}, v22, 4, v23")
        e.v(f"v_xor_b32 v22, 4, v22")
        e.v(f"v_lshl_add_u32 v{H_K+1}, v22, 4, v23")
        e.v(f"v_lshlrev_b32 v22, 2, v{u}")
        e.v(f"v_xor_b32 v22, v22, v19")
        e.v(f"v_lshl_add_u32 v{H_V}, v22, 4, v23")
        e.s(f"s_lshl_b32 s{S_T0}, s{HW}, 5\ns_lshl_b32 s{S_T1}, s{S_HP}, 8\ns_add_u32 s{S_T0}, s{S_T0}, s{S_T1}")
        e.v(f"v_add_lshl_u32 v23, v{t}, s{S_T0}, 10")
        e.v(f"v_and_b32 v22, 1, v{u}")
        e.v(f"v_lshlrev_b32 v22, 2, v22")
        e.v(f"v_and_b32 v19, 7, v{L}")
        e.v(f"v_xor_b32 v22, v22, v19")
        e.v(f"v_lshl_add_u32 v{H_O}, v22, 4, v23")
        for k in range(1, 4): e.v(f"v_add_u32 v{H_O+k}, {k*(8192-1024)}, v{H_O}")
        e.s(f"s_lshl_b32 s{S_CO}, s{S_R3}, 7")
        e.s(f"""s_lshl_b32 s{S_T0}, s{S_GRP}, 4
s_add_u32 s{S_T0}, s{S_T0}, s{S_D}
s_lshl_b32 s{S_T1}, s{S_T0}, 7
s_add_u32 s{S_T1}, s{S_T1}, {WS_F}
s_lshl_b32 s{S_T0}, s{S_T0}, 16
s_and_b32 s{S_T2}, s{HW}, 1
s_lshl_b32 s{S_T2}, s{S_T2}, 11
s_add_u32 s{S_T0}, s{S_T0}, s{S_T2}
s_lshr_b32 s{S_T2}, s{HW}, 1
s_lshl_b32 s{S_T2}, s{S_T2}, 10
s_add_u32 s{S_T0}, s{S_T0}, s{S_T2}""")
        e.v(f"v_lshl_add_u32 v{H_G}, v{L}, 4, s{S_T0}")
        e.v(f"v_and_b32 v22, 31, v{L}")
        e.v(f"v_lshl_add_u32 v{H_F}, v22, 2, s{S_T1}")
        e.s(f"""s_lshl_b32 s{S_T0}, s{S_B}, 1
s_and_b32 s{S_T1}, s{HW}, 1
s_add_u32 s{S_T0}, s{S_T0}, s{S_T1}
s_lshl_b32 s{S_T0}, s{S_T0}, 16
s_lshl_b32 s{S_T1}, s{S_BR}, 10
s_add_u32 s{S_T0}, s{S_T0}, s{S_T1}
s_lshl_b32 s{S_T1}, s{S_D}, 6
s_add_u32 s{S_T0}, s{S_T0}, s{S_T1}
s_lshr_b32 s{S_T1}, s{HW}, 1
s_lshl_b32 s{S_T1}, s{S_T1}, 4
s_add_u32 s{S_T0}, s{S_T0}, s{S_T1}""")
        e.v(f"v_lshl_add_u32 v{H_OUT}, v22, 11, s{S_T0}")
        e.v(f"v_lshrrev_b32 v22, 5, v{L}")
        e.v(f"v_lshl_add_u32 v{H_OUT}, v22, 5, v{H_OUT}")
        e.v(f"v_and_b32 v{H_T}, 3, v{L}")
        e.v(f"v_lshlrev_b32 v{H_T}, 13, v{H_T}")
        e.v(f"v_add_u32 v{H_T}, {KR}, v{H_T}")
        for it in first[nfirst:]: self.issue(it)
        self.stamp("h", "issued0")
        waited = -1
        for n, bn in enumerate(self.bars):
            lastneed = max([it["last"] for it in self.items.values() if it["need"] <= n and "last" in it] + [-1])
            assert all("last" in it for it in self.items.values() if it["need"] <= n)
            if lastneed > waited and not c["nodma"]:
                e.vmcnt(self.hseq - 1 - lastneed); waited = lastneed
            if bn == "BX": e.label("L_hx")
            if bn in ("B1_0", "B1_8", "BK_0", "BK_8", "BK_16", "B3_4", "B3_7"): self.stamp("h", "pre" + bn)
            e.barrier()
            if bn == "BX":
                e.ds32(22, H_T)
                e.v("v_cmp_eq_u32 vcc, -1, v22")
                e.s(f"s_cbranch_vccnz L_hslow")
                e.label("L_hgo")
            for it in self.sched[n]: self.issue(it)
        e.s(f"s_mov_b32 s{S_CNT}, 0")
        e.label("L_poll"); e.hist = []
        e.bload("buffer_load_dword", 22, 1, H_F, SRD_WS, "0", flags="sc1")
        e.s(f"s_add_u32 s{S_CNT}, s{S_CNT}, 1")
        e.vmcnt(0)
        e.v("v_cmp_eq_u32 vcc, 1, v22")
        e.s(f"s_cmp_eq_u64 vcc, exec\ns_cbranch_scc1 L_gather\ns_cmp_lt_u32 s{S_CNT}, 0x40000\ns_cbranch_scc1 L_poll")
        e.label("L_gather"); e.hist = []
        self.stamp("h", "flags")
        for k in range(16):
            if k % 4 == 0 and k: e.v(f"v_add_u32 v{H_G}, 0x4000, v{H_G}")
            so = (k % 4) * 4096
            if so: e.s(f"s_mov_b32 s{S_T0}, {so}")
            e.bload("buffer_load_dwordx4", H_BUF + 4 * k, 4, H_G, SRD_WS, f"s{S_T0}" if so else "0", flags="sc1")
        for k in range(16):
            e.vmcnt(15 - k)
            dst = H_ACC if k == 0 else H_TMP
            for j in range(4):
                e.v(f"v_lshlrev_b32 v{dst+2*j}, 16, v{H_BUF+4*k+j}")
                e.v(f"v_and_b32 v{dst+2*j+1}, 0xffff0000, v{H_BUF+4*k+j}")
            if k:
                for j in range(4):
                    e.v(f"v_pk_add_f32 v[{H_ACC+2*j}:{H_ACC+2*j+1}], v[{H_ACC+2*j}:{H_ACC+2*j+1}], v[{H_TMP+2*j}:{H_TMP+2*j+1}]")
        for j in range(4): e.v(f"v_cvt_pk_bf16_f32 v{H_TMP+j}, v{H_ACC+2*j}, v{H_ACC+2*j+1}")
        e.bstore("buffer_store_dwordx4", H_TMP, 4, H_OUT, SRD_OUT, "0")
        self.stamp("h", "stored")
        if c["stamp"]:
            e.vmcnt(0); self.stamp("h", "end")
        self.write_stamps("h")
        e.other("s_endpgm")
        e.label("L_hslow"); e.hist = []
        e.barrier()
        e.barrier()
        e.s("s_branch L_hgo")

    def issue(self, it):
        e, c = self.e, self.c
        n = it["name"]; k = n[0]
        if c["nodma"]:
            cnt = 0
        elif k == "x":
            e.s(f"s_add_u32 m0, s{S_M2}, {it['lds']}")
            e.dma(H_X, SRD_X, f"s{S_CX}", 0, c["fx"]); e.dma(H_X + 1, SRD_X, f"s{S_CX}", 1024, c["fx"])
            if n != "x7": e.s(f"s_add_u32 s{S_CX}, s{S_CX}, 128\ns_and_b32 s{S_CX}, s{S_CX}, 0x3ff")
            cnt = 2
        elif k == "q":
            e.s(f"s_add_u32 m0, s{S_M4}, {it['lds']}")
            for j in range(4): e.dma(H_Q + j, SRD_WQ, f"s{S_CQ}", 1024 * j, c["fq"])
            if n != "q15": e.s(f"s_add_u32 s{S_CQ}, s{S_CQ}, 0x40000\ns_and_b32 s{S_CQ}, s{S_CQ}, 0x3fffff")
            cnt = 4
        elif k in "kv":
            j = int(n[1:])
            e.s(f"s_add_u32 m0, s{S_M2}, {it['lds']}\ns_mov_b32 s{S_CKV}, {j*8192}")
            if k == "k":
                e.dma(H_K, SRD_K, f"s{S_CKV}", 0, c["fk"]); e.dma(H_K + 1, SRD_K, f"s{S_CKV}", 1024, c["fk"])
            else:
                e.dma(H_V, SRD_V, f"s{S_CKV}", 0, c["fv"]); e.dma(H_V, SRD_V, f"s{S_CKV}", 1024, c["fv"])
            cnt = 2
        else:
            e.s(f"s_add_u32 m0, s{S_M4}, {it['lds']}")
            if n[2] == "a": so = S_CO; e.nop(1)
            else: so = S_T0; e.s(f"s_add_u32 s{S_T0}, s{S_CO}, 0x20000")
            for j in range(4): e.dma(H_O + j, SRD_WO, f"s{so}", 1024 * j, c["fo"])
            if n[2] == "b" and n != "o7b": e.s(f"s_add_u32 s{S_CO}, s{S_CO}, 128\ns_and_b32 s{S_CO}, s{S_CO}, 0x3ff")
            cnt = 4
        self.hseq += cnt
        it["last"] = self.hseq - 1

    def wave0_only(self, fn, tag, sreg=S_WAVE):
        e = self.e
        e.s(f"s_cmp_lg_u32 s{sreg}, 0\ns_cbranch_scc1 L_w0_{tag}")
        h0 = len(e.out); mark = list(e.hist)
        fn()
        blk = [i for i in e.hist if i not in mark]
        for i in blk: i.states = 0
        e.label(f"L_w0_{tag}")

    def compute_setup(self):
        e, c = self.e, self.c
        L = V_LANE
        if c["prio_c"]: e.other(f"s_setprio {c['prio_c']}")
        MB, HH = S_T0, S_T1
        e.s(f"s_and_b32 s{MB}, s{S_WAVE}, 1\ns_lshr_b32 s{HH}, s{S_WAVE}, 1")
        h, rr, g, c0, c1, l32, a, b = 48, 49, 50, 51, 52, 53, 54, 55
        e.v(f"v_lshrrev_b32 v{h}, 5, v{L}")
        e.v(f"v_bfe_u32 v{rr}, v{L}, 2, 2")
        e.v(f"v_bfe_u32 v{g}, v{L}, 4, 1")
        e.v(f"v_and_b32 v{c0}, 1, v{L}")
        e.v(f"v_bfe_u32 v{c1}, v{L}, 1, 1")
        e.v(f"v_and_b32 v{l32}, 31, v{L}")
        e.v(f"v_lshl_add_u32 v{a}, v{h}, 3, v{rr}")
        e.v(f"v_lshlrev_b32 v{a}, 9, v{a}")
        e.s(f"s_lshl_b32 s{S_T2}, s{HH}, 8")
        e.v(f"v_lshl_add_u32 v{a}, v{g}, 5, v{a}")
        e.v(f"v_lshl_add_u32 v{a}, v{c0}, 4, v{a}")
        e.v(f"v_lshl_add_u32 v{a}, v{c1}, 3, v{a}")
        e.v(f"v_add_u32 v{a}, s{S_T2}, v{a}")
        e.v(f"v_lshl_add_u32 v{A_WQ}, v{rr}, 6, v{a}")
        for t in range(1, 4): e.v(f"v_xor_b32 v{A_WQ+t}, {t<<6}, v{A_WQ}")
        for t in range(4): e.v(f"v_add_u32 v{A_WQ+4+t}, 0x10000, v{A_WQ+t}")
        e.s(f"s_lshl_b32 s{S_T2}, s{MB}, 12\ns_add_u32 s{S_T2}, s{S_T2}, {KR}")
        e.v(f"v_lshl_add_u32 v{a}, v{l32}, 7, s{S_T2}")
        e.v(f"v_bfe_u32 v{b}, v{L}, 1, 3")
        e.v(f"v_xor_b32 v{b}, v{b}, v{h}")
        e.v(f"v_lshl_add_u32 v{A_X}, v{b}, 4, v{a}")
        for s in range(1, 4): e.v(f"v_xor_b32 v{A_X+s}, {s<<5}, v{A_X}")
        e.v(f"v_lshlrev_b32 v{a}, 8, v{l32}")
        e.v(f"v_add_u32 v{a}, {KR}, v{a}")
        e.v(f"v_and_b32 v{b}, 15, v{L}")
        e.v(f"v_xor_b32 v{b}, v{b}, v{h}")
        e.v(f"v_lshl_add_u32 v{A_K}, v{b}, 4, v{a}")
        for s in range(1, 8): e.v(f"v_xor_b32 v{A_K+s}, {s<<5}, v{A_K}")
        e.v(f"v_lshl_add_u32 v{a}, v{h}, 2, v{rr}")
        e.v(f"v_lshlrev_b32 v{b}, 8, v{a}")
        e.v(f"v_add_u32 v{b}, {VR}, v{b}")
        e.v(f"v_lshl_add_u32 v{b}, v{g}, 5, v{b}")
        e.v(f"v_lshl_add_u32 v{b}, v{c1}, 4, v{b}")
        e.v(f"v_lshl_add_u32 v{b}, v{c0}, 3, v{b}")
        e.v(f"v_lshl_add_u32 v{A_V}, v{rr}, 6, v{b}")
        for t in range(1, 4): e.v(f"v_xor_b32 v{A_V+t}, {t<<6}, v{A_V}")
        e.v(f"v_lshlrev_b32 v{a}, 7, v{a}")
        e.v(f"v_lshl_add_u32 v{a}, v{c0}, 5, v{a}")
        e.v(f"v_lshl_add_u32 v{a}, v{g}, 4, v{a}")
        e.v(f"v_lshl_add_u32 v{a}, v{c1}, 3, v{a}")
        e.v(f"v_lshrrev_b32 v{b}, 1, v{rr}")
        e.v(f"v_xor_b32 v{b}, s{HH}, v{b}")
        e.v(f"v_lshl_add_u32 v{a}, v{b}, 6, v{a}")
        e.s(f"s_lshl_b32 s{S_T2}, s{HH}, 14")
        e.v(f"v_add_u32 v{A_WO}, s{S_T2}, v{a}")
        e.v(f"v_xor_b32 v{A_WO+1}, 0x4000, v{A_WO}")
        for w in (1, 2):
            e.v(f"v_add_u32 v{A_WO+2*w}, {w*0x10000}, v{A_WO}")
            e.v(f"v_add_u32 v{A_WO+2*w+1}, {w*0x10000}, v{A_WO+1}")
        e.s(f"s_lshl_b32 s{S_T2}, s{S_WAVE}, 13\ns_add_u32 s{S_T2}, s{S_T2}, {KR}")
        e.v(f"v_lshl_add_u32 v{V_XW}, v{L}, 4, s{S_T2}")
        e.v(f"v_xor_b32 v{V_XR}, 0x4000, v{V_XW}")
        e.s(f"""s_lshl_b32 s{S_T2}, s{S_GRP}, 20
s_lshl_b32 s{S_T3}, s{HH}, 16
s_add_u32 s{S_T2}, s{S_T2}, s{S_T3}
s_and_b32 s{S_T3}, s{S_D}, 1
s_lshl_b32 s{S_T3}, s{S_T3}, 12
s_add_u32 s{S_T2}, s{S_T2}, s{S_T3}
s_lshl_b32 s{S_T3}, s{MB}, 11
s_add_u32 s{S_T2}, s{S_T2}, s{S_T3}""")
        e.v(f"v_lshl_add_u32 v{V_PUB}, v{L}, 4, s{S_T2}")
        e.s(f"""s_lshl_b32 s{S_T2}, s{S_GRP}, 4
s_add_u32 s{S_T2}, s{S_T2}, s{HH}
s_lshl_b32 s{S_T2}, s{S_T2}, 5
s_and_b32 s{S_T3}, s{S_D}, 1
s_lshl_b32 s{S_T3}, s{S_T3}, 1
s_add_u32 s{S_T2}, s{S_T2}, s{S_T3}
s_add_u32 s{S_T2}, s{S_T2}, s{MB}
s_lshl_b32 s{S_T2}, s{S_T2}, 2
s_add_u32 s{S_T2}, s{S_T2}, {WS_F}""")
        e.v(f"v_min_u32 v{a}, 1, v{L}")
        e.v(f"v_lshlrev_b32 v{a}, 31, v{a}")
        e.v(f"v_add_u32 v{V_FLG}, s{S_T2}, v{a}")
        e.s(f"s_lshl_b32 s{S_T2}, s{S_GRP}, 4")
        e.v(f"v_add_u32 v{V_RDY}, s{S_T2}, v{a}")
        e.v(f"v_mov_b32 v{V_ONE}, 1")
        e.v(f"v_mov_b32 v{V_L0}, 0"); e.v(f"v_mov_b32 v{V_L1}, 0")
        for r in range(16): e.v(f"v_mov_b32 v{CT+r}, 0")
        sc = f2u(math.log2(math.e) / math.sqrt(128.0))
        e.s(f"s_mov_b32 s{S_SC}, {sc:#x}\ns_mov_b32 s{S_SC+1}, {sc:#x}\ns_mov_b32 s{S_FIN}, 0")
        e.s(f"""s_lshl_b32 s{S_T2}, s{S_GRP}, 11
s_add_u32 s{S_T2}, s{S_T2}, {WS_F}
s_or_b32 s{S_CLR}, s{S_WAVE}, s{S_HP}""")
        e.v(f"v_lshl_add_u32 v{T0}, v{L}, 4, s{S_T2}")
        e.other("s_waitcnt lgkmcnt(0)")
        def clr():
            e.bstore("buffer_store_dwordx4", CT, 4, T0, SRD_WS, "0", flags="sc1")
            e.bstore("buffer_store_dwordx4", CT, 4, T0, SRD_WS, "0", 1024, flags="sc1")
        self.wave0_only(clr, "clr", S_CLR)

    def dump(self, base, n, tag):
        e = self.e
        e.nop(12)
        e.s(f"s_lshl_b32 s{S_T0}, s2, 2\ns_add_u32 s{S_T0}, s{S_T0}, s{S_WAVE}\ns_mul_i32 s{S_T0}, s{S_T0}, {n*256}\ns_add_u32 s{S_T0}, s{S_T0}, {18<<20}")
        e.v(f"v_lshlrev_b32 v{T0+1}, 2, v{V_LANE}")
        for r in range(n):
            if r and r % 16 == 0: e.s(f"s_add_u32 s{S_T0}, s{S_T0}, 4096")
            e.bstore("buffer_store_dword", base + r, 1, T0 + 1, SRD_WS, f"s{S_T0}", (r % 16) * 256)
        e.vmcnt(0)

    def run_mfmas(self, M, fill, pre):
        e = self.e
        for g, (d, a, b, cc) in enumerate(M):
            for f in pre.get(g, []): f()
            if self.c["WAIT2"] and g % 2 == 0 and g + 1 < len(M):
                e.wait_regs(R(a, 4) | R(b, 4) | R(M[g + 1][1], 4))
            e.mfma(d, a, b, cc)
            for f in fill.get(g, []): f()

    def compute(self):
        e, c = self.e, self.c
        LEAD, NF = c["LEAD"], c["NF"]
        self.compute_setup()
        self.stamp("c", "setup")
        fr = lambda g: FR + 4 * (g % NF)
        M = []; reads = {}; bar = {}
        for kt in range(16):
            slot = self.items[f"q{kt}"]["lds"]
            win, so = (0, slot) if slot < 65536 else (4, slot - 65536)
            for s2 in range(2):
                st = kt * 2 + s2
                xb = XB + 4 * (st % 3)
                for t in range(4):
                    g = len(M)
                    M.append((ACC + 16 * t, fr(g), xb, None if st == 0 else ACC + 16 * t))
                    rl = []
                    if t == 0:
                        xo = self.items[f"x{kt//2}"]["lds"] - KR
                        rl.append(lambda xb=xb, s=st % 4, xo=xo: e.ds128(xb, A_X + s, xo))
                    o = so + s2 * 8192
                    rl.append(lambda d=fr(g), t=t, o=o, win=win: e.dstr(d, A_WQ + win + t, o))
                    rl.append(lambda d=fr(g), t=t, o=o, win=win: e.dstr(d + 2, A_WQ + win + t, o + 2048))
                    reads[g] = rl
            bar[kt * 8] = f"B1_{kt}"
        fill = {}; pre = {}
        def place(reads, bar, n, fill, head):
            for g in range(n):
                ops = []
                if g in bar:
                    def fb(nm=bar[g]):
                        if nm in ("B1_0", "B1_8", "BK_1", "BK_8", "BK_16", "B3_1", "B3_4", "B3_7"): self.stamp("c", "pre" + nm)
                        e.barrier()
                        if nm in ("B1_0", "BK_0"): self.stamp("c", "post" + nm)
                    ops.append(fb)
                ops += reads.get(g, [])
                if g < LEAD: head += ops
                else: fill.setdefault(g - LEAD, []).extend(ops)
        head = []
        place(reads, bar, len(M), fill, head)
        def arrive():
            e.vmcnt(0)
            e.bstore("buffer_store_dword", V_ONE, 1, V_RDY, SRD_DBG, "0", flags="sc1")
        fill.setdefault(41, []).append(lambda: self.wave0_only(arrive, "arr", S_CLR))
        for f in head: f()
        self.run_mfmas(M, fill, pre)
        self.stamp("c", "P1end")
        M = []; reads = {}; bar = {}
        def addQK(j):
            bar[len(M)] = f"BK_{j}"
            so = self.items[f"k{j}"]["lds"] - KR
            for s in range(8):
                g = len(M); S = SS + 16 * (j % 2)
                M.append((S, fr(g), QP + 4 * s, CT if s == 0 else S))
                reads[g] = [lambda d=fr(g), s=s, so=so: e.ds128(d, A_K + s, so)]
        def addPV(j):
            so = self.items[f"v{j}"]["lds"] - VR
            for u in range(2):
                for t in range(4):
                    g = len(M)
                    M.append((ACC + 16 * t, fr(g), PP + 4 * u, None if (j == 0 and u == 0) else ACC + 16 * t))
                    o = so + u * 4096
                    reads[g] = [lambda d=fr(g), t=t, o=o: e.dstr(d, A_V + t, o),
                                lambda d=fr(g), t=t, o=o: e.dstr(d + 2, A_V + t, o + 2048)]
        addQK(0)
        for j in range(15): addQK(j + 1); addPV(j)
        bar[len(M)] = "BK_16"
        addPV(15)
        fill = {}; pre = {}; head = []
        place(reads, bar, len(M), fill, head)
        def ex(j, r): return lambda: e.v(f"v_exp_f32 v{SS+16*(j%2)+r}, v{SS+16*(j%2)+r}")
        def cv(j, k): return lambda: e.v(f"v_cvt_pk_bf16_f32 v{PP+k}, v{SS+16*(j%2)+2*k}, v{SS+16*(j%2)+2*k+1}")
        def ad(j, r): return lambda: e.v(f"v_add_f32 v{V_L0+(r%2)}, v{V_L0+(r%2)}, v{SS+16*(j%2)+r}")
        TAB = c.get("tab") or ["e0 e1", "e2 e3", "e4 e5", "e6 c0 c1", "e7 c2", "e8 c3 a0", "e9 a1", "e10 c4 a2",
                               "e11 e12", "e13 c5 a3", "e14 e15", "<c6 <c7 a4 a5", "a6 a7 a8", "a9 a10 a11", "a12 a13 a14", "a15"]
        def put(j, g, spec, tgt=None):
            front = []
            for tok in spec.split():
                first = tok[0] == "<"
                if first: tok = tok[1:]
                f = {"e": ex, "c": cv, "a": ad}[tok[0]](j, int(tok[1:]))
                if first: front.append(f)
                else: fill.setdefault(g, []).append(f)
            fill[g] = front + fill.get(g, [])
        for j in range(15):
            for k in range(16): put(j, 8 + 16 * j + k, TAB[k])
        g0 = 8 + 16 * 15
        put(15, g0 - 1, "e0 e1 e2 e3 c0 e4 e5 c1 e6 e7 c2 c3")
        for k, sp in enumerate(["e8 e9 a0", "e10 e11 c4", "e12 e13 c5", "<e14 <e15 <c6 <c7", "a1 a2 a3 a4", "a5 a6 a7 a8", "a9 a10 a11 a12", "a13 a14 a15"]):
            put(15, g0 + k, sp)
        def rdyload(): e.bload("buffer_load_dword", T0 + 2, 1, V_RDY, SRD_DBG, "0", flags="sc1")
        fill.setdefault(8 + 16 * 11 + 15, []).append(lambda: self.wave0_only(rdyload, "rl"))
        for t in range(4):
            if t == 3:
                for f in head: f()
            for k in range(8):
                r = ACC + 16 * t + 2 * k
                e.v(f"v_pk_mul_f32 v[{r}:{r+1}], v[{r}:{r+1}], s[{S_SC}:{S_SC+1}]")
            for k in range(8):
                r = ACC + 16 * t + 2 * k
                e.v(f"v_cvt_pk_bf16_f32 v{QP+8*t+k}, v{r}, v{r+1}")
        if c["dump"] == "q": self.dump(QP, 32, "q")
        self.stamp("c", "P2start")
        self.run_mfmas(M, fill, pre)
        self.stamp("c", "P2end")
        M = []; reads = {}; bar = {}
        for i in range(8):
            slot = WOSLOT[i]; win = slot >> 16; so = slot & 0xffff
            if i: bar[len(M)] = f"B3_{i}"
            for hs in range(2):
                for k in range(8):
                    g = len(M); A3 = AC3 + 16 * (i % 2)
                    M.append((A3, fr(g), (OWN if hs == 0 else OTH) + 4 * k, None if (hs == 0 and k == 0) else A3))
                    o = so + k * 2048
                    reads[g] = [lambda d=fr(g), o=o, a=A_WO + 2 * win + hs: e.dstr(d, a, o),
                                lambda d=fr(g), o=o, a=A_WO + 2 * win + hs: e.dstr(d + 2, a, o + 1024)]
        fill = {}; pre = {}; head = []
        place(reads, bar, len(M), fill, head)
        e.lgkm(0)
        e.label("L_norm")
        for f in head: f()
        l, t1, t2 = V_L0, T0, T0 + 1
        e.v(f"v_add_f32 v{l}, v{V_L0}, v{V_L1}")
        e.v(f"v_mov_b32 v{t1}, v{l}")
        e.v(f"v_permlane32_swap_b32 v{l}, v{t1}")
        e.v(f"v_add_f32 v{l}, v{l}, v{t1}")
        e.v(f"v_rcp_f32 v{t2+1+1}, v{l}")
        RC = T0 + 4
        e.v(f"v_mov_b32 v{RC}, v{T0+3}"); e.v(f"v_mov_b32 v{RC+1}, v{T0+3}")
        e.s(f"s_mov_b32 s{S_T0}, {f2u(2.0**-30):#x}\ns_mov_b32 s{S_T1}, {f2u(2.0**30):#x}")
        e.v(f"v_cmp_nle_f32 vcc, s{S_T0}, v{l}")
        e.v(f"v_cmp_nge_f32 s[{56}:{57}], s{S_T1}, v{l}")
        for t in range(4):
            for k in range(8):
                r = ACC + 16 * t + 2 * k
                e.v(f"v_pk_mul_f32 v[{r}:{r+1}], v[{r}:{r+1}], v[{RC}:{RC+1}]")
            for k in range(8):
                r = ACC + 16 * t + 2 * k
                e.v(f"v_cvt_pk_bf16_f32 v{OWN+8*t+k}, v{r}, v{r+1}")
            if t == 0:
                e.s(f"s_or_b64 vcc, vcc, s[56:57]\ns_cmp_lg_u32 s{S_FIN}, 0\ns_cbranch_scc1 L_novote\ns_cbranch_vccz L_novote")
                mark = list(e.hist)
                e.v(f"v_mov_b32 v{OWN}, -1")
                for i in e.hist:
                    if i not in mark: i.states = 0
                e.label("L_novote")
                e.lgkm(0)
            e.ds_write("ds_write_b128", V_XW, OWN + 8 * t, 4, 2048 * t)
            e.ds_write("ds_write_b128", V_XW, OWN + 8 * t + 4, 4, 2048 * t + 1024)
        if c["dump"] == "o": self.dump(OWN, 32, "o")
        def rdy():
            e.label("L_rdy"); e.vmcnt(0)
            e.v(f"v_readfirstlane_b32 s{S_T0}, v{T0+2}")
            e.s(f"s_cmp_eq_u32 s{S_T0}, 1\ns_cbranch_scc1 L_rdyok")
            e.bload("buffer_load_dword", T0 + 2, 1, V_RDY, SRD_DBG, "0", flags="sc1")
            e.s(f"s_add_u32 s{S_CNT}, s{S_CNT}, 1\ns_cmp_lt_u32 s{S_CNT}, 0x40000\ns_cbranch_scc1 L_rdy")
            e.label("L_rdyok")
        e.s(f"s_mov_b32 s{S_CNT}, 0")
        self.wave0_only(rdy, "rdy")
        e.v(f"v_and_b32 v{t1}, 3, v{V_LANE}")
        e.v(f"v_lshlrev_b32 v{t1}, 13, v{t1}")
        e.v(f"v_add_u32 v{t1}, {KR}, v{t1}")
        e.lgkm(0)
        self.stamp("c", "preBX")
        e.barrier()
        self.stamp("c", "postBX")
        e.ds32(t2, t1)
        for k in range(8):
            fill.setdefault(k, []).append(lambda k=k: e.ds128(OTH + 4 * k, V_XR, 1024 * k))
        def vote():
            e.v(f"v_cmp_eq_u32 vcc, -1, v{t2}")
            e.s(f"s_cmp_lg_u32 s{S_FIN}, 0\ns_cbranch_scc1 L_voted\ns_cbranch_vccnz L_slow")
            e.label("L_voted")
        fill[1] = [vote] + fill.get(1, [])
        FL = c["FLAGLAG"]
        vseq = []
        def pub_cvt(i, k): return lambda: e.v(f"v_cvt_pk_bf16_f32 v{PK+8*(i%2)+k}, v{AC3+16*(i%2)+2*k}, v{AC3+16*(i%2)+2*k+1}")
        def pub_so(i):
            def f():
                e.s(f"s_add_u32 s{S_T0}, s{S_R3}, {i}\ns_and_b32 s{S_T0}, s{S_T0}, 7\ns_lshl_b32 s{S_T1}, s{S_T0}, 17")
                if i: e.s(f"s_add_u32 s{S_T1}, s{S_T1}, {i*8192}")
            return f
        def pub_st(i, q):
            def f():
                if c["nopub"]:
                    vseq.append(("S", i)); return
                e.bstore("buffer_store_dwordx4", PK + 8 * (i % 2) + 4 * q, 4, V_PUB, SRD_WS, f"s{S_T1}", 1024 * q, flags="sc1")
                vseq.append(("S", i))
            return f
        def pub_flag(i):
            def f():
                e.s(f"s_add_u32 s{S_T2}, s{S_R3}, {i}\ns_and_b32 s{S_T2}, s{S_T2}, 7\ns_lshl_b32 s{S_T2}, s{S_T2}, 8")
                last = max(n for n, x in enumerate(vseq) if x == ("S", i))
                e.vmcnt(len(vseq) - 1 - last)
                e.bstore("buffer_store_dword", V_ONE, 1, V_FLG, SRD_WS, f"s{S_T2}", 16 * i, flags="sc1")
                vseq.append(("F", i))
            return f
        for i in range(7):
            g = 16 * (i + 1)
            fill.setdefault(g + 2, []).append(pub_so(i))
            for k in range(8): fill.setdefault(g + 3 + k // 2, []).append(pub_cvt(i, k))
            fill.setdefault(g + 5, []).append(pub_st(i, 0))
            fill.setdefault(g + 7, []).append(pub_st(i, 1))
            if i + 1 + FL <= 7: fill.setdefault(16 * (i + 1 + FL) + 10, []).append(pub_flag(i))
        self.run_mfmas(M, fill, pre)
        self.stamp("c", "P3end")
        pub_so(7)()
        for k in range(8): pub_cvt(7, k)()
        pub_st(7, 0)(); pub_st(7, 1)()
        for i in range(8):
            if i == 7 or i + 1 + FL > 7: pub_flag(i)()
        self.stamp("c", "flagged")
        self.write_stamps("c")
        e.other("s_endpgm")
        self.slow()

    def slow(self):
        e = self.e
        L = V_LANE
        e.label("L_slow"); e.hist = []; e.pend = []
        e.other("s_waitcnt vmcnt(0) lgkmcnt(0)"); e.nop(16)
        e.barrier()
        KA, VA, MX, t1 = T0, T0 + 1, T0 + 6, T0 + 7
        e.s(f"""s_mov_b32 s{S_FIN}, 1
s_lshr_b32 s{S_T0}, s{S_HP}, 1
s_lshl_b32 s{S_T1}, s{S_B}, 3
s_add_u32 s{S_T0}, s{S_T0}, s{S_T1}
s_lshl_b32 s{S_T0}, s{S_T0}, 17""")
        e.v(f"v_and_b32 v{t1}, 31, v{L}")
        e.v(f"v_lshrrev_b32 v{MX}, 5, v{L}")
        e.v(f"v_lshlrev_b32 v{KA}, 8, v{t1}")
        e.v(f"v_lshl_add_u32 v{KA}, v{MX}, 4, v{KA}")
        e.v(f"v_add_u32 v{KA}, s{S_T0}, v{KA}")
        e.v(f"v_lshlrev_b32 v{VA}, 10, v{MX}")
        e.v(f"v_lshl_add_u32 v{VA}, v{t1}, 1, v{VA}")
        e.v(f"v_add_u32 v{VA}, s{S_T0}, v{VA}")
        e.v(f"v_mov_b32 v{MX}, 0xff800000")
        def qk(cinit):
            for s in range(8): e.bload("buffer_load_dwordx4", FR + 4 * s, 4, KA, SRD_K, f"s{S_T1}", 32 * s)
            e.vmcnt(0)
            for s in range(8): e.mfma(SS, FR + 4 * s, QP + 4 * s, cinit if s == 0 else SS)
        e.s(f"s_mov_b32 s{S_T1}, 0")
        e.label("L_s1"); e.nop(12)
        qk(None)
        for r in range(0, 16, 2): e.v(f"v_max3_f32 v{MX}, v{MX}, v{SS+r}, v{SS+r+1}")
        e.s(f"s_add_u32 s{S_T1}, s{S_T1}, 8192\ns_cmp_lt_u32 s{S_T1}, 0x20000\ns_cbranch_scc1 L_s1")
        e.v(f"v_mov_b32 v{t1}, v{MX}")
        e.v(f"v_permlane32_swap_b32 v{MX}, v{t1}")
        e.v(f"v_max_f32 v{MX}, v{MX}, v{t1}")
        for r in range(16): e.v(f"v_sub_f32 v{CT+r}, 0, v{MX}")
        for r in range(64): e.v(f"v_mov_b32 v{ACC+r}, 0")
        e.v(f"v_mov_b32 v{V_L0}, 0"); e.v(f"v_mov_b32 v{V_L1}, 0")
        e.s(f"s_mov_b32 s{S_T1}, 0")
        e.label("L_s2"); e.nop(12)
        qk(CT)
        for r in range(16): e.v(f"v_exp_f32 v{SS+r}, v{SS+r}")
        for r in range(16): e.v(f"v_add_f32 v{V_L0}, v{V_L0}, v{SS+r}")
        for k in range(8): e.v(f"v_cvt_pk_bf16_f32 v{PP+k}, v{SS+2*k}, v{SS+2*k+1}")
        for u in range(2):
            e.s(f"s_add_u32 s{S_T2}, s{S_T1}, {u*4096}")
            for t in range(4):
                for j in range(8):
                    row = 8 * (j // 4) + j % 4
                    op = "buffer_load_short_d16_hi" if j % 2 else "buffer_load_short_d16"
                    e.bload(op, FR + 4 * t + j // 2, 1, VA, SRD_V, f"s{S_T2}", row * 256 + t * 64)
                    if j % 2 == 0: e.vmcnt(0)
            e.vmcnt(0)
            for t in range(4): e.mfma(ACC + 16 * t, FR + 4 * t, PP + 4 * u, ACC + 16 * t)
            e.nop(8)
        e.s(f"s_add_u32 s{S_T1}, s{S_T1}, 8192\ns_cmp_lt_u32 s{S_T1}, 0x20000\ns_cbranch_scc1 L_s2")
        e.nop(16)
        e.v(f"v_mov_b32 v{T0+2}, 1")
        e.s("s_branch L_norm")

    def build(self):
        e = self.e
        self.plan()
        e.raw(f"""; Fused GQA block (two branches), gfx950.  Generated by the author's own generator script.
; @launch grid=(256,1,1) block=(512,1,1) lds={LDS}
.amdgcn_target "amdgcn-amd-amdhsa--gfx950"
.text
.globl {KN}
.p2align 8
.type {KN},@function
{KN}:""")
        self.prologue()
        self.compute()
        self.helper()
        e.label("L_end"); e.other("s_endpgm")
        e.raw(f""".section .rodata,"a"
.p2align 6
.amdhsa_kernel {KN}
  .amdhsa_next_free_vgpr 248
  .amdhsa_next_free_sgpr 102
  .amdhsa_accum_offset 248
  .amdhsa_group_segment_fixed_size 0
  .amdhsa_kernarg_size 104
  .amdhsa_user_sgpr_count 2
  .amdhsa_user_sgpr_kernarg_segment_ptr 1
  .amdhsa_system_sgpr_workgroup_id_x 1
.end_amdhsa_kernel""")
        assert e.maxv < 248
        return e.text()

if __name__ == "__main__":
    kw = eval("dict(%s)" % (sys.argv[2] if len(sys.argv) > 2 else ""))
    g = Gen(**kw)
    t = g.build()
    open(sys.argv[1], "w").write(t)
    print("nops", g.e.nnop, "waits", g.e.nwait, "lines", len(g.e.out))
    for n in range(-1, len(g.bars)):
        print(g.bars[n] if n >= 0 else "start", [i["name"] for i in g.sched[n]])
```

```python
import sys, math, struct
from emit import *

NAME = "concat_heads__gqa_block_cached__gqa_block_cached__near_ridge"
KN = NAME + "_kernel"

def f2u(f): return struct.unpack("<I", struct.pack("<f", f))[0]

DEF = dict(
    LEAD=5, NF=8, WAIT2=1,
    r1b=(0, 0), r1h=0,
    r3b=(0, 0),
    fx="", fq="", fk="", fv="", fo="",
    kvpre=16,
    wopos=(2, 4, 6, 8, 10, 12),
    prio_c=0, prio_h=0,
    stamp=0, dump=None, FLAGLAG=1, touch=0, CAP=64, pad=None, nodma=0, tab=None, nopub=0,
)

W0 = 0; KR = 98304; VR = 131072; LDS = 163840
XSLOT = [KR, KR + 8192, VR, KR + 16384, VR + 8192, KR + 24576, VR + 16384, VR + 24576]
WOSLOT = [0, 32768, 65536, VR, KR, 0, 32768, 65536]
WS_X = 0
WS_F = 16 << 20
WS_DBG = 17 << 20
WS_SIZE = 32 << 20
S_WAVE, S_BR, S_B, S_HP, S_D = 3, 4, 5, 6, 7
SRD_X, SRD_K, SRD_V, SRD_WQ, SRD_WO, SRD_WS, SRD_OUT, SRD_DBG = 8, 12, 16, 20, 24, 28, 32, 36
S_GRP, S_R1, S_R3, S_T0, S_T1, S_T2, S_T3 = 40, 41, 42, 43, 44, 45, 46
S_CX, S_CQ, S_CKV, S_CO, S_M2, S_M4, S_FIN, S_SC = 47, 48, 49, 50, 51, 52, 53, 54
S_CNT = 56
S_CLR = 100
S_STAMP = 60
V_LANE = 1
A_WQ = 2
A_X = 10
A_K = 14
A_V = 22
A_WO = 26
V_PUB, V_FLG, V_XW, V_XR, V_L0, V_L1 = 32, 33, 34, 35, 36, 37
T0 = 38
FR = 48
XB = 80
PP = 80
QP = 92
ACC = 128
SS = 192
CT = 224
OWN = 192
OTH = 128
AC3 = 160
PK = 224
V_ONE, V_RDY = 240, 241
H_X, H_Q, H_K, H_V, H_O = 2, 4, 8, 10, 12
H_G, H_F, H_OUT, H_T = 16, 17, 18, 19
H_ACC = 24
H_TMP = 32
H_BUF = 64


class Gen:
    def __init__(self, **kw):
        self.c = dict(DEF); self.c.update(kw)
        for k in kw: assert k in DEF, k
        self.e = Em()
        self.nst = {"c": 0, "h": 0}
        self.stamp_names = {"c": [], "h": []}

    def stamp(self, who, name):
        if not self.c["stamp"]: return
        k = self.nst[who]; self.nst[who] += 1
        assert k < 19
        self.stamp_names[who].append(name)
        self.e.other(f"{'s_memrealtime' if self.c['stamp'] == 2 else 's_memtime'} s[{S_STAMP+2*k}:{S_STAMP+2*k+1}]")

    def write_stamps(self, who):
        if not self.c["stamp"]: return
        e = self.e
        if self.c["pad"]:
            T, w, nm = self.c["pad"]
            if w == who:
                k = self.stamp_names[who].index(nm)
                e.lgkm(0)
                e.s(f"s_add_u32 s{S_T0}, s{S_STAMP+2*k}, {T//10}")
                e.label(f"L_pad{who}")
                e.other("s_memrealtime s[98:99]"); e.lgkm(0)
                e.s(f"s_sub_u32 s{S_T1}, s98, s{S_T0}\ns_cmp_lt_i32 s{S_T1}, 0\ns_cbranch_scc1 L_pad{who}")
            return
        e.other("s_memrealtime s[98:99]")
        e.lgkm(0)
        e.v("v_mov_b32 v44, 0")
        for k in range(self.nst[who]): e.v(f"v_writelane_b32 v44, s{S_STAMP+2*k}, {k}")
        e.v("v_writelane_b32 v44, s98, 30"); e.v("v_writelane_b32 v44, s58, 31")
        e.v(f"v_lshlrev_b32 v45, 2, v{V_LANE}")
        e.s(f"s_lshl_b32 s{S_T0}, s2, 3\ns_add_u32 s{S_T0}, s{S_T0}, s{S_WAVE}\ns_lshl_b32 s{S_T0}, s{S_T0}, 8\ns_add_u32 s{S_T0}, s{S_T0}, {WS_DBG}")
        e.bstore("buffer_store_dword", 44, 1, 45, SRD_WS, f"s{S_T0}")

    def plan(self):
        c = self.c
        bars = [f"B1_{k}" for k in range(16)] + [f"BK_{k}" for k in range(17)] + ["BX"] + [f"B3_{k}" for k in range(1, 8)]
        bi = {n: i for i, n in enumerate(bars)}
        items = {}
        def add(name, lds, after, needed): items[name] = dict(name=name, lds=lds, after=after, need=needed)
        xfree = lambda cc: bi[f"B1_{2*cc+3}"] if cc <= 6 else bi["BK_0"]
        qfree = lambda kt: bi[f"B1_{kt+2}"] if kt <= 13 else bi["BK_0"]
        for cc in range(8): add(f"x{cc}", XSLOT[cc], -1, bi[f"B1_{2*cc}"])
        for kt in range(16): add(f"q{kt}", W0 + (kt % 6) * 16384, -1 if kt < 6 else qfree(kt - 6), bi[f"B1_{kt}"])
        for j in range(16):
            a = KR + (j % 4) * 8192
            add(f"k{j}", a, xfree(XSLOT.index(a)) if j < 4 else bi[f"BK_{max(j-3, 2)}"], bi[f"BK_{j}"])
            a = VR + (j % 4) * 8192
            add(f"v{j}", a, xfree(XSLOT.index(a)) if j < 4 else bi[f"BK_{j-1}"], bi[f"BK_{j+1}"])
        for i in range(8):
            for hf in range(2):
                a = WOSLOT[i] + hf * 16384
                if i < 3:
                    last = max(kt for kt in range(16) if (kt % 6) * 16384 == a)
                    aft = qfree(last)
                else: aft = bi["BX"] if i == 3 else bi[f"B3_{i-3}"]
                add(f"o{i}{'ab'[hf]}", a, aft, bi["BK_16"] if i == 0 else bi[f"B3_{i}"])
        order = []
        kvq = ["k0", "k1", "v0", "k2", "v1", "k3", "v2"]
        for kt in range(16):
            if kt % 2 == 0: order.append(f"x{kt//2}")
            order.append(f"q{kt}")
            if kt + 1 >= c["kvpre"] and kt < 15 and kvq and items[kvq[0]]["after"] <= items[f"q{kt}"]["after"]:
                order.append(kvq.pop(0))
        order += kvq
        wo = [f"o{i}{h}" for i in range(3) for h in "ab"]
        wp = list(c["wopos"])
        order.append("v3")
        for n in range(1, 16):
            if 4 <= n + 1 <= 15: order.append(f"v{n+1}")
            if n == 2: order.append("k4")
            if 5 <= n + 3 <= 15: order.append(f"k{n+3}")
            while wp and wp[0] <= n:
                nm = wo.pop(0); wp.pop(0)
                items[nm]["after"] = max(items[nm]["after"], bi[f"BK_{n}"])
                order.append(nm)
        order += wo
        order += [f"o{i}{h}" for i in range(3, 8) for h in "ab"]
        assert sorted(order) == sorted(items), (set(items) - set(order), len(order), len(items))
        cur = -1
        sched = {i: [] for i in range(-1, len(bars))}
        size = lambda n: 16 if n[0] in "qo" else 8
        issued = []
        nP1 = bi["BK_0"]
        for n in order:
            it = items[n]
            cur = max(cur, it["after"])
            while cur < nP1 and sum(size(m) for m in issued if items[m]["need"] > cur) + size(n) > c["CAP"]:
                cur += 1
            assert cur < it["need"], (n, bars[cur], bars[it["need"]])
            sched[cur].append(it); issued.append(n)
        self.bars, self.bi, self.items, self.sched, self.order = bars, bi, items, sched, order

    def prologue(self):
        e, c = self.e, self.c
        e.s("s_cmp_ge_u32 s2, 256\ns_cbranch_scc1 L_end")
        if c["stamp"]: e.other("s_memrealtime s[58:59]")
        e.s(f"""
s_and_b32 s{S_T0}, s2, 7
s_lshr_b32 s{S_BR}, s{S_T0}, 2
s_mul_i32 s{S_T1}, s{S_BR}, 40
s_add_u32 s{S_T2}, s0, s{S_T1}
s_addc_u32 s{S_T3}, s1, 0""")
        assert S_T3 == S_T2 + 1
        e.s(f"s_mov_b32 s56, s{S_T2}\ns_mov_b32 s57, s{S_T3}")
        for srd, off in ((SRD_X, 0), (SRD_WQ, 24), (SRD_K, 8), (SRD_V, 16), (SRD_WO, 32)):
            e.other(f"s_load_dwordx2 s[{srd}:{srd+1}], s[56:57], {off}")
        for srd, off in ((SRD_OUT, 80), (SRD_DBG, 88), (SRD_WS, 96)):
            e.other(f"s_load_dwordx2 s[{srd}:{srd+1}], s[0:1], {off}")
        self.stamp("c", "start"); self.nst["h"] = self.nst["c"]; self.stamp_names["h"] = list(self.stamp_names["c"])
        e.v(f"v_lshrrev_b32 v2, 6, v0")
        e.v(f"v_and_b32 v{V_LANE}, 63, v0")
        e.v(f"v_readfirstlane_b32 s{S_WAVE}, v2")
        for srd, n in ((SRD_X, 512 << 10), (SRD_K, 8 << 20), (SRD_V, 8 << 20), (SRD_WQ, 4 << 20), (SRD_WO, 4 << 20),
                       (SRD_WS, WS_SIZE), (SRD_OUT, 1 << 20), (SRD_DBG, 256)):
            e.s(f"s_mov_b32 s{srd+2}, {n}\ns_mov_b32 s{srd+3}, 0x20000")
        e.s(f"""
s_and_b32 s{S_T0}, s{S_T0}, 3
s_lshr_b32 s{S_T1}, s2, 3
s_and_b32 s{S_B}, s{S_T1}, 7
s_lshr_b32 s{S_T1}, s{S_T1}, 3
s_lshl_b32 s{S_T0}, s{S_T0}, 2
s_add_u32 s{S_HP}, s{S_T0}, s{S_T1}
s_lshl_b32 s{S_GRP}, s{S_BR}, 3
s_add_u32 s{S_GRP}, s{S_GRP}, s{S_B}
s_lshr_b32 s{S_T0}, s{S_B}, {c['r1b'][0]}
s_mul_i32 s{S_T0}, s{S_T0}, {c['r1b'][1]}
s_mul_i32 s{S_T1}, s{S_T1}, {c['r1h']}
s_add_u32 s{S_R1}, s{S_T0}, s{S_T1}
s_and_b32 s{S_R1}, s{S_R1}, 15
s_lshr_b32 s{S_T0}, s{S_B}, {c['r3b'][0]}
s_mul_i32 s{S_T0}, s{S_T0}, {2*c['r3b'][1]}
s_add_u32 s{S_D}, s{S_HP}, s{S_T0}
s_and_b32 s{S_D}, s{S_D}, 15
s_lshr_b32 s{S_R3}, s{S_D}, 1
s_add_u32 s{S_R3}, s{S_R3}, 1
s_and_b32 s{S_R3}, s{S_R3}, 7
s_cmp_ge_u32 s{S_WAVE}, 4
s_cbranch_scc1 L_helper""")

    def helper(self):
        e, c = self.e, self.c
        L = V_LANE
        e.label("L_helper"); e.hist = []
        HW = S_T3
        e.s(f"s_sub_u32 s{HW}, s{S_WAVE}, 4")
        if c["prio_h"]: e.other(f"s_setprio {c['prio_h']}")
        t, u = 20, 21
        e.v(f"v_lshrrev_b32 v{t}, 3, v{L}")
        e.s(f"s_lshl_b32 s{S_T0}, s{HW}, 4\ns_lshl_b32 s{S_T1}, s{S_B}, 6\ns_add_u32 s{S_T0}, s{S_T0}, s{S_T1}")
        e.v(f"v_add_lshl_u32 v{H_X}, v{t}, s{S_T0}, 10")
        e.v(f"v_lshrrev_b32 v{u}, 4, v{L}")
        e.v(f"v_and_b32 v22, 7, v{L}")
        e.v(f"v_xor_b32 v22, v22, v{u}")
        e.v(f"v_xor_b32 v23, 4, v22")
        e.v(f"v_lshl_add_u32 v{H_X+1}, v23, 4, v{H_X}")
        e.v(f"v_add_u32 v{H_X+1}, {8*1024-1024}, v{H_X+1}")
        e.v(f"v_lshl_add_u32 v{H_X}, v22, 4, v{H_X}")
        e.v(f"v_lshrrev_b32 v22, 5, v{L}")
        e.s(f"s_lshl_b32 s{S_T0}, s{HW}, 3\ns_lshl_b32 s{S_T1}, s{S_HP}, 9")
        e.v(f"v_add_lshl_u32 v23, v22, s{S_T0}, 13")
        e.v(f"v_add_u32 v23, s{S_T1}, v23")
        e.v(f"v_lshlrev_b32 v22, 2, v22")
        e.v(f"v_and_b32 v19, 31, v{L}")
        e.v(f"v_xor_b32 v22, v22, v19")
        e.v(f"v_lshl_add_u32 v{H_Q}, v22, 4, v23")
        e.v(f"v_xor_b32 v22, 8, v22")
        e.v(f"v_lshl_add_u32 v{H_Q+1}, v22, 4, v23")
        e.v(f"v_add_u32 v{H_Q+2}, {2*(16384-1024)}, v{H_Q}")
        e.v(f"v_add_u32 v{H_Q+3}, {3*(16384-1024)}, v{H_Q+1}")
        e.v(f"v_add_u32 v{H_Q+1}, {16384-1024}, v{H_Q+1}")
        e.s(f"""s_lshl_b32 s{S_CQ}, s{S_R1}, 18
s_lshl_b32 s{S_CX}, s{S_R1}, 6
s_lshl_b32 s{S_M2}, s{HW}, 11
s_lshl_b32 s{S_M4}, s{HW}, 12""")
        first = list(self.sched[-1])
        e.other("s_waitcnt lgkmcnt(0)")
        self.hseq = 0
        nfirst = 0
        while nfirst < len(first) and first[nfirst]["name"][0] in "xq" and nfirst < 3:
            self.issue(first[nfirst]); nfirst += 1
        e.s(f"""s_lshr_b32 s{S_T0}, s{S_HP}, 1
s_lshl_b32 s{S_T1}, s{S_B}, 3
s_add_u32 s{S_T0}, s{S_T0}, s{S_T1}
s_lshl_b32 s{S_T0}, s{S_T0}, 17
s_lshl_b32 s{S_T1}, s{HW}, 11
s_add_u32 s{S_T0}, s{S_T0}, s{S_T1}
s_and_b32 s{S_T1}, s{HW}, 1
s_lshl_b32 s{S_T1}, s{S_T1}, 3""")
        e.v(f"v_lshlrev_b32 v23, 8, v{u}")
        e.v(f"v_add_u32 v23, s{S_T0}, v23")
        e.v(f"v_and_b32 v19, 15, v{L}")
        e.v(f"v_add_u32 v22, s{S_T1}, v{u}")
        e.v(f"v_xor_b32 v22, v22, v19")
        e.v(f"v_lshl_add_u32 v{H_K}, v22, 4, v23")
        e.v(f"v_xor_b32 v22, 4, v22")
        e.v(f"v_lshl_add_u32 v{H_K+1}, v22, 4, v23")
        e.v(f"v_lshlrev_b32 v22, 2, v{u}")
        e.v(f"v_xor_b32 v22, v22, v19")
        e.v(f"v_lshl_add_u32 v{H_V}, v22, 4, v23")
        e.s(f"s_lshl_b32 s{S_T0}, s{HW}, 5\ns_lshl_b32 s{S_T1}, s{S_HP}, 8\ns_add_u32 s{S_T0}, s{S_T0}, s{S_T1}")
        e.v(f"v_add_lshl_u32 v23, v{t}, s{S_T0}, 10")
        e.v(f"v_and_b32 v22, 1, v{u}")
        e.v(f"v_lshlrev_b32 v22, 2, v22")
        e.v(f"v_and_b32 v19, 7, v{L}")
        e.v(f"v_xor_b32 v22, v22, v19")
        e.v(f"v_lshl_add_u32 v{H_O}, v22, 4, v23")
        for k in range(1, 4): e.v(f"v_add_u32 v{H_O+k}, {k*(8192-1024)}, v{H_O}")
        e.s(f"s_lshl_b32 s{S_CO}, s{S_R3}, 7")
        e.s(f"""s_lshl_b32 s{S_T0}, s{S_GRP}, 4
s_add_u32 s{S_T0}, s{S_T0}, s{S_D}
s_lshl_b32 s{S_T1}, s{S_T0}, 7
s_add_u32 s{S_T1}, s{S_T1}, {WS_F}
s_lshl_b32 s{S_T0}, s{S_T0}, 16
s_and_b32 s{S_T2}, s{HW}, 1
s_lshl_b32 s{S_T2}, s{S_T2}, 11
s_add_u32 s{S_T0}, s{S_T0}, s{S_T2}
s_lshr_b32 s{S_T2}, s{HW}, 1
s_lshl_b32 s{S_T2}, s{S_T2}, 10
s_add_u32 s{S_T0}, s{S_T0}, s{S_T2}""")
        e.v(f"v_lshl_add_u32 v{H_G}, v{L}, 4, s{S_T0}")
        e.v(f"v_and_b32 v22, 31, v{L}")
        e.v(f"v_lshl_add_u32 v{H_F}, v22, 2, s{S_T1}")
        e.s(f"""s_lshl_b32 s{S_T0}, s{S_B}, 1
s_and_b32 s{S_T1}, s{HW}, 1
s_add_u32 s{S_T0}, s{S_T0}, s{S_T1}
s_lshl_b32 s{S_T0}, s{S_T0}, 16
s_lshl_b32 s{S_T1}, s{S_BR}, 10
s_add_u32 s{S_T0}, s{S_T0}, s{S_T1}
s_lshl_b32 s{S_T1}, s{S_D}, 6
s_add_u32 s{S_T0}, s{S_T0}, s{S_T1}
s_lshr_b32 s{S_T1}, s{HW}, 1
s_lshl_b32 s{S_T1}, s{S_T1}, 4
s_add_u32 s{S_T0}, s{S_T0}, s{S_T1}""")
        e.v(f"v_lshl_add_u32 v{H_OUT}, v22, 11, s{S_T0}")
        e.v(f"v_lshrrev_b32 v22, 5, v{L}")
        e.v(f"v_lshl_add_u32 v{H_OUT}, v22, 5, v{H_OUT}")
        e.v(f"v_and_b32 v{H_T}, 3, v{L}")
        e.v(f"v_lshlrev_b32 v{H_T}, 13, v{H_T}")
        e.v(f"v_add_u32 v{H_T}, {KR}, v{H_T}")
        for it in first[nfirst:]: self.issue(it)
        self.stamp("h", "issued0")
        waited = -1
        for n, bn in enumerate(self.bars):
            lastneed = max([it["last"] for it in self.items.values() if it["need"] <= n and "last" in it] + [-1])
            assert all("last" in it for it in self.items.values() if it["need"] <= n)
            if lastneed > waited and not c["nodma"]:
                e.vmcnt(self.hseq - 1 - lastneed); waited = lastneed
            if bn == "BX": e.label("L_hx")
            if bn in ("B1_0", "B1_8", "BK_0", "BK_8", "BK_16", "B3_4", "B3_7"): self.stamp("h", "pre" + bn)
            e.barrier()
            if bn == "BX":
                e.ds32(22, H_T)
                e.v("v_cmp_eq_u32 vcc, -1, v22")
                e.s(f"s_cbranch_vccnz L_hslow")
                e.label("L_hgo")
            for it in self.sched[n]: self.issue(it)
        e.s(f"s_mov_b32 s{S_CNT}, 0")
        e.label("L_poll"); e.hist = []
        e.bload("buffer_load_dword", 22, 1, H_F, SRD_WS, "0", flags="sc1")
        e.s(f"s_add_u32 s{S_CNT}, s{S_CNT}, 1")
        e.vmcnt(0)
        e.v("v_cmp_eq_u32 vcc, 1, v22")
        e.s(f"s_cmp_eq_u64 vcc, exec\ns_cbranch_scc1 L_gather\ns_cmp_lt_u32 s{S_CNT}, 0x40000\ns_cbranch_scc1 L_poll")
        e.label("L_gather"); e.hist = []
        self.stamp("h", "flags")
        for k in range(16):
            if k % 4 == 0 and k: e.v(f"v_add_u32 v{H_G}, 0x4000, v{H_G}")
            so = (k % 4) * 4096
            if so: e.s(f"s_mov_b32 s{S_T0}, {so}")
            e.bload("buffer_load_dwordx4", H_BUF + 4 * k, 4, H_G, SRD_WS, f"s{S_T0}" if so else "0", flags="sc1")
        for k in range(16):
            e.vmcnt(15 - k)
            dst = H_ACC if k == 0 else H_TMP
            for j in range(4):
                e.v(f"v_lshlrev_b32 v{dst+2*j}, 16, v{H_BUF+4*k+j}")
                e.v(f"v_and_b32 v{dst+2*j+1}, 0xffff0000, v{H_BUF+4*k+j}")
            if k:
                for j in range(4):
                    e.v(f"v_pk_add_f32 v[{H_ACC+2*j}:{H_ACC+2*j+1}], v[{H_ACC+2*j}:{H_ACC+2*j+1}], v[{H_TMP+2*j}:{H_TMP+2*j+1}]")
        for j in range(4): e.v(f"v_cvt_pk_bf16_f32 v{H_TMP+j}, v{H_ACC+2*j}, v{H_ACC+2*j+1}")
        e.bstore("buffer_store_dwordx4", H_TMP, 4, H_OUT, SRD_OUT, "0")
        self.stamp("h", "stored")
        if c["stamp"]:
            e.vmcnt(0); self.stamp("h", "end")
        self.write_stamps("h")
        e.other("s_endpgm")
        e.label("L_hslow"); e.hist = []
        e.barrier()
        e.barrier()
        e.s("s_branch L_hgo")

    def issue(self, it):
        e, c = self.e, self.c
        n = it["name"]; k = n[0]
        if c["nodma"]:
            cnt = 0
        elif k == "x":
            e.s(f"s_add_u32 m0, s{S_M2}, {it['lds']}")
            e.dma(H_X, SRD_X, f"s{S_CX}", 0, c["fx"]); e.dma(H_X + 1, SRD_X, f"s{S_CX}", 1024, c["fx"])
            if n != "x7": e.s(f"s_add_u32 s{S_CX}, s{S_CX}, 128\ns_and_b32 s{S_CX}, s{S_CX}, 0x3ff")
            cnt = 2
        elif k == "q":
            e.s(f"s_add_u32 m0, s{S_M4}, {it['lds']}")
            for j in range(4): e.dma(H_Q + j, SRD_WQ, f"s{S_CQ}", 1024 * j, c["fq"])
            if n != "q15": e.s(f"s_add_u32 s{S_CQ}, s{S_CQ}, 0x40000\ns_and_b32 s{S_CQ}, s{S_CQ}, 0x3fffff")
            cnt = 4
        elif k in "kv":
            j = int(n[1:])
            e.s(f"s_add_u32 m0, s{S_M2}, {it['lds']}\ns_mov_b32 s{S_CKV}, {j*8192}")
            if k == "k":
                e.dma(H_K, SRD_K, f"s{S_CKV}", 0, c["fk"]); e.dma(H_K + 1, SRD_K, f"s{S_CKV}", 1024, c["fk"])
            else:
                e.dma(H_V, SRD_V, f"s{S_CKV}", 0, c["fv"]); e.dma(H_V, SRD_V, f"s{S_CKV}", 1024, c["fv"])
            cnt = 2
        else:
            e.s(f"s_add_u32 m0, s{S_M4}, {it['lds']}")
            if n[2] == "a": so = S_CO; e.nop(1)
            else: so = S_T0; e.s(f"s_add_u32 s{S_T0}, s{S_CO}, 0x20000")
            for j in range(4): e.dma(H_O + j, SRD_WO, f"s{so}", 1024 * j, c["fo"])
            if n[2] == "b" and n != "o7b": e.s(f"s_add_u32 s{S_CO}, s{S_CO}, 128\ns_and_b32 s{S_CO}, s{S_CO}, 0x3ff")
            cnt = 4
        self.hseq += cnt
        it["last"] = self.hseq - 1

    def wave0_only(self, fn, tag, sreg=S_WAVE):
        e = self.e
        e.s(f"s_cmp_lg_u32 s{sreg}, 0\ns_cbranch_scc1 L_w0_{tag}")
        h0 = len(e.out); mark = list(e.hist)
        fn()
        blk = [i for i in e.hist if i not in mark]
        for i in blk: i.states = 0
        e.label(f"L_w0_{tag}")

    def compute_setup(self):
        e, c = self.e, self.c
        L = V_LANE
        if c["prio_c"]: e.other(f"s_setprio {c['prio_c']}")
        MB, HH = S_T0, S_T1
        e.s(f"s_and_b32 s{MB}, s{S_WAVE}, 1\ns_lshr_b32 s{HH}, s{S_WAVE}, 1")
        h, rr, g, c0, c1, l32, a, b = 48, 49, 50, 51, 52, 53, 54, 55
        e.v(f"v_lshrrev_b32 v{h}, 5, v{L}")
        e.v(f"v_bfe_u32 v{rr}, v{L}, 2, 2")
        e.v(f"v_bfe_u32 v{g}, v{L}, 4, 1")
        e.v(f"v_and_b32 v{c0}, 1, v{L}")
        e.v(f"v_bfe_u32 v{c1}, v{L}, 1, 1")
        e.v(f"v_and_b32 v{l32}, 31, v{L}")
        e.v(f"v_lshl_add_u32 v{a}, v{h}, 3, v{rr}")
        e.v(f"v_lshlrev_b32 v{a}, 9, v{a}")
        e.s(f"s_lshl_b32 s{S_T2}, s{HH}, 8")
        e.v(f"v_lshl_add_u32 v{a}, v{g}, 5, v{a}")
        e.v(f"v_lshl_add_u32 v{a}, v{c0}, 4, v{a}")
        e.v(f"v_lshl_add_u32 v{a}, v{c1}, 3, v{a}")
        e.v(f"v_add_u32 v{a}, s{S_T2}, v{a}")
        e.v(f"v_lshl_add_u32 v{A_WQ}, v{rr}, 6, v{a}")
        for t in range(1, 4): e.v(f"v_xor_b32 v{A_WQ+t}, {t<<6}, v{A_WQ}")
        for t in range(4): e.v(f"v_add_u32 v{A_WQ+4+t}, 0x10000, v{A_WQ+t}")
        e.s(f"s_lshl_b32 s{S_T2}, s{MB}, 12\ns_add_u32 s{S_T2}, s{S_T2}, {KR}")
        e.v(f"v_lshl_add_u32 v{a}, v{l32}, 7, s{S_T2}")
        e.v(f"v_bfe_u32 v{b}, v{L}, 1, 3")
        e.v(f"v_xor_b32 v{b}, v{b}, v{h}")
        e.v(f"v_lshl_add_u32 v{A_X}, v{b}, 4, v{a}")
        for s in range(1, 4): e.v(f"v_xor_b32 v{A_X+s}, {s<<5}, v{A_X}")
        e.v(f"v_lshlrev_b32 v{a}, 8, v{l32}")
        e.v(f"v_add_u32 v{a}, {KR}, v{a}")
        e.v(f"v_and_b32 v{b}, 15, v{L}")
        e.v(f"v_xor_b32 v{b}, v{b}, v{h}")
        e.v(f"v_lshl_add_u32 v{A_K}, v{b}, 4, v{a}")
        for s in range(1, 8): e.v(f"v_xor_b32 v{A_K+s}, {s<<5}, v{A_K}")
        e.v(f"v_lshl_add_u32 v{a}, v{h}, 2, v{rr}")
        e.v(f"v_lshlrev_b32 v{b}, 8, v{a}")
        e.v(f"v_add_u32 v{b}, {VR}, v{b}")
        e.v(f"v_lshl_add_u32 v{b}, v{g}, 5, v{b}")
        e.v(f"v_lshl_add_u32 v{b}, v{c1}, 4, v{b}")
        e.v(f"v_lshl_add_u32 v{b}, v{c0}, 3, v{b}")
        e.v(f"v_lshl_add_u32 v{A_V}, v{rr}, 6, v{b}")
        for t in range(1, 4): e.v(f"v_xor_b32 v{A_V+t}, {t<<6}, v{A_V}")
        e.v(f"v_lshlrev_b32 v{a}, 7, v{a}")
        e.v(f"v_lshl_add_u32 v{a}, v{c0}, 5, v{a}")
        e.v(f"v_lshl_add_u32 v{a}, v{g}, 4, v{a}")
        e.v(f"v_lshl_add_u32 v{a}, v{c1}, 3, v{a}")
        e.v(f"v_lshrrev_b32 v{b}, 1, v{rr}")
        e.v(f"v_xor_b32 v{b}, s{HH}, v{b}")
        e.v(f"v_lshl_add_u32 v{a}, v{b}, 6, v{a}")
        e.s(f"s_lshl_b32 s{S_T2}, s{HH}, 14")
        e.v(f"v_add_u32 v{A_WO}, s{S_T2}, v{a}")
        e.v(f"v_xor_b32 v{A_WO+1}, 0x4000, v{A_WO}")
        for w in (1, 2):
            e.v(f"v_add_u32 v{A_WO+2*w}, {w*0x10000}, v{A_WO}")
            e.v(f"v_add_u32 v{A_WO+2*w+1}, {w*0x10000}, v{A_WO+1}")
        e.s(f"s_lshl_b32 s{S_T2}, s{S_WAVE}, 13\ns_add_u32 s{S_T2}, s{S_T2}, {KR}")
        e.v(f"v_lshl_add_u32 v{V_XW}, v{L}, 4, s{S_T2}")
        e.v(f"v_xor_b32 v{V_XR}, 0x4000, v{V_XW}")
        e.s(f"""s_lshl_b32 s{S_T2}, s{S_GRP}, 20
s_lshl_b32 s{S_T3}, s{HH}, 16
s_add_u32 s{S_T2}, s{S_T2}, s{S_T3}
s_and_b32 s{S_T3}, s{S_D}, 1
s_lshl_b32 s{S_T3}, s{S_T3}, 12
s_add_u32 s{S_T2}, s{S_T2}, s{S_T3}
s_lshl_b32 s{S_T3}, s{MB}, 11
s_add_u32 s{S_T2}, s{S_T2}, s{S_T3}""")
        e.v(f"v_lshl_add_u32 v{V_PUB}, v{L}, 4, s{S_T2}")
        e.s(f"""s_lshl_b32 s{S_T2}, s{S_GRP}, 4
s_add_u32 s{S_T2}, s{S_T2}, s{HH}
s_lshl_b32 s{S_T2}, s{S_T2}, 5
s_and_b32 s{S_T3}, s{S_D}, 1
s_lshl_b32 s{S_T3}, s{S_T3}, 1
s_add_u32 s{S_T2}, s{S_T2}, s{S_T3}
s_add_u32 s{S_T2}, s{S_T2}, s{MB}
s_lshl_b32 s{S_T2}, s{S_T2}, 2
s_add_u32 s{S_T2}, s{S_T2}, {WS_F}""")
        e.v(f"v_min_u32 v{a}, 1, v{L}")
        e.v(f"v_lshlrev_b32 v{a}, 31, v{a}")
        e.v(f"v_add_u32 v{V_FLG}, s{S_T2}, v{a}")
        e.s(f"s_lshl_b32 s{S_T2}, s{S_GRP}, 4")
        e.v(f"v_add_u32 v{V_RDY}, s{S_T2}, v{a}")
        e.v(f"v_mov_b32 v{V_ONE}, 1")
        e.v(f"v_mov_b32 v{V_L0}, 0"); e.v(f"v_mov_b32 v{V_L1}, 0")
        for r in range(16): e.v(f"v_mov_b32 v{CT+r}, 0")
        sc = f2u(math.log2(math.e) / math.sqrt(128.0))
        e.s(f"s_mov_b32 s{S_SC}, {sc:#x}\ns_mov_b32 s{S_SC+1}, {sc:#x}\ns_mov_b32 s{S_FIN}, 0")
        e.s(f"""s_lshl_b32 s{S_T2}, s{S_GRP}, 11
s_add_u32 s{S_T2}, s{S_T2}, {WS_F}
s_or_b32 s{S_CLR}, s{S_WAVE}, s{S_HP}""")
        e.v(f"v_lshl_add_u32 v{T0}, v{L}, 4, s{S_T2}")
        e.other("s_waitcnt lgkmcnt(0)")
        def clr():
            e.bstore("buffer_store_dwordx4", CT, 4, T0, SRD_WS, "0", flags="sc1")
            e.bstore("buffer_store_dwordx4", CT, 4, T0, SRD_WS, "0", 1024, flags="sc1")
        self.wave0_only(clr, "clr", S_CLR)

    def dump(self, base, n, tag):
        e = self.e
        e.nop(12)
        e.s(f"s_lshl_b32 s{S_T0}, s2, 2\ns_add_u32 s{S_T0}, s{S_T0}, s{S_WAVE}\ns_mul_i32 s{S_T0}, s{S_T0}, {n*256}\ns_add_u32 s{S_T0}, s{S_T0}, {18<<20}")
        e.v(f"v_lshlrev_b32 v{T0+1}, 2, v{V_LANE}")
        for r in range(n):
            if r and r % 16 == 0: e.s(f"s_add_u32 s{S_T0}, s{S_T0}, 4096")
            e.bstore("buffer_store_dword", base + r, 1, T0 + 1, SRD_WS, f"s{S_T0}", (r % 16) * 256)
        e.vmcnt(0)

    def run_mfmas(self, M, fill, pre):
        e = self.e
        for g, (d, a, b, cc) in enumerate(M):
            for f in pre.get(g, []): f()
            if self.c["WAIT2"] and g % 2 == 0 and g + 1 < len(M):
                e.wait_regs(R(a, 4) | R(b, 4) | R(M[g + 1][1], 4))
            e.mfma(d, a, b, cc)
            for f in fill.get(g, []): f()

    def compute(self):
        e, c = self.e, self.c
        LEAD, NF = c["LEAD"], c["NF"]
        self.compute_setup()
        self.stamp("c", "setup")
        fr = lambda g: FR + 4 * (g % NF)
        M = []; reads = {}; bar = {}
        for kt in range(16):
            slot = self.items[f"q{kt}"]["lds"]
            win, so = (0, slot) if slot < 65536 else (4, slot - 65536)
            for s2 in range(2):
                st = kt * 2 + s2
                xb = XB + 4 * (st % 3)
                for t in range(4):
                    g = len(M)
                    M.append((ACC + 16 * t, fr(g), xb, None if st == 0 else ACC + 16 * t))
                    rl = []
                    if t == 0:
                        xo = self.items[f"x{kt//2}"]["lds"] - KR
                        rl.append(lambda xb=xb, s=st % 4, xo=xo: e.ds128(xb, A_X + s, xo))
                    o = so + s2 * 8192
                    rl.append(lambda d=fr(g), t=t, o=o, win=win: e.dstr(d, A_WQ + win + t, o))
                    rl.append(lambda d=fr(g), t=t, o=o, win=win: e.dstr(d + 2, A_WQ + win + t, o + 2048))
                    reads[g] = rl
            bar[kt * 8] = f"B1_{kt}"
        fill = {}; pre = {}
        def place(reads, bar, n, fill, head):
            for g in range(n):
                ops = []
                if g in bar:
                    def fb(nm=bar[g]):
                        if nm in ("B1_0", "B1_8", "BK_1", "BK_8", "BK_16", "B3_1", "B3_4", "B3_7"): self.stamp("c", "pre" + nm)
                        e.barrier()
                        if nm in ("B1_0", "BK_0"): self.stamp("c", "post" + nm)
                    ops.append(fb)
                ops += reads.get(g, [])
                if g < LEAD: head += ops
                else: fill.setdefault(g - LEAD, []).extend(ops)
        head = []
        place(reads, bar, len(M), fill, head)
        def arrive():
            e.vmcnt(0)
            e.bstore("buffer_store_dword", V_ONE, 1, V_RDY, SRD_DBG, "0", flags="sc1")
        fill.setdefault(41, []).append(lambda: self.wave0_only(arrive, "arr", S_CLR))
        for f in head: f()
        self.run_mfmas(M, fill, pre)
        self.stamp("c", "P1end")
        M = []; reads = {}; bar = {}
        def addQK(j):
            bar[len(M)] = f"BK_{j}"
            so = self.items[f"k{j}"]["lds"] - KR
            for s in range(8):
                g = len(M); S = SS + 16 * (j % 2)
                M.append((S, fr(g), QP + 4 * s, CT if s == 0 else S))
                reads[g] = [lambda d=fr(g), s=s, so=so: e.ds128(d, A_K + s, so)]
        def addPV(j):
            so = self.items[f"v{j}"]["lds"] - VR
            for u in range(2):
                for t in range(4):
                    g = len(M)
                    M.append((ACC + 16 * t, fr(g), PP + 4 * u, None if (j == 0 and u == 0) else ACC + 16 * t))
                    o = so + u * 4096
                    reads[g] = [lambda d=fr(g), t=t, o=o: e.dstr(d, A_V + t, o),
                                lambda d=fr(g), t=t, o=o: e.dstr(d + 2, A_V + t, o + 2048)]
        addQK(0)
        for j in range(15): addQK(j + 1); addPV(j)
        bar[len(M)] = "BK_16"
        addPV(15)
        fill = {}; pre = {}; head = []
        place(reads, bar, len(M), fill, head)
        def ex(j, r): return lambda: e.v(f"v_exp_f32 v{SS+16*(j%2)+r}, v{SS+16*(j%2)+r}")
        def cv(j, k): return lambda: e.v(f"v_cvt_pk_bf16_f32 v{PP+k}, v{SS+16*(j%2)+2*k}, v{SS+16*(j%2)+2*k+1}")
        def ad(j, r): return lambda: e.v(f"v_add_f32 v{V_L0+(r%2)}, v{V_L0+(r%2)}, v{SS+16*(j%2)+r}")
        TAB = c.get("tab") or ["e0 e1", "e2 e3", "e4 e5", "e6 c0 c1", "e7 c2", "e8 c3 a0", "e9 a1", "e10 c4 a2",
                               "e11 e12", "e13 c5 a3", "e14 e15", "<c6 <c7 a4 a5", "a6 a7 a8", "a9 a10 a11", "a12 a13 a14", "a15"]
        def put(j, g, spec, tgt=None):
            front = []
            for tok in spec.split():
                first = tok[0] == "<"
                if first: tok = tok[1:]
                f = {"e": ex, "c": cv, "a": ad}[tok[0]](j, int(tok[1:]))
                if first: front.append(f)
                else: fill.setdefault(g, []).append(f)
            fill[g] = front + fill.get(g, [])
        for j in range(15):
            for k in range(16): put(j, 8 + 16 * j + k, TAB[k])
        g0 = 8 + 16 * 15
        put(15, g0 - 1, "e0 e1 e2 e3 c0 e4 e5 c1 e6 e7 c2 c3")
        for k, sp in enumerate(["e8 e9 a0", "e10 e11 c4", "e12 e13 c5", "<e14 <e15 <c6 <c7", "a1 a2 a3 a4", "a5 a6 a7 a8", "a9 a10 a11 a12", "a13 a14 a15"]):
            put(15, g0 + k, sp)
        def rdyload(): e.bload("buffer_load_dword", T0 + 2, 1, V_RDY, SRD_DBG, "0", flags="sc1")
        fill.setdefault(8 + 16 * 11 + 15, []).append(lambda: self.wave0_only(rdyload, "rl"))
        for t in range(4):
            if t == 3:
                for f in head: f()
            for k in range(8):
                r = ACC + 16 * t + 2 * k
                e.v(f"v_pk_mul_f32 v[{r}:{r+1}], v[{r}:{r+1}], s[{S_SC}:{S_SC+1}]")
            for k in range(8):
                r = ACC + 16 * t + 2 * k
                e.v(f"v_cvt_pk_bf16_f32 v{QP+8*t+k}, v{r}, v{r+1}")
        if c["dump"] == "q": self.dump(QP, 32, "q")
        self.stamp("c", "P2start")
        self.run_mfmas(M, fill, pre)
        self.stamp("c", "P2end")
        M = []; reads = {}; bar = {}
        for i in range(8):
            slot = WOSLOT[i]; win = slot >> 16; so = slot & 0xffff
            if i: bar[len(M)] = f"B3_{i}"
            for hs in range(2):
                for k in range(8):
                    g = len(M); A3 = AC3 + 16 * (i % 2)
                    M.append((A3, fr(g), (OWN if hs == 0 else OTH) + 4 * k, None if (hs == 0 and k == 0) else A3))
                    o = so + k * 2048
                    reads[g] = [lambda d=fr(g), o=o, a=A_WO + 2 * win + hs: e.dstr(d, a, o),
                                lambda d=fr(g), o=o, a=A_WO + 2 * win + hs: e.dstr(d + 2, a, o + 1024)]
        fill = {}; pre = {}; head = []
        place(reads, bar, len(M), fill, head)
        e.lgkm(0)
        e.label("L_norm")
        for f in head: f()
        l, t1, t2 = V_L0, T0, T0 + 1
        e.v(f"v_add_f32 v{l}, v{V_L0}, v{V_L1}")
        e.v(f"v_mov_b32 v{t1}, v{l}")
        e.v(f"v_permlane32_swap_b32 v{l}, v{t1}")
        e.v(f"v_add_f32 v{l}, v{l}, v{t1}")
        e.v(f"v_rcp_f32 v{t2+1+1}, v{l}")
        RC = T0 + 4
        e.v(f"v_mov_b32 v{RC}, v{T0+3}"); e.v(f"v_mov_b32 v{RC+1}, v{T0+3}")
        e.s(f"s_mov_b32 s{S_T0}, {f2u(2.0**-30):#x}\ns_mov_b32 s{S_T1}, {f2u(2.0**30):#x}")
        e.v(f"v_cmp_nle_f32 vcc, s{S_T0}, v{l}")
        e.v(f"v_cmp_nge_f32 s[{56}:{57}], s{S_T1}, v{l}")
        for t in range(4):
            for k in range(8):
                r = ACC + 16 * t + 2 * k
                e.v(f"v_pk_mul_f32 v[{r}:{r+1}], v[{r}:{r+1}], v[{RC}:{RC+1}]")
            for k in range(8):
                r = ACC + 16 * t + 2 * k
                e.v(f"v_cvt_pk_bf16_f32 v{OWN+8*t+k}, v{r}, v{r+1}")
            if t == 0:
                e.s(f"s_or_b64 vcc, vcc, s[56:57]\ns_cmp_lg_u32 s{S_FIN}, 0\ns_cbranch_scc1 L_novote\ns_cbranch_vccz L_novote")
                mark = list(e.hist)
                e.v(f"v_mov_b32 v{OWN}, -1")
                for i in e.hist:
                    if i not in mark: i.states = 0
                e.label("L_novote")
                e.lgkm(0)
            e.ds_write("ds_write_b128", V_XW, OWN + 8 * t, 4, 2048 * t)
            e.ds_write("ds_write_b128", V_XW, OWN + 8 * t + 4, 4, 2048 * t + 1024)
        if c["dump"] == "o": self.dump(OWN, 32, "o")
        def rdy():
            e.label("L_rdy"); e.vmcnt(0)
            e.v(f"v_readfirstlane_b32 s{S_T0}, v{T0+2}")
            e.s(f"s_cmp_eq_u32 s{S_T0}, 1\ns_cbranch_scc1 L_rdyok")
            e.bload("buffer_load_dword", T0 + 2, 1, V_RDY, SRD_DBG, "0", flags="sc1")
            e.s(f"s_add_u32 s{S_CNT}, s{S_CNT}, 1\ns_cmp_lt_u32 s{S_CNT}, 0x40000\ns_cbranch_scc1 L_rdy")
            e.label("L_rdyok")
        e.s(f"s_mov_b32 s{S_CNT}, 0")
        self.wave0_only(rdy, "rdy")
        e.v(f"v_and_b32 v{t1}, 3, v{V_LANE}")
        e.v(f"v_lshlrev_b32 v{t1}, 13, v{t1}")
        e.v(f"v_add_u32 v{t1}, {KR}, v{t1}")
        e.lgkm(0)
        self.stamp("c", "preBX")
        e.barrier()
        self.stamp("c", "postBX")
        e.ds32(t2, t1)
        for k in range(8):
            fill.setdefault(k, []).append(lambda k=k: e.ds128(OTH + 4 * k, V_XR, 1024 * k))
        def vote():
            e.v(f"v_cmp_eq_u32 vcc, -1, v{t2}")
            e.s(f"s_cmp_lg_u32 s{S_FIN}, 0\ns_cbranch_scc1 L_voted\ns_cbranch_vccnz L_slow")
            e.label("L_voted")
        fill[1] = [vote] + fill.get(1, [])
        FL = c["FLAGLAG"]
        vseq = []
        def pub_cvt(i, k): return lambda: e.v(f"v_cvt_pk_bf16_f32 v{PK+8*(i%2)+k}, v{AC3+16*(i%2)+2*k}, v{AC3+16*(i%2)+2*k+1}")
        def pub_so(i):
            def f():
                e.s(f"s_add_u32 s{S_T0}, s{S_R3}, {i}\ns_and_b32 s{S_T0}, s{S_T0}, 7\ns_lshl_b32 s{S_T1}, s{S_T0}, 17")
                if i: e.s(f"s_add_u32 s{S_T1}, s{S_T1}, {i*8192}")
            return f
        def pub_st(i, q):
            def f():
                if c["nopub"]:
                    vseq.append(("S", i)); return
                e.bstore("buffer_store_dwordx4", PK + 8 * (i % 2) + 4 * q, 4, V_PUB, SRD_WS, f"s{S_T1}", 1024 * q, flags="sc1")
                vseq.append(("S", i))
            return f
        def pub_flag(i):
            def f():
                e.s(f"s_add_u32 s{S_T2}, s{S_R3}, {i}\ns_and_b32 s{S_T2}, s{S_T2}, 7\ns_lshl_b32 s{S_T2}, s{S_T2}, 8")
                last = max(n for n, x in enumerate(vseq) if x == ("S", i))
                e.vmcnt(len(vseq) - 1 - last)
                e.bstore("buffer_store_dword", V_ONE, 1, V_FLG, SRD_WS, f"s{S_T2}", 16 * i, flags="sc1")
                vseq.append(("F", i))
            return f
        for i in range(7):
            g = 16 * (i + 1)
            fill.setdefault(g + 2, []).append(pub_so(i))
            for k in range(8): fill.setdefault(g + 3 + k // 2, []).append(pub_cvt(i, k))
            fill.setdefault(g + 5, []).append(pub_st(i, 0))
            fill.setdefault(g + 7, []).append(pub_st(i, 1))
            if i + 1 + FL <= 7: fill.setdefault(16 * (i + 1 + FL) + 10, []).append(pub_flag(i))
        self.run_mfmas(M, fill, pre)
        self.stamp("c", "P3end")
        pub_so(7)()
        for k in range(8): pub_cvt(7, k)()
        pub_st(7, 0)(); pub_st(7, 1)()
        for i in range(8):
            if i == 7 or i + 1 + FL > 7: pub_flag(i)()
        self.stamp("c", "flagged")
        self.write_stamps("c")
        e.other("s_endpgm")
        self.slow()

    def slow(self):
        e = self.e
        L = V_LANE
        e.label("L_slow"); e.hist = []; e.pend = []
        e.other("s_waitcnt vmcnt(0) lgkmcnt(0)"); e.nop(16)
        e.barrier()
        KA, VA, MX, t1 = T0, T0 + 1, T0 + 6, T0 + 7
        e.s(f"""s_mov_b32 s{S_FIN}, 1
s_lshr_b32 s{S_T0}, s{S_HP}, 1
s_lshl_b32 s{S_T1}, s{S_B}, 3
s_add_u32 s{S_T0}, s{S_T0}, s{S_T1}
s_lshl_b32 s{S_T0}, s{S_T0}, 17""")
        e.v(f"v_and_b32 v{t1}, 31, v{L}")
        e.v(f"v_lshrrev_b32 v{MX}, 5, v{L}")
        e.v(f"v_lshlrev_b32 v{KA}, 8, v{t1}")
        e.v(f"v_lshl_add_u32 v{KA}, v{MX}, 4, v{KA}")
        e.v(f"v_add_u32 v{KA}, s{S_T0}, v{KA}")
        e.v(f"v_lshlrev_b32 v{VA}, 10, v{MX}")
        e.v(f"v_lshl_add_u32 v{VA}, v{t1}, 1, v{VA}")
        e.v(f"v_add_u32 v{VA}, s{S_T0}, v{VA}")
        e.v(f"v_mov_b32 v{MX}, 0xff800000")
        def qk(cinit):
            for s in range(8): e.bload("buffer_load_dwordx4", FR + 4 * s, 4, KA, SRD_K, f"s{S_T1}", 32 * s)
            e.vmcnt(0)
            for s in range(8): e.mfma(SS, FR + 4 * s, QP + 4 * s, cinit if s == 0 else SS)
        e.s(f"s_mov_b32 s{S_T1}, 0")
        e.label("L_s1"); e.nop(12)
        qk(None)
        for r in range(0, 16, 2): e.v(f"v_max3_f32 v{MX}, v{MX}, v{SS+r}, v{SS+r+1}")
        e.s(f"s_add_u32 s{S_T1}, s{S_T1}, 8192\ns_cmp_lt_u32 s{S_T1}, 0x20000\ns_cbranch_scc1 L_s1")
        e.v(f"v_mov_b32 v{t1}, v{MX}")
        e.v(f"v_permlane32_swap_b32 v{MX}, v{t1}")
        e.v(f"v_max_f32 v{MX}, v{MX}, v{t1}")
        for r in range(16): e.v(f"v_sub_f32 v{CT+r}, 0, v{MX}")
        for r in range(64): e.v(f"v_mov_b32 v{ACC+r}, 0")
        e.v(f"v_mov_b32 v{V_L0}, 0"); e.v(f"v_mov_b32 v{V_L1}, 0")
        e.s(f"s_mov_b32 s{S_T1}, 0")
        e.label("L_s2"); e.nop(12)
        qk(CT)
        for r in range(16): e.v(f"v_exp_f32 v{SS+r}, v{SS+r}")
        for r in range(16): e.v(f"v_add_f32 v{V_L0}, v{V_L0}, v{SS+r}")
        for k in range(8): e.v(f"v_cvt_pk_bf16_f32 v{PP+k}, v{SS+2*k}, v{SS+2*k+1}")
        for u in range(2):
            e.s(f"s_add_u32 s{S_T2}, s{S_T1}, {u*4096}")
            for t in range(4):
                for j in range(8):
                    row = 8 * (j // 4) + j % 4
                    op = "buffer_load_short_d16_hi" if j % 2 else "buffer_load_short_d16"
                    e.bload(op, FR + 4 * t + j // 2, 1, VA, SRD_V, f"s{S_T2}", row * 256 + t * 64)
                    if j % 2 == 0: e.vmcnt(0)
            e.vmcnt(0)
            for t in range(4): e.mfma(ACC + 16 * t, FR + 4 * t, PP + 4 * u, ACC + 16 * t)
            e.nop(8)
        e.s(f"s_add_u32 s{S_T1}, s{S_T1}, 8192\ns_cmp_lt_u32 s{S_T1}, 0x20000\ns_cbranch_scc1 L_s2")
        e.nop(16)
        e.v(f"v_mov_b32 v{T0+2}, 1")
        e.s("s_branch L_norm")

    def build(self):
        e = self.e
        self.plan()
        e.raw(f"""; Fused GQA block (two branches), gfx950.  Generated by the author's own generator script.
; @launch grid=(256,1,1) block=(512,1,1) lds={LDS}
.amdgcn_target "amdgcn-amd-amdhsa--gfx950"
.text
.globl {KN}
.p2align 8
.type {KN},@function
{KN}:""")
        self.prologue()
        self.compute()
        self.helper()
        e.label("L_end"); e.other("s_endpgm")
        e.raw(f""".section .rodata,"a"
.p2align 6
.amdhsa_kernel {KN}
  .amdhsa_next_free_vgpr 248
  .amdhsa_next_free_sgpr 102
  .amdhsa_accum_offset 248
  .amdhsa_group_segment_fixed_size 0
  .amdhsa_kernarg_size 104
  .amdhsa_user_sgpr_count 2
  .amdhsa_user_sgpr_kernarg_segment_ptr 1
  .amdhsa_system_sgpr_workgroup_id_x 1
.end_amdhsa_kernel""")
        assert e.maxv < 248
        return e.text()

if __name__ == "__main__":
    kw = eval("dict(%s)" % (sys.argv[2] if len(sys.argv) > 2 else ""))
    g = Gen(**kw)
    t = g.build()
    open(sys.argv[1], "w").write(t)
    print("nops", g.e.nnop, "waits", g.e.nwait, "lines", len(g.e.out))
    for n in range(-1, len(g.bars)):
        print(g.bars[n] if n >= 0 else "start", [i["name"] for i in g.sched[n]])
```

```python
import sys, math, struct
from emit import *

NAME = "concat_heads__gqa_block_cached__gqa_block_cached__near_ridge"
KN = NAME + "_kernel"

def f2u(f): return struct.unpack("<I", struct.pack("<f", f))[0]

DEF = dict(
    LEAD=5, NF=8, WAIT2=1,
    r1b=(0, 0), r1h=0,
    r3b=(0, 0),
    fx="", fq="", fk="", fv="", fo="",
    kvpre=16,
    NREG=0, PACE3=None, PUBG=6, PREPOLL=5, wopos=(2, 4, 6, 8, 10, 12),
    prio_c=0, prio_h=0,
    stamp=0, dump=None, FLAGLAG=1, touch=1, NB3=6, rounds=tuple((i,) for i in range(8)), l2pf=1, TPOS=1, tlbpf=0, wsoff=0, fout='', CAP=64, pad=None, nodma=0, tab=None, nopub=0,
)

W0 = 0; KR = 98304; VR = 131072; LDS = 163840
XSLOT = [KR, KR + 8192, VR, KR + 16384, VR + 8192, KR + 24576, VR + 16384, VR + 24576]
WOSLOT = [0, 32768, 65536, VR, KR, 0, 32768, 65536]
WS_X = 0
WS_F = 16 << 20
WS_DBG = 17 << 20
WS_SIZE = 32 << 20
S_WAVE, S_BR, S_B, S_HP, S_D = 3, 4, 5, 6, 7
SRD_X, SRD_K, SRD_V, SRD_WQ, SRD_WO, SRD_WS, SRD_OUT, SRD_DBG = 8, 12, 16, 20, 24, 28, 32, 36
S_GRP, S_R1, S_R3, S_T0, S_T1, S_T2, S_T3 = 40, 41, 42, 43, 44, 45, 46
S_CX, S_CQ, S_CKV, S_CO, S_M2, S_M4, S_FIN, S_SC = 47, 48, 49, 50, 51, 52, 53, 54
S_CNT = 56
S_CLR = 100
S_STAMP = 60
V_LANE = 1
A_WQ = 2
A_X = 10
A_K = 14
A_V = 22
A_WO = 26
V_PUB, V_FLG, V_XW, V_XR, V_L0, V_L1 = 32, 33, 34, 35, 36, 37
T0 = 38
FR = 48
XB = 80
PP = 80
QP = 92
ACC = 128
SS = 192
CT = 224
OWN = 192
OTH = 128
AC3 = 160
PK = 224
V_ONE, V_RDY = 240, 241
H_X, H_Q, H_K, H_V, H_O = 2, 4, 8, 10, 12
H_G, H_F, H_OUT, H_T = 16, 17, 18, 19
H_ACC = 24
H_TMP = 32
H_BUF = 160
H_REG = 64
H_W = 40


class Gen:
    def __init__(self, **kw):
        self.c = dict(DEF); self.c.update(kw)
        for k in kw: assert k in DEF, k
        self.e = Em()
        self.nst = {"c": 0, "h": 0}
        self.stamp_names = {"c": [], "h": []}

    def stamp(self, who, name):
        if not self.c["stamp"]: return
        k = self.nst[who]; self.nst[who] += 1
        assert k < 19
        self.stamp_names[who].append(name)
        self.e.other(f"{'s_memrealtime' if self.c['stamp'] == 2 else 's_memtime'} s[{S_STAMP+2*k}:{S_STAMP+2*k+1}]")

    def write_stamps(self, who):
        if not self.c["stamp"]: return
        e = self.e
        if self.c["pad"]:
            T, w, nm = self.c["pad"]
            if w == who:
                k = self.stamp_names[who].index(nm)
                e.lgkm(0)
                e.s(f"s_add_u32 s{S_T0}, s{S_STAMP+2*k}, {T//10}")
                e.label(f"L_pad{who}")
                e.other("s_memrealtime s[98:99]"); e.lgkm(0)
                e.s(f"s_sub_u32 s{S_T1}, s98, s{S_T0}\ns_cmp_lt_i32 s{S_T1}, 0\ns_cbranch_scc1 L_pad{who}")
            return
        e.other("s_memrealtime s[98:99]")
        e.lgkm(0)
        e.v("v_mov_b32 v44, 0")
        for k in range(self.nst[who]): e.v(f"v_writelane_b32 v44, s{S_STAMP+2*k}, {k}")
        e.v("v_writelane_b32 v44, s98, 30"); e.v("v_writelane_b32 v44, s58, 31")
        e.v(f"v_lshlrev_b32 v45, 2, v{V_LANE}")
        e.s(f"s_lshl_b32 s{S_T0}, s2, 3\ns_add_u32 s{S_T0}, s{S_T0}, s{S_WAVE}\ns_lshl_b32 s{S_T0}, s{S_T0}, 8\ns_add_u32 s{S_T0}, s{S_T0}, {WS_DBG}")
        e.bstore("buffer_store_dword", 44, 1, 45, SRD_WS, f"s{S_T0}")

    def plan(self):
        c = self.c
        bars = [f"B1_{k}" for k in range(16)] + [f"BK_{k}" for k in range(17)] + ["BX"] + [f"B3_{k}" for k in range(1, c["NB3"] + 1)]
        bi = {n: i for i, n in enumerate(bars)}
        items = {}
        def add(name, lds, after, needed): items[name] = dict(name=name, lds=lds, after=after, need=needed)
        xfree = lambda cc: bi[f"B1_{2*cc+3}"] if cc <= 6 else bi["BK_0"]
        qfree = lambda kt: bi[f"B1_{kt+2}"] if kt <= 13 else bi["BK_0"]
        for cc in range(8): add(f"x{cc}", XSLOT[cc], -1, bi[f"B1_{2*cc}"])
        for kt in range(16): add(f"q{kt}", W0 + (kt % 6) * 16384, -1 if kt < 6 else qfree(kt - 6), bi[f"B1_{kt}"])
        for j in range(16):
            a = KR + (j % 4) * 8192
            add(f"k{j}", a, xfree(XSLOT.index(a)) if j < 4 else bi[f"BK_{max(j-3, 2)}"], bi[f"BK_{j}"])
            a = VR + (j % 4) * 8192
            add(f"v{j}", a, xfree(XSLOT.index(a)) if j < 4 else bi[f"BK_{j-1}"], bi[f"BK_{j+1}"])
        NREG = c["NREG"]
        for i in range(8):
            for hf in range(2):
                a = WOSLOT[i] + hf * 16384
                if i < 3:
                    last = max(kt for kt in range(16) if (kt % 6) * 16384 == a)
                    aft = qfree(last)
                else: aft = bi["BX"] if i == 3 else bi[f"B3_{i-3}"]
                if i >= 8 - NREG:
                    add(f"o{i}{'ab'[hf]}", a, -1, aft)
                    items[f"o{i}{'ab'[hf]}"]["reg"] = H_REG + 32 * (i - (8 - NREG)) + 16 * hf
                else:
                    add(f"o{i}{'ab'[hf]}", a, aft, bi["BK_16"] if i == 0 else bi[f"B3_{min(i, c['NB3'])}"])
        order = []
        kvq = ["k0", "k1", "v0", "k2", "v1", "k3", "v2"]
        for kt in range(16):
            if kt % 2 == 0: order.append(f"x{kt//2}")
            order.append(f"q{kt}")
            if kt + 1 >= c["kvpre"] and kt < 15 and kvq and items[kvq[0]]["after"] <= items[f"q{kt}"]["after"]:
                order.append(kvq.pop(0))
        order += kvq
        wo = [f"o{i}{h}" for i in list(range(3)) + list(range(8 - NREG, 8)) for h in "ab"]
        wp = list(c["wopos"])
        order.append("v3")
        for n in range(1, 16):
            if 4 <= n + 1 <= 15: order.append(f"v{n+1}")
            if n == 2: order.append("k4")
            if 5 <= n + 3 <= 15: order.append(f"k{n+3}")
            while wp and wo and wp[0] <= n:
                nm = wo.pop(0); wp.pop(0)
                items[nm]["after"] = max(items[nm]["after"], bi[f"BK_{n}"])
                order.append(nm)
        order += wo
        order += [f"o{i}{h}" for i in range(3, 8 - NREG) for h in "ab"]
        assert sorted(order) == sorted(items), (set(items) - set(order), len(order), len(items))
        cur = -1
        sched = {i: [] for i in range(-1, len(bars))}
        size = lambda n: 16 if n[0] in "qo" else 8
        issued = []
        nP1 = bi["BK_0"]
        for n in order:
            it = items[n]
            cur = max(cur, it["after"])
            while cur < nP1 and sum(size(m) for m in issued if items[m]["need"] > cur) + size(n) > c["CAP"]:
                cur += 1
            assert cur < it["need"], (n, bars[cur], bars[it["need"]])
            sched[cur].append(it); issued.append(n)
        self.bars, self.bi, self.items, self.sched, self.order = bars, bi, items, sched, order

    def prologue(self):
        e, c = self.e, self.c
        e.s("s_cmp_ge_u32 s2, 256\ns_cbranch_scc1 L_end")
        if c["stamp"]: e.other("s_memrealtime s[58:59]")
        e.s(f"""
s_and_b32 s{S_T0}, s2, 7
s_lshr_b32 s{S_BR}, s{S_T0}, 2
s_mul_i32 s{S_T1}, s{S_BR}, 40
s_add_u32 s{S_T2}, s0, s{S_T1}
s_addc_u32 s{S_T3}, s1, 0""")
        assert S_T3 == S_T2 + 1
        e.s(f"s_mov_b32 s56, s{S_T2}\ns_mov_b32 s57, s{S_T3}")
        for srd, off in ((SRD_X, 0), (SRD_WQ, 24), (SRD_K, 8), (SRD_V, 16), (SRD_WO, 32)):
            e.other(f"s_load_dwordx2 s[{srd}:{srd+1}], s[56:57], {off}")
        for srd, off in ((SRD_OUT, 80), (SRD_DBG, 88), (SRD_WS, 96)):
            e.other(f"s_load_dwordx2 s[{srd}:{srd+1}], s[0:1], {off}")
        self.stamp("c", "start"); self.nst["h"] = self.nst["c"]; self.stamp_names["h"] = list(self.stamp_names["c"])
        e.v(f"v_lshrrev_b32 v2, 6, v0")
        e.v(f"v_and_b32 v{V_LANE}, 63, v0")
        e.v(f"v_readfirstlane_b32 s{S_WAVE}, v2")
        for srd, n in ((SRD_X, 512 << 10), (SRD_K, 8 << 20), (SRD_V, 8 << 20), (SRD_WQ, 4 << 20), (SRD_WO, 4 << 20),
                       (SRD_WS, WS_SIZE), (SRD_OUT, 1 << 20), (SRD_DBG, 256)):
            e.s(f"s_mov_b32 s{srd+2}, {n}\ns_mov_b32 s{srd+3}, 0x20000")
        e.s(f"""
s_and_b32 s{S_T0}, s{S_T0}, 3
s_lshr_b32 s{S_T1}, s2, 3
s_and_b32 s{S_B}, s{S_T1}, 7
s_lshr_b32 s{S_T1}, s{S_T1}, 3
s_lshl_b32 s{S_T0}, s{S_T0}, 2
s_add_u32 s{S_HP}, s{S_T0}, s{S_T1}
s_lshl_b32 s{S_GRP}, s{S_BR}, 3
s_add_u32 s{S_GRP}, s{S_GRP}, s{S_B}
s_lshr_b32 s{S_T0}, s{S_B}, {c['r1b'][0]}
s_mul_i32 s{S_T0}, s{S_T0}, {c['r1b'][1]}
s_mul_i32 s{S_T1}, s{S_T1}, {c['r1h']}
s_add_u32 s{S_R1}, s{S_T0}, s{S_T1}
s_and_b32 s{S_R1}, s{S_R1}, 15
s_lshr_b32 s{S_T0}, s{S_B}, {c['r3b'][0]}
s_mul_i32 s{S_T0}, s{S_T0}, {2*c['r3b'][1]}
s_add_u32 s{S_D}, s{S_HP}, s{S_T0}
s_and_b32 s{S_D}, s{S_D}, 15
s_lshr_b32 s{S_R3}, s{S_D}, 1
s_add_u32 s{S_R3}, s{S_R3}, 1
s_and_b32 s{S_R3}, s{S_R3}, 7
s_cmp_ge_u32 s{S_WAVE}, 4
s_cbranch_scc1 L_helper""")
        self.compute_setup()
        e.s("s_branch L_compute")

    def helper(self):
        e, c = self.e, self.c
        L = V_LANE
        e.label("L_helper"); e.hist = []
        HW = S_T3
        e.s(f"s_sub_u32 s{HW}, s{S_WAVE}, 4")
        if c["prio_h"]: e.other(f"s_setprio {c['prio_h']}")
        t, u = 20, 21
        e.v(f"v_lshrrev_b32 v{t}, 3, v{L}")
        e.s(f"s_lshl_b32 s{S_T0}, s{HW}, 4\ns_lshl_b32 s{S_T1}, s{S_B}, 6\ns_add_u32 s{S_T0}, s{S_T0}, s{S_T1}")
        e.v(f"v_add_lshl_u32 v{H_X}, v{t}, s{S_T0}, 10")
        e.v(f"v_lshrrev_b32 v{u}, 4, v{L}")
        e.v(f"v_and_b32 v22, 7, v{L}")
        e.v(f"v_xor_b32 v22, v22, v{u}")
        e.v(f"v_xor_b32 v23, 4, v22")
        e.v(f"v_lshl_add_u32 v{H_X+1}, v23, 4, v{H_X}")
        e.v(f"v_add_u32 v{H_X+1}, {8*1024-1024}, v{H_X+1}")
        e.v(f"v_lshl_add_u32 v{H_X}, v22, 4, v{H_X}")
        e.v(f"v_lshrrev_b32 v22, 5, v{L}")
        e.s(f"s_lshl_b32 s{S_T0}, s{HW}, 3\ns_lshl_b32 s{S_T1}, s{S_HP}, 9")
        e.v(f"v_add_lshl_u32 v23, v22, s{S_T0}, 13")
        e.v(f"v_add_u32 v23, s{S_T1}, v23")
        e.v(f"v_lshlrev_b32 v22, 2, v22")
        e.v(f"v_and_b32 v19, 31, v{L}")
        e.v(f"v_xor_b32 v22, v22, v19")
        e.v(f"v_lshl_add_u32 v{H_Q}, v22, 4, v23")
        e.v(f"v_xor_b32 v22, 8, v22")
        e.v(f"v_lshl_add_u32 v{H_Q+1}, v22, 4, v23")
        e.v(f"v_add_u32 v{H_Q+2}, {2*(16384-1024)}, v{H_Q}")
        e.v(f"v_add_u32 v{H_Q+3}, {3*(16384-1024)}, v{H_Q+1}")
        e.v(f"v_add_u32 v{H_Q+1}, {16384-1024}, v{H_Q+1}")
        e.s(f"""s_lshl_b32 s{S_CQ}, s{S_R1}, 18
s_lshl_b32 s{S_CX}, s{S_R1}, 6
s_lshl_b32 s{S_M2}, s{HW}, 11
s_lshl_b32 s{S_M4}, s{HW}, 12""")
        first = list(self.sched[-1])
        e.other("s_waitcnt lgkmcnt(0)")
        self.wsoff()
        self.hseq = 0
        nfirst = 0
        while nfirst < len(first) and first[nfirst]["name"][0] in "xq" and nfirst < 3:
            self.issue(first[nfirst]); nfirst += 1
        e.s(f"""s_lshr_b32 s{S_T0}, s{S_HP}, 1
s_lshl_b32 s{S_T1}, s{S_B}, 3
s_add_u32 s{S_T0}, s{S_T0}, s{S_T1}
s_lshl_b32 s{S_T0}, s{S_T0}, 17
s_lshl_b32 s{S_T1}, s{HW}, 11
s_add_u32 s{S_T0}, s{S_T0}, s{S_T1}
s_and_b32 s{S_T1}, s{HW}, 1
s_lshl_b32 s{S_T1}, s{S_T1}, 3""")
        e.v(f"v_lshlrev_b32 v23, 8, v{u}")
        e.v(f"v_add_u32 v23, s{S_T0}, v23")
        e.v(f"v_and_b32 v19, 15, v{L}")
        e.v(f"v_add_u32 v22, s{S_T1}, v{u}")
        e.v(f"v_xor_b32 v22, v22, v19")
        e.v(f"v_lshl_add_u32 v{H_K}, v22, 4, v23")
        e.v(f"v_xor_b32 v22, 4, v22")
        e.v(f"v_lshl_add_u32 v{H_K+1}, v22, 4, v23")
        e.v(f"v_lshlrev_b32 v22, 2, v{u}")
        e.v(f"v_xor_b32 v22, v22, v19")
        e.v(f"v_lshl_add_u32 v{H_V}, v22, 4, v23")
        e.s(f"s_lshl_b32 s{S_T0}, s{HW}, 5\ns_lshl_b32 s{S_T1}, s{S_HP}, 8\ns_add_u32 s{S_T0}, s{S_T0}, s{S_T1}")
        e.v(f"v_add_lshl_u32 v23, v{t}, s{S_T0}, 10")
        e.v(f"v_and_b32 v22, 1, v{u}")
        e.v(f"v_lshlrev_b32 v22, 2, v22")
        e.v(f"v_and_b32 v19, 7, v{L}")
        e.v(f"v_xor_b32 v22, v22, v19")
        e.v(f"v_lshl_add_u32 v{H_O}, v22, 4, v23")
        for k in range(1, 4): e.v(f"v_add_u32 v{H_O+k}, {k*(8192-1024)}, v{H_O}")
        e.v(f"v_lshl_add_u32 v{H_W}, v{L}, 4, s{S_M4}")
        e.v(f"v_add_u32 v{H_W+1}, 0x10000, v{H_W}")
        e.s(f"""s_lshl_b32 s{S_T0}, s{S_GRP}, 4
s_add_u32 s{S_T0}, s{S_T0}, s{S_D}
s_lshl_b32 s{S_T1}, s{S_T0}, 7
s_add_u32 s{S_T1}, s{S_T1}, {WS_F}
s_lshl_b32 s{S_T0}, s{S_T0}, 16
s_and_b32 s{S_T2}, s{HW}, 1
s_lshl_b32 s{S_T2}, s{S_T2}, 11
s_add_u32 s{S_T0}, s{S_T0}, s{S_T2}
s_lshr_b32 s{S_T2}, s{HW}, 1
s_lshl_b32 s{S_T2}, s{S_T2}, 10
s_add_u32 s{S_T0}, s{S_T0}, s{S_T2}""")
        e.v(f"v_lshl_add_u32 v{H_G}, v{L}, 4, s{S_T0}")
        e.v(f"v_and_b32 v22, 31, v{L}")
        e.v(f"v_lshl_add_u32 v{H_F}, v22, 2, s{S_T1}")
        e.s(f"""s_lshl_b32 s{S_T0}, s{S_B}, 1
s_and_b32 s{S_T1}, s{HW}, 1
s_add_u32 s{S_T0}, s{S_T0}, s{S_T1}
s_lshl_b32 s{S_T0}, s{S_T0}, 16
s_lshl_b32 s{S_T1}, s{S_BR}, 10
s_add_u32 s{S_T0}, s{S_T0}, s{S_T1}
s_lshl_b32 s{S_T1}, s{S_D}, 6
s_add_u32 s{S_T0}, s{S_T0}, s{S_T1}
s_lshr_b32 s{S_T1}, s{HW}, 1
s_lshl_b32 s{S_T1}, s{S_T1}, 4
s_add_u32 s{S_T0}, s{S_T0}, s{S_T1}""")
        e.v(f"v_lshl_add_u32 v{H_OUT}, v22, 11, s{S_T0}")
        e.v(f"v_lshrrev_b32 v22, 5, v{L}")
        e.v(f"v_lshl_add_u32 v{H_OUT}, v22, 5, v{H_OUT}")
        e.v(f"v_and_b32 v{H_T}, 3, v{L}")
        e.v(f"v_lshlrev_b32 v{H_T}, 13, v{H_T}")
        e.v(f"v_add_u32 v{H_T}, {KR}, v{H_T}")
        for it in first[nfirst:]: self.issue(it)
        self.stamp("h", "issued0")
        waited = -1; self.prepolled = False
        for n, bn in enumerate(self.bars):
            lastneed = max([it["last"] for it in self.items.values() if it["need"] <= n and "last" in it] + [-1])
            assert all("last" in it for it in self.items.values() if it["need"] <= n)
            if lastneed > waited and not c["nodma"]:
                e.vmcnt(self.hseq - 1 - lastneed); waited = lastneed
            if e.pend: e.lgkm(0)
            if bn in ("B1_0", "B1_8", "BK_0", "BK_8", "BK_16", "B3_3", "B3_5"): self.stamp("h", "pre" + bn)
            e.barrier()
            if bn == "BX":
                e.ds32(22, H_T)
                e.v("v_cmp_eq_u32 vcc, -1, v22")
                e.s(f"s_cbranch_vccnz L_hslow")
                e.label("L_hgo")
            for it in self.sched[n]: self.issue(it)
            if bn == f"B3_{c['PREPOLL']}" and not c["nodma"]:
                e.bload("buffer_load_dword", 22, 1, H_F, SRD_WS, "0", flags="sc1")
                self.hseq += 1; self.prepolled = True
            for it in self.items.values():
                if "reg" in it and it["need"] == n:
                    for j in range(4):
                        a = it["lds"] + 1024 * j
                        e.ds_write("ds_write_b128", H_W + (a >> 16), it["reg"] + 4 * j, 4, a & 0xffff)
            if bn == "B1_9":
                e.s("s_branch L_h2"); e.raw(".p2align 12\nL_pg1:\n;@PAGED\n;@MARK"); e.label("L_h2")
        OWNA = H_T
        e.s(f"""s_and_b32 s{S_T2}, s{S_WAVE}, 1
s_and_b32 s{S_CX}, s{S_D}, 1
s_xor_b32 s{S_CX}, s{S_CX}, 1
s_lshl_b32 s{S_CQ}, s{S_CX}, 1
s_add_u32 s{S_CQ}, s{S_CQ}, 28
s_lshl_b32 s{S_CQ}, 1, s{S_CQ}
s_lshl_b32 s{S_CX}, s{S_CX}, 12
s_add_u32 s{S_CX}, s{S_CX}, {14*4096}
s_sub_u32 s{S_T0}, s{S_WAVE}, 4
s_lshr_b32 s{S_T0}, s{S_T0}, 1
s_lshl_b32 s{S_T0}, s{S_T0}, 11
s_lshl_b32 s{S_T1}, s{S_T2}, 12
s_add_u32 s{S_T0}, s{S_T0}, s{S_T1}
s_add_u32 s{S_T0}, s{S_T0}, {VR}""")
        e.v(f"v_lshl_add_u32 v{OWNA}, v{L}, 4, s{S_T0}")
        first_acc = [True]
        def accum(k):
            dst = H_ACC if first_acc[0] else H_TMP
            for j in range(4):
                e.v(f"v_lshlrev_b32 v{dst+2*j}, 16, v{H_BUF+4*k+j}")
                e.v(f"v_and_b32 v{dst+2*j+1}, 0xffff0000, v{H_BUF+4*k+j}")
            if not first_acc[0]:
                for j in range(4):
                    e.v(f"v_pk_add_f32 v[{H_ACC+2*j}:{H_ACC+2*j+1}], v[{H_ACC+2*j}:{H_ACC+2*j+1}], v[{H_TMP+2*j}:{H_TMP+2*j+1}]")
            first_acc[0] = False
        prev = []
        e.s(f"s_mov_b32 s{S_CNT}, 0")
        if not self.prepolled:
            e.bload("buffer_load_dword", 22, 1, H_F, SRD_WS, "0", flags="sc1")
        e.vmcnt(0)
        e.v("v_cmp_eq_u32 vcc, 1, v22")
        for r, steps in enumerate(c["rounds"]):
            mask = sum(5 << (4 * i) for i in steps if i < 7)
            e.s(f"s_mov_b32 s{S_CKV}, {mask:#x}")
            if 7 in steps: e.s(f"s_or_b32 s{S_CKV}, s{S_CKV}, s{S_CQ}")
            e.s(f"s_lshl_b32 s{S_CKV}, s{S_CKV}, s{S_T2}")
            e.label(f"L_poll{r}")
            e.s(f"s_and_b32 s{S_T0}, vcc_lo, s{S_CKV}\ns_cmp_eq_u32 s{S_T0}, s{S_CKV}\ns_cbranch_scc1 L_got{r}")
            e.bload("buffer_load_dword", 22, 1, H_F, SRD_WS, "0", flags="sc1")
            e.s(f"s_add_u32 s{S_CNT}, s{S_CNT}, 1")
            e.vmcnt(0)
            e.v("v_cmp_eq_u32 vcc, 1, v22")
            e.s(f"s_cmp_lt_u32 s{S_CNT}, 0x40000\ns_cbranch_scc1 L_poll{r}")
            e.label(f"L_got{r}"); e.hist = []
            if 0 in steps or 3 in steps or 5 in steps or 7 in steps: self.stamp("h", f"got{r}")
            for i in steps:
                for p in range(1 if i == 7 else 2):
                    k = 2 * i + p
                    if i == 7: so = f"s{S_CX}"
                    elif k == 0: so = "0"
                    else:
                        e.s(f"s_mov_b32 s{S_T0}, {k*4096}"); so = f"s{S_T0}"
                    e.bload("buffer_load_dwordx4", H_BUF + 4 * k, 4, H_G, SRD_WS, so, flags="sc1")
                    prev.append(k)
        nearly = len(prev) - 3
        for n, k in enumerate(prev[:nearly]):
            e.vmcnt(len(prev) - 1 - n); accum(k)
        prev = prev[nearly:]
        e.barrier()
        e.ds128(H_BUF + 60, OWNA, 0); e.ds128(H_BUF + 64, OWNA, 1024)
        for j in range(4):
            e.v(f"v_pk_add_f32 v[{H_ACC+2*j}:{H_ACC+2*j+1}], v[{H_ACC+2*j}:{H_ACC+2*j+1}], v[{H_BUF+60+2*j}:{H_BUF+61+2*j}]")
        for n, k in enumerate(prev):
            e.vmcnt(len(prev) - 1 - n); accum(k)
        for j in range(4): e.v(f"v_cvt_pk_bf16_f32 v{H_TMP+j}, v{H_ACC+2*j}, v{H_ACC+2*j+1}")
        e.bstore("buffer_store_dwordx4", H_TMP, 4, H_OUT, SRD_OUT, "0", flags=c["fout"])
        self.stamp("h", "stored")
        if c["stamp"]:
            e.vmcnt(0); self.stamp("h", "end")
        self.write_stamps("h")
        e.other("s_endpgm")
        e.label("L_hslow"); e.hist = []
        e.barrier()
        e.barrier()
        e.s("s_branch L_hgo")

    def wsoff(self):
        if self.c["wsoff"]:
            self.e.s(f"s_add_u32 s{SRD_WS}, s{SRD_WS}, {self.c['wsoff'] << 20}\ns_addc_u32 s{SRD_WS+1}, s{SRD_WS+1}, 0")

    def issue(self, it):
        e, c = self.e, self.c
        n = it["name"]; k = n[0]
        if c["nodma"]:
            cnt = 0
        elif k == "x":
            e.s(f"s_add_u32 m0, s{S_M2}, {it['lds']}")
            e.dma(H_X, SRD_X, f"s{S_CX}", 0, c["fx"]); e.dma(H_X + 1, SRD_X, f"s{S_CX}", 1024, c["fx"])
            if n != "x7": e.s(f"s_add_u32 s{S_CX}, s{S_CX}, 128\ns_and_b32 s{S_CX}, s{S_CX}, 0x3ff")
            cnt = 2
        elif k == "q":
            e.s(f"s_add_u32 m0, s{S_M4}, {it['lds']}")
            for j in range(4): e.dma(H_Q + j, SRD_WQ, f"s{S_CQ}", 1024 * j, c["fq"])
            if n != "q15": e.s(f"s_add_u32 s{S_CQ}, s{S_CQ}, 0x40000\ns_and_b32 s{S_CQ}, s{S_CQ}, 0x3fffff")
            cnt = 4
        elif k in "kv":
            j = int(n[1:])
            e.s(f"s_add_u32 m0, s{S_M2}, {it['lds']}\ns_mov_b32 s{S_CKV}, {j*8192}")
            if k == "k":
                e.dma(H_K, SRD_K, f"s{S_CKV}", 0, c["fk"]); e.dma(H_K + 1, SRD_K, f"s{S_CKV}", 1024, c["fk"])
            else:
                e.dma(H_V, SRD_V, f"s{S_CKV}", 0, c["fv"]); e.dma(H_V, SRD_V, f"s{S_CKV}", 1024, c["fv"])
            cnt = 2
        else:
            if "reg" not in it: e.s(f"s_add_u32 m0, s{S_M4}, {it['lds']}")
            if n[2] == "a":
                e.s(f"s_add_u32 s{S_CO}, s{S_R3}, {n[1]}\ns_and_b32 s{S_CO}, s{S_CO}, 7\ns_lshl_b32 s{S_CO}, s{S_CO}, 7")
            else: e.s(f"s_add_u32 s{S_CO}, s{S_CO}, 0x20000")
            for j in range(4):
                if "reg" in it: e.bload("buffer_load_dwordx4", it["reg"] + 4 * j, 4, H_O + j, SRD_WO, f"s{S_CO}", 1024 * j, c["fo"])
                else:
                    if c["PACE3"] is not None and int(n[1]) >= 3: e.vmcnt(c["PACE3"])
                    e.dma(H_O + j, SRD_WO, f"s{S_CO}", 1024 * j, c["fo"])
            cnt = 4
        self.hseq += cnt
        it["last"] = self.hseq - 1

    def wave0_only(self, fn, tag, sreg=S_WAVE):
        e = self.e
        e.s(f"s_cmp_lg_u32 s{sreg}, 0\ns_cbranch_scc1 L_w0_{tag}")
        h0 = len(e.out); mark = list(e.hist)
        fn()
        blk = [i for i in e.hist if i not in mark]
        for i in blk: i.states = 0
        e.label(f"L_w0_{tag}")

    def compute_setup(self):
        e, c = self.e, self.c
        L = V_LANE
        if c["prio_c"]: e.other(f"s_setprio {c['prio_c']}")
        if c["l2pf"]:
            e.other("s_getpc_b64 s[92:93]")
            e.s(f"s_and_b32 s92, s92, 0xfffff000\ns_mov_b32 s94, L_end-L_pg1+4096\ns_mov_b32 s95, 0x20000\ns_lshr_b32 s{S_T0}, s2, 3\ns_lshl_b32 s{S_T0}, s{S_T0}, 10")
            e.v(f"v_lshlrev_b32 v48, 7, v{L}")
            e.v(f"v_lshrrev_b32 v49, 3, v{L}")
            e.v(f"v_lshl_or_b32 v48, v49, 28, v48")
            self.wave0_only(lambda: e.bload("buffer_load_dword", 242, 1, 48, 92, f"s{S_T0}"), "pf")
        MB, HH = S_T0, S_T1
        e.s(f"s_and_b32 s{MB}, s{S_WAVE}, 1\ns_lshr_b32 s{HH}, s{S_WAVE}, 1")
        h, rr, g, c0, c1, l32, a, b = 48, 49, 50, 51, 52, 53, 54, 55
        e.v(f"v_lshrrev_b32 v{h}, 5, v{L}")
        e.v(f"v_bfe_u32 v{rr}, v{L}, 2, 2")
        e.v(f"v_bfe_u32 v{g}, v{L}, 4, 1")
        e.v(f"v_and_b32 v{c0}, 1, v{L}")
        e.v(f"v_bfe_u32 v{c1}, v{L}, 1, 1")
        e.v(f"v_and_b32 v{l32}, 31, v{L}")
        e.v(f"v_lshl_add_u32 v{a}, v{h}, 3, v{rr}")
        e.v(f"v_lshlrev_b32 v{a}, 9, v{a}")
        e.s(f"s_lshl_b32 s{S_T2}, s{HH}, 8")
        e.v(f"v_lshl_add_u32 v{a}, v{g}, 5, v{a}")
        e.v(f"v_lshl_add_u32 v{a}, v{c0}, 4, v{a}")
        e.v(f"v_lshl_add_u32 v{a}, v{c1}, 3, v{a}")
        e.v(f"v_add_u32 v{a}, s{S_T2}, v{a}")
        e.v(f"v_lshl_add_u32 v{A_WQ}, v{rr}, 6, v{a}")
        for t in range(1, 4): e.v(f"v_xor_b32 v{A_WQ+t}, {t<<6}, v{A_WQ}")
        for t in range(4): e.v(f"v_add_u32 v{A_WQ+4+t}, 0x10000, v{A_WQ+t}")
        e.s(f"s_lshl_b32 s{S_T2}, s{MB}, 12\ns_add_u32 s{S_T2}, s{S_T2}, {KR}")
        e.v(f"v_lshl_add_u32 v{a}, v{l32}, 7, s{S_T2}")
        e.v(f"v_bfe_u32 v{b}, v{L}, 1, 3")
        e.v(f"v_xor_b32 v{b}, v{b}, v{h}")
        e.v(f"v_lshl_add_u32 v{A_X}, v{b}, 4, v{a}")
        for s in range(1, 4): e.v(f"v_xor_b32 v{A_X+s}, {s<<5}, v{A_X}")
        e.v(f"v_lshlrev_b32 v{a}, 8, v{l32}")
        e.v(f"v_add_u32 v{a}, {KR}, v{a}")
        e.v(f"v_and_b32 v{b}, 15, v{L}")
        e.v(f"v_xor_b32 v{b}, v{b}, v{h}")
        e.v(f"v_lshl_add_u32 v{A_K}, v{b}, 4, v{a}")
        for s in range(1, 8): e.v(f"v_xor_b32 v{A_K+s}, {s<<5}, v{A_K}")
        e.v(f"v_lshl_add_u32 v{a}, v{h}, 2, v{rr}")
        e.v(f"v_lshlrev_b32 v{b}, 8, v{a}")
        e.v(f"v_add_u32 v{b}, {VR}, v{b}")
        e.v(f"v_lshl_add_u32 v{b}, v{g}, 5, v{b}")
        e.v(f"v_lshl_add_u32 v{b}, v{c1}, 4, v{b}")
        e.v(f"v_lshl_add_u32 v{b}, v{c0}, 3, v{b}")
        e.v(f"v_lshl_add_u32 v{A_V}, v{rr}, 6, v{b}")
        for t in range(1, 4): e.v(f"v_xor_b32 v{A_V+t}, {t<<6}, v{A_V}")
        e.v(f"v_lshlrev_b32 v{a}, 7, v{a}")
        e.v(f"v_lshl_add_u32 v{a}, v{c0}, 5, v{a}")
        e.v(f"v_lshl_add_u32 v{a}, v{g}, 4, v{a}")
        e.v(f"v_lshl_add_u32 v{a}, v{c1}, 3, v{a}")
        e.v(f"v_lshrrev_b32 v{b}, 1, v{rr}")
        e.v(f"v_xor_b32 v{b}, s{HH}, v{b}")
        e.v(f"v_lshl_add_u32 v{a}, v{b}, 6, v{a}")
        e.s(f"s_lshl_b32 s{S_T2}, s{HH}, 14")
        e.v(f"v_add_u32 v{A_WO}, s{S_T2}, v{a}")
        e.v(f"v_xor_b32 v{A_WO+1}, 0x4000, v{A_WO}")
        for w in (1, 2):
            e.v(f"v_add_u32 v{A_WO+2*w}, {w*0x10000}, v{A_WO}")
            e.v(f"v_add_u32 v{A_WO+2*w+1}, {w*0x10000}, v{A_WO+1}")
        e.s(f"s_lshl_b32 s{S_T2}, s{S_WAVE}, 13\ns_add_u32 s{S_T2}, s{S_T2}, {KR}")
        e.v(f"v_lshl_add_u32 v{V_XW}, v{L}, 4, s{S_T2}")
        e.v(f"v_xor_b32 v{V_XR}, 0x4000, v{V_XW}")
        e.s(f"""s_lshl_b32 s{S_T2}, s{S_GRP}, 20
s_lshl_b32 s{S_T3}, s{HH}, 16
s_add_u32 s{S_T2}, s{S_T2}, s{S_T3}
s_and_b32 s{S_T3}, s{S_D}, 1
s_lshl_b32 s{S_T3}, s{S_T3}, 12
s_add_u32 s{S_T2}, s{S_T2}, s{S_T3}
s_lshl_b32 s{S_T3}, s{MB}, 11
s_add_u32 s{S_T2}, s{S_T2}, s{S_T3}""")
        e.v(f"v_lshl_add_u32 v{V_PUB}, v{L}, 4, s{S_T2}")
        e.s(f"""s_lshl_b32 s{S_T2}, s{S_GRP}, 4
s_add_u32 s{S_T2}, s{S_T2}, s{HH}
s_lshl_b32 s{S_T2}, s{S_T2}, 5
s_and_b32 s{S_T3}, s{S_D}, 1
s_lshl_b32 s{S_T3}, s{S_T3}, 1
s_add_u32 s{S_T2}, s{S_T2}, s{S_T3}
s_add_u32 s{S_T2}, s{S_T2}, s{MB}
s_lshl_b32 s{S_T2}, s{S_T2}, 2
s_add_u32 s{S_T2}, s{S_T2}, {WS_F}""")
        e.v(f"v_min_u32 v{a}, 1, v{L}")
        e.v(f"v_lshlrev_b32 v{a}, 31, v{a}")
        e.v(f"v_add_u32 v{V_FLG}, s{S_T2}, v{a}")
        e.s(f"s_lshl_b32 s{S_T2}, s{S_GRP}, 4")
        e.v(f"v_add_u32 v{V_RDY}, s{S_T2}, v{a}")
        e.v(f"v_mov_b32 v{V_ONE}, 1")
        e.v(f"v_mov_b32 v{V_L0}, 0"); e.v(f"v_mov_b32 v{V_L1}, 0")
        for r in range(16): e.v(f"v_mov_b32 v{CT+r}, 0")
        sc = f2u(math.log2(math.e) / math.sqrt(128.0))
        e.s(f"s_mov_b32 s{S_SC}, {sc:#x}\ns_mov_b32 s{S_SC+1}, {sc:#x}\ns_mov_b32 s{S_FIN}, 0")
        e.s(f"""s_lshl_b32 s{S_T2}, s{S_GRP}, 11
s_add_u32 s{S_T2}, s{S_T2}, {WS_F}
s_or_b32 s{S_CLR}, s{S_WAVE}, s{S_HP}""")
        e.v(f"v_lshl_add_u32 v{T0}, v{L}, 4, s{S_T2}")
        e.other("s_waitcnt lgkmcnt(0)")
        self.wsoff()
        def clr():
            e.bstore("buffer_store_dwordx4", CT, 4, T0, SRD_WS, "0", flags="sc1")
            e.bstore("buffer_store_dwordx4", CT, 4, T0, SRD_WS, "0", 1024, flags="sc1")
        self.wave0_only(clr, "clr", S_CLR)
        if c["tlbpf"]:
            def tl():
                e.s(f"""s_lshr_b32 s{S_T2}, s{S_HP}, 1
s_lshl_b32 s{S_T3}, s{S_B}, 3
s_add_u32 s{S_T2}, s{S_T2}, s{S_T3}
s_lshl_b32 s{S_T2}, s{S_T2}, 17
s_lshl_b32 s{S_T3}, s{S_HP}, 18""")
                e.v(f"v_min_u32 v{T0+1}, 1, v{L}")
                e.v(f"v_lshlrev_b32 v{T0+1}, 31, v{T0+1}")
                e.bload("buffer_load_dword", 243, 1, T0 + 1, SRD_K, f"s{S_T2}")
                e.bload("buffer_load_dword", 243, 1, T0 + 1, SRD_V, f"s{S_T2}")
                e.bload("buffer_load_dword", 243, 1, T0 + 1, SRD_WO, f"s{S_T3}")
                e.s(f"s_lshl_b32 s{S_T2}, s{S_GRP}, 20\ns_lshl_b32 s{S_T3}, s{S_B}, 17")
                e.bload("buffer_load_dword", 243, 1, T0 + 1, SRD_WS, f"s{S_T2}")
                e.bload("buffer_load_dword", 243, 1, T0 + 1, SRD_OUT, f"s{S_T3}")
                e.s(f"s_mov_b32 s{S_T2}, {WS_F + 0x10000}")
                e.bload("buffer_load_dword", 243, 1, T0 + 1, SRD_WS, f"s{S_T2}")
            e.s(f"s_xor_b32 s{S_CNT}, s{S_WAVE}, 1")
            self.wave0_only(tl, "tlb", S_CNT)

    def dump(self, base, n, tag):
        e = self.e
        e.nop(12)
        e.s(f"s_lshl_b32 s{S_T0}, s2, 2\ns_add_u32 s{S_T0}, s{S_T0}, s{S_WAVE}\ns_mul_i32 s{S_T0}, s{S_T0}, {n*256}\ns_add_u32 s{S_T0}, s{S_T0}, {18<<20}")
        e.v(f"v_lshlrev_b32 v{T0+1}, 2, v{V_LANE}")
        for r in range(n):
            if r and r % 16 == 0: e.s(f"s_add_u32 s{S_T0}, s{S_T0}, 4096")
            e.bstore("buffer_store_dword", base + r, 1, T0 + 1, SRD_WS, f"s{S_T0}", (r % 16) * 256)
        e.vmcnt(0)

    def run_mfmas(self, M, fill, pre):
        e = self.e
        for g, (d, a, b, cc) in enumerate(M):
            for f in pre.get(g, []): f()
            if self.c["WAIT2"] and g % 2 == 0 and g + 1 < len(M):
                e.wait_regs(R(a, 4) | R(b, 4) | R(M[g + 1][1], 4))
            e.mfma(d, a, b, cc)
            for f in fill.get(g, []): f()

    def compute(self):
        e, c = self.e, self.c
        LEAD, NF = c["LEAD"], c["NF"]
        e.raw(".p2align 12\n;@PAGED")
        e.label("L_compute"); e.hist = []
        self.stamp("c", "setup")
        fr = lambda g: FR + 4 * (g % NF)
        M = []; reads = {}; bar = {}
        for kt in range(16):
            slot = self.items[f"q{kt}"]["lds"]
            win, so = (0, slot) if slot < 65536 else (4, slot - 65536)
            for s2 in range(2):
                st = kt * 2 + s2
                xb = XB + 4 * (st % 3)
                for t in range(4):
                    g = len(M)
                    M.append((ACC + 16 * t, fr(g), xb, None if st == 0 else ACC + 16 * t))
                    rl = []
                    if t == 0:
                        xo = self.items[f"x{kt//2}"]["lds"] - KR
                        rl.append(lambda xb=xb, s=st % 4, xo=xo: e.ds128(xb, A_X + s, xo))
                    o = so + s2 * 8192
                    rl.append(lambda d=fr(g), t=t, o=o, win=win: e.dstr(d, A_WQ + win + t, o))
                    rl.append(lambda d=fr(g), t=t, o=o, win=win: e.dstr(d + 2, A_WQ + win + t, o + 2048))
                    reads[g] = rl
            bar[kt * 8] = f"B1_{kt}"
        fill = {}; pre = {}
        def place(reads, bar, n, fill, head):
            for g in range(n):
                ops = []
                if g in bar:
                    def fb(nm=bar[g]):
                        if nm in ("B1_0", "B1_8", "BK_1", "BK_8", "BK_16", "B3_1", "B3_3", "B3_5"): self.stamp("c", "pre" + nm)
                        e.barrier()
                        if nm in ("B1_0", "BK_0"): self.stamp("c", "post" + nm)
                    ops.append(fb)
                ops += reads.get(g, [])
                if g < LEAD: head += ops
                else: fill.setdefault(g - LEAD, []).extend(ops)
        head = []
        place(reads, bar, len(M), fill, head)
        fill.setdefault(8 * c["TPOS"], []).append(lambda: e.raw(";@TOUCH2"))
        def arrive():
            e.vmcnt(0)
            e.bstore("buffer_store_dword", V_ONE, 1, V_RDY, SRD_DBG, "0", flags="sc1")
        fill.setdefault(41, []).append(lambda: self.wave0_only(arrive, "arr", S_CLR))
        for f in head: f()
        self.run_mfmas(M, fill, pre)
        self.stamp("c", "P1end")
        M = []; reads = {}; bar = {}
        def addQK(j):
            bar[len(M)] = f"BK_{j}"
            so = self.items[f"k{j}"]["lds"] - KR
            for s in range(8):
                g = len(M); S = SS + 16 * (j % 2)
                M.append((S, fr(g), QP + 4 * s, CT if s == 0 else S))
                reads[g] = [lambda d=fr(g), s=s, so=so: e.ds128(d, A_K + s, so)]
        def addPV(j):
            so = self.items[f"v{j}"]["lds"] - VR
            for u in range(2):
                for t in range(4):
                    g = len(M)
                    M.append((ACC + 16 * t, fr(g), PP + 4 * u, None if (j == 0 and u == 0) else ACC + 16 * t))
                    o = so + u * 4096
                    reads[g] = [lambda d=fr(g), t=t, o=o: e.dstr(d, A_V + t, o),
                                lambda d=fr(g), t=t, o=o: e.dstr(d + 2, A_V + t, o + 2048)]
        addQK(0)
        for j in range(15): addQK(j + 1); addPV(j)
        bar[len(M)] = "BK_16"
        addPV(15)
        fill = {}; pre = {}; head = []
        place(reads, bar, len(M), fill, head)
        def ex(j, r): return lambda: e.v(f"v_exp_f32 v{SS+16*(j%2)+r}, v{SS+16*(j%2)+r}")
        def cv(j, k): return lambda: e.v(f"v_cvt_pk_bf16_f32 v{PP+k}, v{SS+16*(j%2)+2*k}, v{SS+16*(j%2)+2*k+1}")
        def ad(j, r): return lambda: e.v(f"v_add_f32 v{V_L0+(r%2)}, v{V_L0+(r%2)}, v{SS+16*(j%2)+r}")
        TAB = c.get("tab") or ["e0 e1", "e2 e3", "e4 e5", "e6 c0 c1", "e7 c2", "e8 c3 a0", "e9 a1", "e10 c4 a2",
                               "e11 e12", "e13 c5 a3", "e14 e15", "<c6 <c7 a4 a5", "a6 a7 a8", "a9 a10 a11", "a12 a13 a14", "a15"]
        def put(j, g, spec, tgt=None):
            front = []
            for tok in spec.split():
                first = tok[0] == "<"
                if first: tok = tok[1:]
                f = {"e": ex, "c": cv, "a": ad}[tok[0]](j, int(tok[1:]))
                if first: front.append(f)
                else: fill.setdefault(g, []).append(f)
            fill[g] = front + fill.get(g, [])
        for j in range(15):
            for k in range(16): put(j, 8 + 16 * j + k, TAB[k])
        g0 = 8 + 16 * 15
        put(15, g0 - 1, "e0 e1 e2 e3 c0 e4 e5 c1 e6 e7 c2 c3")
        for k, sp in enumerate(["e8 e9 a0", "e10 e11 c4", "e12 e13 c5", "<e14 <e15 <c6 <c7", "a1 a2 a3 a4", "a5 a6 a7 a8", "a9 a10 a11 a12", "a13 a14 a15"]):
            put(15, g0 + k, sp)
        def rdyload(): e.bload("buffer_load_dword", T0 + 2, 1, V_RDY, SRD_DBG, "0", flags="sc1")
        fill.setdefault(8 + 16 * 11 + 15, []).append(lambda: self.wave0_only(rdyload, "rl"))
        for t in range(4):
            if t == 3:
                for f in head: f()
            for k in range(8):
                r = ACC + 16 * t + 2 * k
                e.v(f"v_pk_mul_f32 v[{r}:{r+1}], v[{r}:{r+1}], s[{S_SC}:{S_SC+1}]")
            for k in range(8):
                r = ACC + 16 * t + 2 * k
                e.v(f"v_cvt_pk_bf16_f32 v{QP+8*t+k}, v{r}, v{r+1}")
        if c["dump"] == "q": self.dump(QP, 32, "q")
        self.stamp("c", "P2start")
        self.run_mfmas(M, fill, pre)
        self.stamp("c", "P2end")
        M = []; reads = {}; bar = {}
        for i in range(8):
            slot = WOSLOT[i]; win = slot >> 16; so = slot & 0xffff
            if 1 <= i <= c["NB3"]: bar[len(M)] = f"B3_{i}"
            for hs in range(2):
                for k in range(8):
                    g = len(M); A3 = AC3 + 16 * (i % 2)
                    M.append((A3, fr(g), (OWN if hs == 0 else OTH) + 4 * k, None if (hs == 0 and k == 0) else A3))
                    o = so + k * 2048
                    reads[g] = [lambda d=fr(g), o=o, a=A_WO + 2 * win + hs: e.dstr(d, a, o),
                                lambda d=fr(g), o=o, a=A_WO + 2 * win + hs: e.dstr(d + 2, a, o + 1024)]
        fill = {}; pre = {}; head = []
        place(reads, bar, len(M), fill, head)
        e.lgkm(0)
        e.label("L_norm")
        for f in head: f()
        l, t1, t2 = V_L0, T0, T0 + 1
        e.v(f"v_add_f32 v{l}, v{V_L0}, v{V_L1}")
        e.v(f"v_mov_b32 v{t1}, v{l}")
        e.v(f"v_permlane32_swap_b32 v{l}, v{t1}")
        e.v(f"v_add_f32 v{l}, v{l}, v{t1}")
        e.v(f"v_rcp_f32 v{t2+1+1}, v{l}")
        RC = T0 + 4
        e.v(f"v_mov_b32 v{RC}, v{T0+3}"); e.v(f"v_mov_b32 v{RC+1}, v{T0+3}")
        e.s(f"s_mov_b32 s{S_T0}, {f2u(2.0**-30):#x}\ns_mov_b32 s{S_T1}, {f2u(2.0**30):#x}")
        e.v(f"v_cmp_nle_f32 vcc, s{S_T0}, v{l}")
        e.v(f"v_cmp_nge_f32 s[{56}:{57}], s{S_T1}, v{l}")
        for t in range(4):
            for k in range(8):
                r = ACC + 16 * t + 2 * k
                e.v(f"v_pk_mul_f32 v[{r}:{r+1}], v[{r}:{r+1}], v[{RC}:{RC+1}]")
            for k in range(8):
                r = ACC + 16 * t + 2 * k
                e.v(f"v_cvt_pk_bf16_f32 v{OWN+8*t+k}, v{r}, v{r+1}")
            if t == 0:
                e.s(f"s_or_b64 vcc, vcc, s[56:57]\ns_cmp_lg_u32 s{S_FIN}, 0\ns_cbranch_scc1 L_novote\ns_cbranch_vccz L_novote")
                mark = list(e.hist)
                e.v(f"v_mov_b32 v{OWN}, -1")
                for i in e.hist:
                    if i not in mark: i.states = 0
                e.label("L_novote")
                e.lgkm(0)
            e.ds_write("ds_write_b128", V_XW, OWN + 8 * t, 4, 2048 * t)
            e.ds_write("ds_write_b128", V_XW, OWN + 8 * t + 4, 4, 2048 * t + 1024)
        if c["dump"] == "o": self.dump(OWN, 32, "o")
        def rdy():
            e.label("L_rdy"); e.vmcnt(0)
            e.v(f"v_readfirstlane_b32 s{S_T0}, v{T0+2}")
            e.s(f"s_cmp_eq_u32 s{S_T0}, 1\ns_cbranch_scc1 L_rdyok")
            e.bload("buffer_load_dword", T0 + 2, 1, V_RDY, SRD_DBG, "0", flags="sc1")
            e.s(f"s_add_u32 s{S_CNT}, s{S_CNT}, 1\ns_cmp_lt_u32 s{S_CNT}, 0x40000\ns_cbranch_scc1 L_rdy")
            e.label("L_rdyok")
        e.s(f"s_mov_b32 s{S_CNT}, 0")
        self.wave0_only(rdy, "rdy")
        e.v(f"v_and_b32 v{t1}, 3, v{V_LANE}")
        e.v(f"v_lshlrev_b32 v{t1}, 13, v{t1}")
        e.v(f"v_add_u32 v{t1}, {KR}, v{t1}")
        e.lgkm(0)
        self.stamp("c", "preBX")
        e.barrier()
        self.stamp("c", "postBX")
        e.ds32(t2, t1)
        for k in range(8):
            fill.setdefault(k, []).append(lambda k=k: e.ds128(OTH + 4 * k, V_XR, 1024 * k))
        def vote():
            e.v(f"v_cmp_eq_u32 vcc, -1, v{t2}")
            e.s(f"s_cmp_lg_u32 s{S_FIN}, 0\ns_cbranch_scc1 L_voted\ns_cbranch_vccnz L_slow")
            e.label("L_voted")
        fill[1] = [vote] + fill.get(1, [])
        FL = c["FLAGLAG"]
        vseq = []
        def pub_cvt(i, k): return lambda: e.v(f"v_cvt_pk_bf16_f32 v{PK+8*(i%2)+k}, v{AC3+16*(i%2)+2*k}, v{AC3+16*(i%2)+2*k+1}")
        def pub_so(i):
            def f():
                e.s(f"s_add_u32 s{S_T0}, s{S_R3}, {i}\ns_and_b32 s{S_T0}, s{S_T0}, 7\ns_lshl_b32 s{S_T1}, s{S_T0}, 17")
                if i: e.s(f"s_add_u32 s{S_T1}, s{S_T1}, {i*8192}")
            return f
        def pub_st(i, q):
            def f():
                if c["nopub"]:
                    vseq.append(("S", i)); return
                e.bstore("buffer_store_dwordx4", PK + 8 * (i % 2) + 4 * q, 4, V_PUB, SRD_WS, f"s{S_T1}", 1024 * q, flags="sc1")
                vseq.append(("S", i))
            return f
        def pub_flag(i):
            def f():
                e.s(f"s_add_u32 s{S_T2}, s{S_R3}, {i}\ns_and_b32 s{S_T2}, s{S_T2}, 7\ns_lshl_b32 s{S_T2}, s{S_T2}, 8")
                last = max(n for n, x in enumerate(vseq) if x == ("S", i))
                e.vmcnt(len(vseq) - 1 - last)
                e.bstore("buffer_store_dword", V_ONE, 1, V_FLG, SRD_WS, f"s{S_T2}", 16 * i, flags="sc1")
                vseq.append(("F", i))
            return f
        for i in range(7):
            g = 16 * (i + 1)
            PG = c["PUBG"]
            fill.setdefault(g + PG - 1, []).append(pub_so(i))
            for k in range(8): fill.setdefault(g + PG + k // 2, []).append(pub_cvt(i, k))
            fill.setdefault(g + PG + 2, []).append(pub_st(i, 0))
            fill.setdefault(g + PG + 4, []).append(pub_st(i, 1))
            if i + 1 + FL <= 7: fill.setdefault(16 * (i + 1 + FL) + min(15, PG + 7), []).append(pub_flag(i))
        self.run_mfmas(M, fill, pre)
        self.stamp("c", "P3end")
        e.s(f"s_and_b32 s{S_T0}, s{S_D}, 1\ns_lshr_b32 s{S_T1}, s{S_WAVE}, 1\ns_cmp_eq_u32 s{S_T0}, s{S_T1}\ns_cbranch_scc1 L_own")
        h0 = list(e.hist); v0 = list(vseq)
        pub_so(7)()
        for k in range(8): pub_cvt(7, k)()
        pub_st(7, 0)(); pub_st(7, 1)()
        for i in range(8):
            if i == 7 or i + 1 + FL > 7: pub_flag(i)()
        e.s("s_branch L_fin")
        e.label("L_own"); e.hist = h0; vseq[:] = v0
        e.s(f"s_and_b32 s{S_T0}, s{S_WAVE}, 1\ns_lshl_b32 s{S_T0}, s{S_T0}, 12\ns_add_u32 s{S_T0}, s{S_T0}, {VR}")
        e.v(f"v_lshl_add_u32 v{T0}, v{V_LANE}, 4, s{S_T0}")
        for p in range(4): e.ds_write("ds_write_b128", T0, AC3 + 16 + 4 * p, 4, 1024 * p)
        for i in range(7):
            if i + 1 + FL > 7: pub_flag(i)()
        e.lgkm(0)
        e.label("L_fin")
        e.barrier()
        self.stamp("c", "flagged")
        self.write_stamps("c")
        e.other("s_endpgm")
        self.slow()

    def slow(self):
        e = self.e
        L = V_LANE
        e.raw(";@UNPAGED")
        e.label("L_slow"); e.hist = []; e.pend = []
        e.other("s_waitcnt vmcnt(0) lgkmcnt(0)"); e.nop(16)
        e.barrier()
        KA, VA, MX, t1 = T0, T0 + 1, T0 + 6, T0 + 7
        e.s(f"""s_mov_b32 s{S_FIN}, 1
s_lshr_b32 s{S_T0}, s{S_HP}, 1
s_lshl_b32 s{S_T1}, s{S_B}, 3
s_add_u32 s{S_T0}, s{S_T0}, s{S_T1}
s_lshl_b32 s{S_T0}, s{S_T0}, 17""")
        e.v(f"v_and_b32 v{t1}, 31, v{L}")
        e.v(f"v_lshrrev_b32 v{MX}, 5, v{L}")
        e.v(f"v_lshlrev_b32 v{KA}, 8, v{t1}")
        e.v(f"v_lshl_add_u32 v{KA}, v{MX}, 4, v{KA}")
        e.v(f"v_add_u32 v{KA}, s{S_T0}, v{KA}")
        e.v(f"v_lshlrev_b32 v{VA}, 10, v{MX}")
        e.v(f"v_lshl_add_u32 v{VA}, v{t1}, 1, v{VA}")
        e.v(f"v_add_u32 v{VA}, s{S_T0}, v{VA}")
        e.v(f"v_mov_b32 v{MX}, 0xff800000")
        def qk(cinit):
            for s in range(8): e.bload("buffer_load_dwordx4", FR + 4 * s, 4, KA, SRD_K, f"s{S_T1}", 32 * s)
            e.vmcnt(0)
            for s in range(8): e.mfma(SS, FR + 4 * s, QP + 4 * s, cinit if s == 0 else SS)
        e.s(f"s_mov_b32 s{S_T1}, 0")
        e.label("L_s1"); e.nop(12)
        qk(None)
        for r in range(0, 16, 2): e.v(f"v_max3_f32 v{MX}, v{MX}, v{SS+r}, v{SS+r+1}")
        e.s(f"s_add_u32 s{S_T1}, s{S_T1}, 8192\ns_cmp_lt_u32 s{S_T1}, 0x20000\ns_cbranch_scc1 L_s1")
        e.v(f"v_mov_b32 v{t1}, v{MX}")
        e.v(f"v_permlane32_swap_b32 v{MX}, v{t1}")
        e.v(f"v_max_f32 v{MX}, v{MX}, v{t1}")
        for r in range(16): e.v(f"v_sub_f32 v{CT+r}, 0, v{MX}")
        for r in range(64): e.v(f"v_mov_b32 v{ACC+r}, 0")
        e.v(f"v_mov_b32 v{V_L0}, 0"); e.v(f"v_mov_b32 v{V_L1}, 0")
        e.s(f"s_mov_b32 s{S_T1}, 0")
        e.label("L_s2"); e.nop(12)
        qk(CT)
        for r in range(16): e.v(f"v_exp_f32 v{SS+r}, v{SS+r}")
        for r in range(16): e.v(f"v_add_f32 v{V_L0}, v{V_L0}, v{SS+r}")
        for k in range(8): e.v(f"v_cvt_pk_bf16_f32 v{PP+k}, v{SS+2*k}, v{SS+2*k+1}")
        for u in range(2):
            e.s(f"s_add_u32 s{S_T2}, s{S_T1}, {u*4096}")
            for t in range(4):
                for j in range(8):
                    row = 8 * (j // 4) + j % 4
                    op = "buffer_load_short_d16_hi" if j % 2 else "buffer_load_short_d16"
                    e.bload(op, FR + 4 * t + j // 2, 1, VA, SRD_V, f"s{S_T2}", row * 256 + t * 64)
                    if j % 2 == 0: e.vmcnt(0)
            e.vmcnt(0)
            for t in range(4): e.mfma(ACC + 16 * t, FR + 4 * t, PP + 4 * u, ACC + 16 * t)
            e.nop(8)
        e.s(f"s_add_u32 s{S_T1}, s{S_T1}, 8192\ns_cmp_lt_u32 s{S_T1}, 0x20000\ns_cbranch_scc1 L_s2")
        e.nop(16)
        e.v(f"v_mov_b32 v{T0+2}, 1")
        e.s("s_branch L_norm")

    def build(self):
        e = self.e
        self.plan()
        e.raw(f"""; Fused GQA block (two branches), gfx950.  Generated by the author's own generator script.
; @launch grid=(256,1,1) block=(512,1,1) lds={LDS}
.amdgcn_target "amdgcn-amd-amdhsa--gfx950"
.text
.globl {KN}
.p2align 8
.type {KN},@function
{KN}:""")
        self.prologue()
        self.helper()
        self.compute()
        e.label("L_end"); e.other("s_endpgm")
        e.raw(f""".section .rodata,"a"
.p2align 6
.amdhsa_kernel {KN}
  .amdhsa_next_free_vgpr 248
  .amdhsa_next_free_sgpr 102
  .amdhsa_accum_offset 248
  .amdhsa_group_segment_fixed_size 0
  .amdhsa_kernarg_size 104
  .amdhsa_user_sgpr_count 2
  .amdhsa_user_sgpr_kernarg_segment_ptr 1
  .amdhsa_system_sgpr_workgroup_id_x 1
.end_amdhsa_kernel""")
        assert e.maxv < 248
        return self.paginate(e.out)

    def paginate(self, lines):
        import subprocess, re, tempfile, os
        isins = lambda l: l.startswith("    ") and not l.strip().startswith((";", "."))
        with tempfile.TemporaryDirectory() as d:
            open(d + "/a.s", "w").write("\n".join(lines) + "\n")
            subprocess.run(["clang", "-x", "assembler", "-target", "amdgcn-amd-amdhsa", "-mcpu=gfx950", "-c",
                            "-o", d + "/a.o", d + "/a.s".replace("a.s", "a.s")], check=True)
            dis = subprocess.run(["llvm-objdump", "-d", "--mcpu=gfx950", d + "/a.o"], capture_output=True, text=True).stdout
        enc = [(int(m.group(1), 16), len(m.group(2).split()) * 4, m.group(0)) for m in re.finditer(r"// ([0-9A-F]{12}): ((?:[0-9A-F]{8} ?)+)", dis)]
        sizes = []; j = 0; addr = 0
        for l in lines:
            if l.startswith(".p2align 12"):
                addr = (addr + 4095) // 4096 * 4096
                while enc[j][0] < addr: j += 1
            if isins(l):
                assert enc[j][0] == addr, (l, hex(addr), enc[j])
                sizes.append(enc[j][1]); addr += enc[j][1]; j += 1
        n2 = 0
        while True:
            out, nm = self._marks(lines, sizes, isins, n2)
            if nm == n2: break
            n2 = nm
        return self._touches(out, nm)

    def _marks(self, lines, sizes, isins, n2):
        out = []; paged = False; off = 0; nm = 0; k = 0; self.page0 = None; tot = 0
        for l in lines:
            if l == ";@TOUCH2" and n2: off += 8 + 8 * n2
            if l == ";@PAGED":
                paged = True; off = 0
                if self.page0 is None: self.page0 = tot
                continue
            if l == ";@UNPAGED": paged = False; continue
            if l == ";@MARK":
                if self.c["touch"]:
                    nm += 1; out += [f"L_mk{nm}:", f"    s_cbranch_execz L_rt{nm}"]; off += 4
                continue
            if isins(l):
                sz = sizes[k]; k += 1; tot += sz
                if paged and self.c["touch"]:
                    if off % 4096 and off // 4096 != (off + sz - 1) // 4096:
                        out.append("    s_nop 0"); off += 4
                    if off and off % 4096 == 0:
                        nm += 1; out += [f"L_mk{nm}:", f"    s_cbranch_execz L_rt{nm}"]; off += 4
                off += sz
            out.append(l)
        return out, nm

    def _touches(self, out, nm):
        res = []
        for l in out:
            if l in (";@TOUCH1", ";@TOUCH2"):
                ks = list(range(1, nm + 1))
                if not ks: continue
                res.append("    s_mov_b64 exec, 0")
                for n, kk in enumerate(ks):
                    res += [f"    s_cmp_eq_u32 s{S_WAVE}, {n % 4}", f"    s_cbranch_scc1 L_mk{kk}", f"L_rt{kk}:"]
                res.append("    s_mov_b64 exec, -1")
            else: res.append(l)
        assert self.page0 + 80 < 4096 - 768, self.page0
        self.npages = nm
        return "\n".join(res) + "\n"

if __name__ == "__main__":
    kw = eval("dict(%s)" % (sys.argv[2] if len(sys.argv) > 2 else ""))
    g = Gen(**kw)
    t = g.build()
    open(sys.argv[1], "w").write(t)
    print("page0", g.page0, "marks", g.npages, "nops", g.e.nnop, "waits", g.e.nwait, "lines", len(g.e.out))
    for n in range(-1, len(g.bars)):
        print(g.bars[n] if n >= 0 else "start", [i["name"] for i in g.sched[n]])
```

```python
import sys, math, struct
from emit import *

NAME = "concat_heads__gqa_block_cached__gqa_block_cached__near_ridge"
KN = NAME + "_kernel"

def f2u(f): return struct.unpack("<I", struct.pack("<f", f))[0]

DEF = dict(
    NF=8, L1=5, W1=2, L2=7, W2=4, L3=6, W3=2, GX=9,
    r1b=(2, 8), r1h=4,
    r3b=(1, 2),
    fx="", fq="", fk="", fv="", fo="",
    kvpre=16,
    NREG=0, PACE3=None, PUBG=6, PREPOLL=5, wopos=(0, 1, 3, 5, 9, 11),
    prio_c=0, prio_h=0,
    stamp=0, dump=None, FLAGLAG=2, touch=1, NB3=6, rounds=tuple((i,) for i in range(8)), l2pf=1, TPOS=1, PSLEEP=8, fpoll='sc1', fgat='sc1', fpub='sc1', fflag='sc1', tlbpf=1, kvalt=0, kvrot=1, wsoff=0, fout='', CAP=64, pad=None, nodma=0, tab=None, nopub=0,
)

W0 = 0; KR = 98304; VR = 131072; LDS = 163840
XSLOT = [KR, KR + 8192, VR, KR + 16384, VR + 8192, KR + 24576, VR + 16384, VR + 24576]
WOSLOT = [0, 32768, 65536, VR, KR, 0, 32768, 65536]
WS_X = 0
WS_F = 16 << 20
WS_DBG = 17 << 20
WS_SIZE = 32 << 20
S_WAVE, S_BR, S_B, S_HP, S_D = 3, 4, 5, 6, 7
SRD_X, SRD_K, SRD_V, SRD_WQ, SRD_WO, SRD_WS, SRD_OUT, SRD_DBG = 8, 12, 16, 20, 24, 28, 32, 36
S_GRP, S_R1, S_R3, S_T0, S_T1, S_T2, S_T3 = 40, 41, 42, 43, 44, 45, 46
S_CX, S_CQ, S_CKV, S_CO, S_M2, S_M4, S_FIN, S_SC = 47, 48, 49, 50, 51, 52, 53, 54
S_CNT = 56
S_CLR = 100
S_KP, S_KQ, S_KE, S_KF = 96, 97, 98, 99
S_STAMP = 60
V_LANE = 1
A_WQ = 2
A_X = 10
A_K = 14
A_V = 22
A_WO = 26
V_PUB, V_FLG, V_XW, V_XR, V_L0, V_L1 = 32, 33, 34, 35, 36, 37
T0 = 38
FR = 48
XB = 80
PP = 80
QP = 92
ACC = 128
SS = 192
CT = 224
OWN = 192
OTH = 128
AC3A, AC3B = 224, 160
PK = 176
V_ONE, V_RDY = 240, 241
H_X, H_Q, H_K, H_V, H_O = 2, 4, 8, 10, 12
H_G, H_F, H_OUT, H_T = 16, 17, 18, 19
H_ACC = 24
H_TMP = 32
H_BUF = 160
H_REG = 64
H_W = 40


class Gen:
    def __init__(self, **kw):
        self.c = dict(DEF); self.c.update(kw)
        for k in kw: assert k in DEF, k
        self.e = Em()
        self.nst = {"c": 0, "h": 0}
        self.stamp_names = {"c": [], "h": []}

    def stamp(self, who, name):
        if not self.c["stamp"]: return
        k = self.nst[who]; self.nst[who] += 1
        assert k < 19
        self.stamp_names[who].append(name)
        self.e.other(f"{'s_memrealtime' if self.c['stamp'] == 2 else 's_memtime'} s[{S_STAMP+2*k}:{S_STAMP+2*k+1}]")

    def write_stamps(self, who):
        if not self.c["stamp"]: return
        e = self.e
        if self.c["pad"]:
            T, w, nm = self.c["pad"]
            if w == who:
                k = self.stamp_names[who].index(nm)
                e.lgkm(0)
                e.s(f"s_add_u32 s{S_T0}, s{S_STAMP+2*k}, {T//10}")
                e.label(f"L_pad{who}")
                e.other("s_memrealtime s[98:99]"); e.lgkm(0)
                e.s(f"s_sub_u32 s{S_T1}, s98, s{S_T0}\ns_cmp_lt_i32 s{S_T1}, 0\ns_cbranch_scc1 L_pad{who}")
            return
        e.other("s_memrealtime s[98:99]")
        e.lgkm(0)
        e.v("v_mov_b32 v44, 0")
        for k in range(self.nst[who]): e.v(f"v_writelane_b32 v44, s{S_STAMP+2*k}, {k}")
        e.v("v_writelane_b32 v44, s98, 30"); e.v("v_writelane_b32 v44, s58, 31")
        e.v(f"v_lshlrev_b32 v45, 2, v{V_LANE}")
        e.s(f"s_lshl_b32 s{S_T0}, s2, 3\ns_add_u32 s{S_T0}, s{S_T0}, s{S_WAVE}\ns_lshl_b32 s{S_T0}, s{S_T0}, 8\ns_add_u32 s{S_T0}, s{S_T0}, {WS_DBG}")
        e.bstore("buffer_store_dword", 44, 1, 45, SRD_WS, f"s{S_T0}")

    def plan(self):
        c = self.c
        bars = [f"B1_{k}" for k in range(16)] + [f"BK_{k}" for k in range(17)] + ["BX"] + [f"B3_{k}" for k in range(2, c["NB3"] + 1)]
        bi = {n: i for i, n in enumerate(bars)}
        items = {}
        def add(name, lds, after, needed): items[name] = dict(name=name, lds=lds, after=after, need=needed)
        xfree = lambda cc: bi[f"B1_{2*cc+3}"] if cc <= 6 else bi["BK_0"]
        qfree = lambda kt: bi[f"B1_{kt+2}"] if kt <= 13 else bi["BK_0"]
        for cc in range(8): add(f"x{cc}", XSLOT[cc], -1, bi[f"B1_{2*cc}"])
        for kt in range(16): add(f"q{kt}", W0 + (kt % 6) * 16384, -1 if kt < 6 else qfree(kt - 6), bi[f"B1_{kt}"])
        for j in range(16):
            a = KR + (j % 4) * 8192
            add(f"k{j}", a, xfree(XSLOT.index(a)) if j < 4 else bi[f"BK_{max(j-3, 2)}"], bi[f"BK_{j}"])
            a = VR + (j % 4) * 8192
            add(f"v{j}", a, xfree(XSLOT.index(a)) if j < 4 else bi[f"BK_{j-1}"], bi[f"BK_{j+1}"])
        NREG = c["NREG"]
        for i in range(8):
            for hf in range(2):
                a = WOSLOT[i] + hf * 16384
                if i < 3:
                    last = max(kt for kt in range(16) if (kt % 6) * 16384 == a)
                    aft = qfree(last)
                else: aft = bi["BX"] if i == 3 else bi[f"B3_{max(2, i-3)}"]
                if i >= 8 - NREG:
                    add(f"o{i}{'ab'[hf]}", a, -1, aft)
                    items[f"o{i}{'ab'[hf]}"]["reg"] = H_REG + 32 * (i - (8 - NREG)) + 16 * hf
                else:
                    add(f"o{i}{'ab'[hf]}", a, aft, bi["BK_16"] if i <= 1 else bi[f"B3_{min(i, c['NB3'])}"])
        order = []
        kvq = ["k0", "k1", "v0", "k2", "v1", "k3", "v2"]
        for kt in range(16):
            if kt % 2 == 0: order.append(f"x{kt//2}")
            order.append(f"q{kt}")
            if kt + 1 >= c["kvpre"] and kt < 15 and kvq and items[kvq[0]]["after"] <= items[f"q{kt}"]["after"]:
                order.append(kvq.pop(0))
        order += kvq
        wo = [f"o{i}{h}" for i in list(range(3)) + list(range(8 - NREG, 8)) for h in "ab"]
        wp = list(c["wopos"])
        order.append("v3")
        for n in range(0, 16):
            if 4 <= n + 1 <= 15: order.append(f"v{n+1}")
            if n == 2: order.append("k4")
            if 5 <= n + 3 <= 15: order.append(f"k{n+3}")
            while wp and wo and wp[0] <= n:
                nm = wo.pop(0); wp.pop(0)
                items[nm]["after"] = max(items[nm]["after"], bi[f"BK_{n}"])
                order.append(nm)
        order += wo
        order += [f"o{i}{h}" for i in range(3, 8 - NREG) for h in "ab"]
        assert sorted(order) == sorted(items), (set(items) - set(order), len(order), len(items))
        cur = -1
        sched = {i: [] for i in range(-1, len(bars))}
        size = lambda n: 16 if n[0] in "qo" else 8
        issued = []
        nP1 = bi["BK_0"]
        for n in order:
            it = items[n]
            cur = max(cur, it["after"])
            while cur < nP1 and sum(size(m) for m in issued if items[m]["need"] > cur) + size(n) > c["CAP"]:
                cur += 1
            assert cur < it["need"], (n, bars[cur], bars[it["need"]])
            sched[cur].append(it); issued.append(n)
        self.bars, self.bi, self.items, self.sched, self.order = bars, bi, items, sched, order

    def prologue(self):
        e, c = self.e, self.c
        e.s("s_cmp_ge_u32 s2, 256\ns_cbranch_scc1 L_end")
        if c["stamp"]: e.other("s_memrealtime s[58:59]")
        e.s(f"""
s_and_b32 s{S_T0}, s2, 7
s_lshr_b32 s{S_BR}, s{S_T0}, 2
s_mul_i32 s{S_T1}, s{S_BR}, 40
s_add_u32 s{S_T2}, s0, s{S_T1}
s_addc_u32 s{S_T3}, s1, 0""")
        assert S_T3 == S_T2 + 1
        e.s(f"s_mov_b32 s56, s{S_T2}\ns_mov_b32 s57, s{S_T3}")
        for srd, off in ((SRD_X, 0), (SRD_WQ, 24), (SRD_K, 8), (SRD_V, 16), (SRD_WO, 32)):
            e.other(f"s_load_dwordx2 s[{srd}:{srd+1}], s[56:57], {off}")
        for srd, off in ((SRD_OUT, 80), (SRD_DBG, 88), (SRD_WS, 96)):
            e.other(f"s_load_dwordx2 s[{srd}:{srd+1}], s[0:1], {off}")
        self.stamp("c", "start"); self.nst["h"] = self.nst["c"]; self.stamp_names["h"] = list(self.stamp_names["c"])
        e.v(f"v_lshrrev_b32 v2, 6, v0")
        e.v(f"v_and_b32 v{V_LANE}, 63, v0")
        e.v(f"v_readfirstlane_b32 s{S_WAVE}, v2")
        for srd, n in ((SRD_X, 512 << 10), (SRD_K, 8 << 20), (SRD_V, 8 << 20), (SRD_WQ, 4 << 20), (SRD_WO, 4 << 20),
                       (SRD_WS, WS_SIZE), (SRD_OUT, 1 << 20), (SRD_DBG, 256)):
            e.s(f"s_mov_b32 s{srd+2}, {n}\ns_mov_b32 s{srd+3}, 0x20000")
        e.s(f"""
s_and_b32 s{S_T0}, s{S_T0}, 3
s_lshr_b32 s{S_T1}, s2, 3
s_and_b32 s{S_B}, s{S_T1}, 7
s_lshr_b32 s{S_T1}, s{S_T1}, 3
s_lshl_b32 s{S_T0}, s{S_T0}, 2
s_add_u32 s{S_HP}, s{S_T0}, s{S_T1}
s_lshl_b32 s{S_GRP}, s{S_BR}, 3
s_add_u32 s{S_GRP}, s{S_GRP}, s{S_B}
s_lshr_b32 s{S_T0}, s{S_B}, {c['r1b'][0]}
s_mul_i32 s{S_T0}, s{S_T0}, {c['r1b'][1]}
s_mul_i32 s{S_T1}, s{S_T1}, {c['r1h']}
s_add_u32 s{S_R1}, s{S_T0}, s{S_T1}
s_and_b32 s{S_R1}, s{S_R1}, 15
s_lshr_b32 s{S_T0}, s{S_B}, {c['r3b'][0]}
s_mul_i32 s{S_T0}, s{S_T0}, {2*c['r3b'][1]}
s_add_u32 s{S_D}, s{S_HP}, s{S_T0}
s_and_b32 s{S_D}, s{S_D}, 15
s_lshr_b32 s{S_R3}, s{S_D}, 1
s_add_u32 s{S_R3}, s{S_R3}, 1
s_and_b32 s{S_R3}, s{S_R3}, 7
s_cmp_ge_u32 s{S_WAVE}, 4
s_cbranch_scc1 L_helper""")
        self.compute_setup()
        e.s("s_branch L_compute")

    def helper(self):
        e, c = self.e, self.c
        L = V_LANE
        e.label("L_helper"); e.hist = []
        HW = S_T3
        e.s(f"s_sub_u32 s{HW}, s{S_WAVE}, 4")
        if c["prio_h"]: e.other(f"s_setprio {c['prio_h']}")
        t, u = 20, 21
        e.v(f"v_lshrrev_b32 v{t}, 3, v{L}")
        e.s(f"s_lshl_b32 s{S_T0}, s{HW}, 4\ns_lshl_b32 s{S_T1}, s{S_B}, 6\ns_add_u32 s{S_T0}, s{S_T0}, s{S_T1}")
        e.v(f"v_add_lshl_u32 v{H_X}, v{t}, s{S_T0}, 10")
        e.v(f"v_lshrrev_b32 v{u}, 4, v{L}")
        e.v(f"v_and_b32 v22, 7, v{L}")
        e.v(f"v_xor_b32 v22, v22, v{u}")
        e.v(f"v_xor_b32 v23, 4, v22")
        e.v(f"v_lshl_add_u32 v{H_X+1}, v23, 4, v{H_X}")
        e.v(f"v_add_u32 v{H_X+1}, {8*1024-1024}, v{H_X+1}")
        e.v(f"v_lshl_add_u32 v{H_X}, v22, 4, v{H_X}")
        e.v(f"v_lshrrev_b32 v22, 5, v{L}")
        e.s(f"s_lshl_b32 s{S_T0}, s{HW}, 3\ns_lshl_b32 s{S_T1}, s{S_HP}, 9")
        e.v(f"v_add_lshl_u32 v23, v22, s{S_T0}, 13")
        e.v(f"v_add_u32 v23, s{S_T1}, v23")
        e.v(f"v_lshlrev_b32 v22, 2, v22")
        e.v(f"v_and_b32 v19, 31, v{L}")
        e.v(f"v_xor_b32 v22, v22, v19")
        e.v(f"v_lshl_add_u32 v{H_Q}, v22, 4, v23")
        e.v(f"v_xor_b32 v22, 8, v22")
        e.v(f"v_lshl_add_u32 v{H_Q+1}, v22, 4, v23")
        e.v(f"v_add_u32 v{H_Q+2}, {2*(16384-1024)}, v{H_Q}")
        e.v(f"v_add_u32 v{H_Q+3}, {3*(16384-1024)}, v{H_Q+1}")
        e.v(f"v_add_u32 v{H_Q+1}, {16384-1024}, v{H_Q+1}")
        e.s(f"""s_lshl_b32 s{S_CQ}, s{S_R1}, 18
s_lshl_b32 s{S_CX}, s{S_R1}, 6
s_lshl_b32 s{S_M2}, s{HW}, 11
s_lshl_b32 s{S_M4}, s{HW}, 12""")
        first = list(self.sched[-1])
        e.other("s_waitcnt lgkmcnt(0)")
        self.wsoff()
        self.hseq = 0
        nfirst = 0
        while nfirst < len(first) and first[nfirst]["name"][0] in "xq" and nfirst < 3:
            self.issue(first[nfirst]); nfirst += 1
        e.s(f"""s_lshr_b32 s{S_T0}, s{S_HP}, 1
s_lshl_b32 s{S_T1}, s{S_B}, 3
s_add_u32 s{S_T0}, s{S_T0}, s{S_T1}
s_lshl_b32 s{S_T0}, s{S_T0}, 17
s_lshl_b32 s{S_T1}, s{HW}, 11
s_add_u32 s{S_T0}, s{S_T0}, s{S_T1}
s_and_b32 s{S_T1}, s{HW}, 1
s_lshl_b32 s{S_T1}, s{S_T1}, 3""")
        e.v(f"v_lshlrev_b32 v23, 8, v{u}")
        e.v(f"v_add_u32 v23, s{S_T0}, v23")
        e.v(f"v_and_b32 v19, 15, v{L}")
        e.v(f"v_add_u32 v22, s{S_T1}, v{u}")
        e.v(f"v_xor_b32 v22, v22, v19")
        e.v(f"v_lshl_add_u32 v{H_K}, v22, 4, v23")
        e.v(f"v_xor_b32 v22, 4, v22")
        e.v(f"v_lshl_add_u32 v{H_K+1}, v22, 4, v23")
        e.v(f"v_lshlrev_b32 v22, 2, v{u}")
        e.v(f"v_xor_b32 v22, v22, v19")
        e.v(f"v_lshl_add_u32 v{H_V}, v22, 4, v23")
        if c["kvrot"] and not c["kvalt"]:
            e.s(f"""s_lshr_b32 s{S_T0}, s{S_HP}, 1
s_and_b32 s{S_T0}, s{S_T0}, 1
s_lshl_b32 s{S_T0}, s{S_T0}, 3
s_add_u32 s{S_T0}, s{S_T0}, s{S_B}
s_mul_i32 s{S_T0}, s{S_T0}, {c['kvrot']}
s_and_b32 s{S_T0}, s{S_T0}, 15
s_lshl_b32 s{S_KP}, s{S_T0}, 13""")
        if c["kvalt"]:
            e.s(f"""s_and_b32 s{S_T0}, s{S_HP}, 1
s_lshl_b32 s{S_T0}, s{S_T0}, 14
s_and_b32 s{S_T1}, s{S_B}, 1""")
            if c["kvalt"] == 2: e.s(f"s_mov_b32 s{S_T1}, 0")
            e.s(f"""s_cmp_eq_u32 s{S_T1}, 0
s_cselect_b32 s{S_KE}, s{S_T0}, 0
s_cselect_b32 s{S_T1}, 0, s{S_T0}
s_sub_u32 s{S_KP}, s{S_KE}, s{S_T1}
s_sub_u32 s{S_KQ}, s{S_T1}, s{S_KE}
s_sub_u32 s{S_KF}, 0, s{S_KE}""")
        e.s(f"s_lshl_b32 s{S_T0}, s{HW}, 5\ns_lshl_b32 s{S_T1}, s{S_HP}, 8\ns_add_u32 s{S_T0}, s{S_T0}, s{S_T1}")
        e.v(f"v_add_lshl_u32 v23, v{t}, s{S_T0}, 10")
        e.v(f"v_and_b32 v22, 1, v{u}")
        e.v(f"v_lshlrev_b32 v22, 2, v22")
        e.v(f"v_and_b32 v19, 7, v{L}")
        e.v(f"v_xor_b32 v22, v22, v19")
        e.v(f"v_lshl_add_u32 v{H_O}, v22, 4, v23")
        for k in range(1, 4): e.v(f"v_add_u32 v{H_O+k}, {k*(8192-1024)}, v{H_O}")
        e.v(f"v_lshl_add_u32 v{H_W}, v{L}, 4, s{S_M4}")
        e.v(f"v_add_u32 v{H_W+1}, 0x10000, v{H_W}")
        e.s(f"""s_lshl_b32 s{S_T0}, s{S_GRP}, 4
s_add_u32 s{S_T0}, s{S_T0}, s{S_D}
s_lshl_b32 s{S_T1}, s{S_T0}, 7
s_add_u32 s{S_T1}, s{S_T1}, {WS_F}
s_lshl_b32 s{S_T0}, s{S_T0}, 16
s_and_b32 s{S_T2}, s{HW}, 1
s_lshl_b32 s{S_T2}, s{S_T2}, 11
s_add_u32 s{S_T0}, s{S_T0}, s{S_T2}
s_lshr_b32 s{S_T2}, s{HW}, 1
s_lshl_b32 s{S_T2}, s{S_T2}, 10
s_add_u32 s{S_T0}, s{S_T0}, s{S_T2}""")
        e.v(f"v_lshl_add_u32 v{H_G}, v{L}, 4, s{S_T0}")
        e.v(f"v_and_b32 v22, 31, v{L}")
        e.v(f"v_lshl_add_u32 v{H_F}, v22, 2, s{S_T1}")
        e.s(f"""s_lshl_b32 s{S_T0}, s{S_B}, 1
s_and_b32 s{S_T1}, s{HW}, 1
s_add_u32 s{S_T0}, s{S_T0}, s{S_T1}
s_lshl_b32 s{S_T0}, s{S_T0}, 16
s_lshl_b32 s{S_T1}, s{S_BR}, 10
s_add_u32 s{S_T0}, s{S_T0}, s{S_T1}
s_lshl_b32 s{S_T1}, s{S_D}, 6
s_add_u32 s{S_T0}, s{S_T0}, s{S_T1}
s_lshr_b32 s{S_T1}, s{HW}, 1
s_lshl_b32 s{S_T1}, s{S_T1}, 4
s_add_u32 s{S_T0}, s{S_T0}, s{S_T1}""")
        e.v(f"v_lshl_add_u32 v{H_OUT}, v22, 11, s{S_T0}")
        e.v(f"v_lshrrev_b32 v22, 5, v{L}")
        e.v(f"v_lshl_add_u32 v{H_OUT}, v22, 5, v{H_OUT}")
        e.v(f"v_and_b32 v{H_T}, 3, v{L}")
        e.v(f"v_lshlrev_b32 v{H_T}, 13, v{H_T}")
        e.v(f"v_add_u32 v{H_T}, {KR}, v{H_T}")
        for it in first[nfirst:]: self.issue(it)
        self.stamp("h", "issued0")
        waited = -1; self.prepolled = False
        for n, bn in enumerate(self.bars):
            lastneed = max([it["last"] for it in self.items.values() if it["need"] <= n and "last" in it] + [-1])
            assert all("last" in it for it in self.items.values() if it["need"] <= n)
            if lastneed > waited and not c["nodma"]:
                e.vmcnt(self.hseq - 1 - lastneed); waited = lastneed
            if e.pend: e.lgkm(0)
            if bn in ("B1_0", "B1_8", "BK_0", "BK_8", "BK_16", "B3_4", "B3_6"): self.stamp("h", "pre" + bn)
            e.barrier()
            if bn == "BX":
                e.ds32(22, H_T)
                e.v("v_cmp_eq_u32 vcc, -1, v22")
                e.s(f"s_cbranch_vccnz L_hslow")
                e.label("L_hgo")
            for it in self.sched[n]: self.issue(it)
            if bn == f"B3_{c['PREPOLL']}" and not c["nodma"]:
                e.bload("buffer_load_dword", 22, 1, H_F, SRD_WS, "0", flags=c["fpoll"])
                self.hseq += 1; self.prepolled = True
            for it in self.items.values():
                if "reg" in it and it["need"] == n:
                    for j in range(4):
                        a = it["lds"] + 1024 * j
                        e.ds_write("ds_write_b128", H_W + (a >> 16), it["reg"] + 4 * j, 4, a & 0xffff)
            if bn == "B1_9":
                e.s("s_branch L_h2"); e.raw(".p2align 12\nL_pg1:\n;@PAGED\n;@MARK"); e.label("L_h2")
        OWNA = H_T
        e.s(f"""s_and_b32 s{S_T2}, s{S_WAVE}, 1
s_and_b32 s{S_CX}, s{S_D}, 1
s_xor_b32 s{S_CX}, s{S_CX}, 1
s_lshl_b32 s{S_CQ}, s{S_CX}, 1
s_add_u32 s{S_CQ}, s{S_CQ}, 28
s_lshl_b32 s{S_CQ}, 1, s{S_CQ}
s_lshl_b32 s{S_CX}, s{S_CX}, 12
s_add_u32 s{S_CX}, s{S_CX}, {14*4096}
s_sub_u32 s{S_T0}, s{S_WAVE}, 4
s_lshr_b32 s{S_T0}, s{S_T0}, 1
s_lshl_b32 s{S_T0}, s{S_T0}, 11
s_lshl_b32 s{S_T1}, s{S_T2}, 12
s_add_u32 s{S_T0}, s{S_T0}, s{S_T1}
s_add_u32 s{S_T0}, s{S_T0}, {VR}""")
        e.v(f"v_lshl_add_u32 v{OWNA}, v{L}, 4, s{S_T0}")
        first_acc = [True]
        def accum(k):
            dst = H_ACC if first_acc[0] else H_TMP
            for j in range(4):
                e.v(f"v_lshlrev_b32 v{dst+2*j}, 16, v{H_BUF+4*k+j}")
                e.v(f"v_and_b32 v{dst+2*j+1}, 0xffff0000, v{H_BUF+4*k+j}")
            if not first_acc[0]:
                for j in range(4):
                    e.v(f"v_pk_add_f32 v[{H_ACC+2*j}:{H_ACC+2*j+1}], v[{H_ACC+2*j}:{H_ACC+2*j+1}], v[{H_TMP+2*j}:{H_TMP+2*j+1}]")
            first_acc[0] = False
        prev = []
        e.s(f"s_mov_b32 s{S_CNT}, 0")
        if not self.prepolled:
            e.bload("buffer_load_dword", 22, 1, H_F, SRD_WS, "0", flags=c["fpoll"])
        e.vmcnt(0)
        e.v("v_cmp_eq_u32 vcc, 1, v22")
        for r, steps in enumerate(c["rounds"]):
            mask = sum(5 << (4 * i) for i in steps if i < 7)
            e.s(f"s_mov_b32 s{S_CKV}, {mask:#x}")
            if 7 in steps: e.s(f"s_or_b32 s{S_CKV}, s{S_CKV}, s{S_CQ}")
            e.s(f"s_lshl_b32 s{S_CKV}, s{S_CKV}, s{S_T2}")
            e.label(f"L_poll{r}")
            e.s(f"s_and_b32 s{S_T0}, vcc_lo, s{S_CKV}\ns_cmp_eq_u32 s{S_T0}, s{S_CKV}\ns_cbranch_scc1 L_got{r}")
            if c["PSLEEP"]: e.other(f"s_sleep {c['PSLEEP']}")
            e.bload("buffer_load_dword", 22, 1, H_F, SRD_WS, "0", flags=c["fpoll"])
            e.s(f"s_add_u32 s{S_CNT}, s{S_CNT}, 1")
            e.vmcnt(0)
            e.v("v_cmp_eq_u32 vcc, 1, v22")
            e.s(f"s_cmp_lt_u32 s{S_CNT}, 0x40000\ns_cbranch_scc1 L_poll{r}")
            e.label(f"L_got{r}"); e.hist = []
            if 0 in steps or 3 in steps or 5 in steps or 7 in steps: self.stamp("h", f"got{r}")
            for i in steps:
                for p in range(1 if i == 7 else 2):
                    k = 2 * i + p
                    if i == 7: so = f"s{S_CX}"
                    elif k == 0: so = "0"
                    else:
                        e.s(f"s_mov_b32 s{S_T0}, {k*4096}"); so = f"s{S_T0}"
                    e.bload("buffer_load_dwordx4", H_BUF + 4 * k, 4, H_G, SRD_WS, so, flags=c["fgat"])
                    prev.append(k)
        nearly = len(prev) - 3
        for n, k in enumerate(prev[:nearly]):
            e.vmcnt(len(prev) - 1 - n); accum(k)
        prev = prev[nearly:]
        e.barrier()
        e.ds128(H_BUF + 60, OWNA, 0); e.ds128(H_BUF + 64, OWNA, 1024)
        for j in range(4):
            e.v(f"v_pk_add_f32 v[{H_ACC+2*j}:{H_ACC+2*j+1}], v[{H_ACC+2*j}:{H_ACC+2*j+1}], v[{H_BUF+60+2*j}:{H_BUF+61+2*j}]")
        for n, k in enumerate(prev):
            e.vmcnt(len(prev) - 1 - n); accum(k)
        for j in range(4): e.v(f"v_cvt_pk_bf16_f32 v{H_TMP+j}, v{H_ACC+2*j}, v{H_ACC+2*j+1}")
        e.bstore("buffer_store_dwordx4", H_TMP, 4, H_OUT, SRD_OUT, "0", flags=c["fout"])
        self.stamp("h", "stored")
        if c["stamp"]:
            e.vmcnt(0); self.stamp("h", "end")
        self.write_stamps("h")
        e.other("s_endpgm")
        e.label("L_hslow"); e.hist = []
        e.barrier()
        e.barrier()
        e.s("s_branch L_hgo")

    def wsoff(self):
        if self.c["wsoff"]:
            self.e.s(f"s_add_u32 s{SRD_WS}, s{SRD_WS}, {self.c['wsoff'] << 20}\ns_addc_u32 s{SRD_WS+1}, s{SRD_WS+1}, 0")

    def issue(self, it):
        e, c = self.e, self.c
        n = it["name"]; k = n[0]
        if c["nodma"]:
            cnt = 0
        elif k == "x":
            e.s(f"s_add_u32 m0, s{S_M2}, {it['lds']}")
            e.dma(H_X, SRD_X, f"s{S_CX}", 0, c["fx"]); e.dma(H_X + 1, SRD_X, f"s{S_CX}", 1024, c["fx"])
            if n != "x7": e.s(f"s_add_u32 s{S_CX}, s{S_CX}, 128\ns_and_b32 s{S_CX}, s{S_CX}, 0x3ff")
            cnt = 2
        elif k == "q":
            e.s(f"s_add_u32 m0, s{S_M4}, {it['lds']}")
            for j in range(4): e.dma(H_Q + j, SRD_WQ, f"s{S_CQ}", 1024 * j, c["fq"])
            if n != "q15": e.s(f"s_add_u32 s{S_CQ}, s{S_CQ}, 0x40000\ns_and_b32 s{S_CQ}, s{S_CQ}, 0x3fffff")
            cnt = 4
        elif k in "kv":
            j = int(n[1:])
            e.s(f"s_add_u32 m0, s{S_M2}, {it['lds']}")
            if c["kvalt"]:
                sreg = S_KE if j < 2 else (S_KF if j >= 14 else (S_KP if j % 4 < 2 else S_KQ))
                e.s(f"s_add_u32 s{S_CKV}, s{sreg}, {j*8192}")
            elif c["kvrot"]: e.s(f"s_add_u32 s{S_CKV}, s{S_KP}, {j*8192}\ns_and_b32 s{S_CKV}, s{S_CKV}, 0x1ffff")
            else: e.s(f"s_mov_b32 s{S_CKV}, {j*8192}")
            if k == "k":
                e.dma(H_K, SRD_K, f"s{S_CKV}", 0, c["fk"]); e.dma(H_K + 1, SRD_K, f"s{S_CKV}", 1024, c["fk"])
            else:
                e.dma(H_V, SRD_V, f"s{S_CKV}", 0, c["fv"]); e.dma(H_V, SRD_V, f"s{S_CKV}", 1024, c["fv"])
            cnt = 2
        else:
            if "reg" not in it: e.s(f"s_add_u32 m0, s{S_M4}, {it['lds']}")
            if n[2] == "a":
                e.s(f"s_add_u32 s{S_CO}, s{S_R3}, {n[1]}\ns_and_b32 s{S_CO}, s{S_CO}, 7\ns_lshl_b32 s{S_CO}, s{S_CO}, 7")
            else: e.s(f"s_add_u32 s{S_CO}, s{S_CO}, 0x20000")
            for j in range(4):
                if "reg" in it: e.bload("buffer_load_dwordx4", it["reg"] + 4 * j, 4, H_O + j, SRD_WO, f"s{S_CO}", 1024 * j, c["fo"])
                else:
                    if c["PACE3"] is not None and int(n[1]) >= 3: e.vmcnt(c["PACE3"])
                    e.dma(H_O + j, SRD_WO, f"s{S_CO}", 1024 * j, c["fo"])
            cnt = 4
        self.hseq += cnt
        it["last"] = self.hseq - 1

    def wave0_only(self, fn, tag, sreg=S_WAVE):
        e = self.e
        e.s(f"s_cmp_lg_u32 s{sreg}, 0\ns_cbranch_scc1 L_w0_{tag}")
        h0 = len(e.out); mark = list(e.hist)
        fn()
        blk = [i for i in e.hist if i not in mark]
        for i in blk: i.states = 0
        e.label(f"L_w0_{tag}")

    def compute_setup(self):
        e, c = self.e, self.c
        L = V_LANE
        if c["prio_c"]: e.other(f"s_setprio {c['prio_c']}")
        if c["l2pf"]:
            e.other("s_getpc_b64 s[92:93]")
            e.s(f"s_and_b32 s92, s92, 0xfffff000\ns_mov_b32 s94, L_end-L_pg1+4096\ns_mov_b32 s95, 0x20000\ns_lshr_b32 s{S_T0}, s2, 3\ns_lshl_b32 s{S_T0}, s{S_T0}, 10")
            e.v(f"v_lshlrev_b32 v48, 7, v{L}")
            e.v(f"v_lshrrev_b32 v49, 3, v{L}")
            e.v(f"v_lshl_or_b32 v48, v49, 28, v48")
            self.wave0_only(lambda: e.bload("buffer_load_dword", 242, 1, 48, 92, f"s{S_T0}"), "pf")
        MB, HH = S_T0, S_T1
        e.s(f"s_and_b32 s{MB}, s{S_WAVE}, 1\ns_lshr_b32 s{HH}, s{S_WAVE}, 1")
        h, rr, g, c0, c1, l32, a, b = 48, 49, 50, 51, 52, 53, 54, 55
        e.v(f"v_lshrrev_b32 v{h}, 5, v{L}")
        e.v(f"v_bfe_u32 v{rr}, v{L}, 2, 2")
        e.v(f"v_bfe_u32 v{g}, v{L}, 4, 1")
        e.v(f"v_and_b32 v{c0}, 1, v{L}")
        e.v(f"v_bfe_u32 v{c1}, v{L}, 1, 1")
        e.v(f"v_and_b32 v{l32}, 31, v{L}")
        e.v(f"v_lshl_add_u32 v{a}, v{h}, 3, v{rr}")
        e.v(f"v_lshlrev_b32 v{a}, 9, v{a}")
        e.s(f"s_lshl_b32 s{S_T2}, s{HH}, 8")
        e.v(f"v_lshl_add_u32 v{a}, v{g}, 5, v{a}")
        e.v(f"v_lshl_add_u32 v{a}, v{c0}, 4, v{a}")
        e.v(f"v_lshl_add_u32 v{a}, v{c1}, 3, v{a}")
        e.v(f"v_add_u32 v{a}, s{S_T2}, v{a}")
        e.v(f"v_lshl_add_u32 v{A_WQ}, v{rr}, 6, v{a}")
        for t in range(1, 4): e.v(f"v_xor_b32 v{A_WQ+t}, {t<<6}, v{A_WQ}")
        for t in range(4): e.v(f"v_add_u32 v{A_WQ+4+t}, 0x10000, v{A_WQ+t}")
        e.s(f"s_lshl_b32 s{S_T2}, s{MB}, 12\ns_add_u32 s{S_T2}, s{S_T2}, {KR}")
        e.v(f"v_lshl_add_u32 v{a}, v{l32}, 7, s{S_T2}")
        e.v(f"v_bfe_u32 v{b}, v{L}, 1, 3")
        e.v(f"v_xor_b32 v{b}, v{b}, v{h}")
        e.v(f"v_lshl_add_u32 v{A_X}, v{b}, 4, v{a}")
        for s in range(1, 4): e.v(f"v_xor_b32 v{A_X+s}, {s<<5}, v{A_X}")
        e.v(f"v_lshlrev_b32 v{a}, 8, v{l32}")
        e.v(f"v_add_u32 v{a}, {KR}, v{a}")
        e.v(f"v_and_b32 v{b}, 15, v{L}")
        e.v(f"v_xor_b32 v{b}, v{b}, v{h}")
        e.v(f"v_lshl_add_u32 v{A_K}, v{b}, 4, v{a}")
        for s in range(1, 8): e.v(f"v_xor_b32 v{A_K+s}, {s<<5}, v{A_K}")
        e.v(f"v_lshl_add_u32 v{a}, v{h}, 2, v{rr}")
        e.v(f"v_lshlrev_b32 v{b}, 8, v{a}")
        e.v(f"v_add_u32 v{b}, {VR}, v{b}")
        e.v(f"v_lshl_add_u32 v{b}, v{g}, 5, v{b}")
        e.v(f"v_lshl_add_u32 v{b}, v{c1}, 4, v{b}")
        e.v(f"v_lshl_add_u32 v{b}, v{c0}, 3, v{b}")
        e.v(f"v_lshl_add_u32 v{A_V}, v{rr}, 6, v{b}")
        for t in range(1, 4): e.v(f"v_xor_b32 v{A_V+t}, {t<<6}, v{A_V}")
        e.v(f"v_lshlrev_b32 v{a}, 7, v{a}")
        e.v(f"v_lshl_add_u32 v{a}, v{c0}, 5, v{a}")
        e.v(f"v_lshl_add_u32 v{a}, v{g}, 4, v{a}")
        e.v(f"v_lshl_add_u32 v{a}, v{c1}, 3, v{a}")
        e.v(f"v_lshrrev_b32 v{b}, 1, v{rr}")
        e.v(f"v_xor_b32 v{b}, s{HH}, v{b}")
        e.v(f"v_lshl_add_u32 v{a}, v{b}, 6, v{a}")
        e.s(f"s_lshl_b32 s{S_T2}, s{HH}, 14")
        e.v(f"v_add_u32 v{A_WO}, s{S_T2}, v{a}")
        e.v(f"v_xor_b32 v{A_WO+1}, 0x4000, v{A_WO}")
        for w in (1, 2):
            e.v(f"v_add_u32 v{A_WO+2*w}, {w*0x10000}, v{A_WO}")
            e.v(f"v_add_u32 v{A_WO+2*w+1}, {w*0x10000}, v{A_WO+1}")
        e.s(f"s_lshl_b32 s{S_T2}, s{S_WAVE}, 13\ns_add_u32 s{S_T2}, s{S_T2}, {KR}")
        e.v(f"v_lshl_add_u32 v{V_XW}, v{L}, 4, s{S_T2}")
        e.v(f"v_xor_b32 v{V_XR}, 0x4000, v{V_XW}")
        e.s(f"""s_lshl_b32 s{S_T2}, s{S_GRP}, 20
s_lshl_b32 s{S_T3}, s{HH}, 16
s_add_u32 s{S_T2}, s{S_T2}, s{S_T3}
s_and_b32 s{S_T3}, s{S_D}, 1
s_lshl_b32 s{S_T3}, s{S_T3}, 12
s_add_u32 s{S_T2}, s{S_T2}, s{S_T3}
s_lshl_b32 s{S_T3}, s{MB}, 11
s_add_u32 s{S_T2}, s{S_T2}, s{S_T3}""")
        e.v(f"v_lshl_add_u32 v{V_PUB}, v{L}, 4, s{S_T2}")
        e.s(f"""s_lshl_b32 s{S_T2}, s{S_GRP}, 4
s_add_u32 s{S_T2}, s{S_T2}, s{HH}
s_lshl_b32 s{S_T2}, s{S_T2}, 5
s_and_b32 s{S_T3}, s{S_D}, 1
s_lshl_b32 s{S_T3}, s{S_T3}, 1
s_add_u32 s{S_T2}, s{S_T2}, s{S_T3}
s_add_u32 s{S_T2}, s{S_T2}, s{MB}
s_lshl_b32 s{S_T2}, s{S_T2}, 2
s_add_u32 s{S_T2}, s{S_T2}, {WS_F}""")
        e.v(f"v_min_u32 v{a}, 1, v{L}")
        e.v(f"v_lshlrev_b32 v{a}, 31, v{a}")
        e.v(f"v_add_u32 v{V_FLG}, s{S_T2}, v{a}")
        e.s(f"s_lshl_b32 s{S_T2}, s{S_GRP}, 4")
        e.v(f"v_add_u32 v{V_RDY}, s{S_T2}, v{a}")
        e.v(f"v_mov_b32 v{V_ONE}, 1")
        e.v(f"v_mov_b32 v{V_L0}, 0"); e.v(f"v_mov_b32 v{V_L1}, 0")
        for r in range(16): e.v(f"v_mov_b32 v{CT+r}, 0")
        sc = f2u(math.log2(math.e) / math.sqrt(128.0))
        e.s(f"s_mov_b32 s{S_SC}, {sc:#x}\ns_mov_b32 s{S_SC+1}, {sc:#x}\ns_mov_b32 s{S_FIN}, 0")
        e.s(f"""s_lshl_b32 s{S_T2}, s{S_GRP}, 11
s_add_u32 s{S_T2}, s{S_T2}, {WS_F}
s_or_b32 s{S_CLR}, s{S_WAVE}, s{S_HP}""")
        e.v(f"v_lshl_add_u32 v{T0}, v{L}, 4, s{S_T2}")
        e.other("s_waitcnt lgkmcnt(0)")
        self.wsoff()
        def clr():
            e.bstore("buffer_store_dwordx4", CT, 4, T0, SRD_WS, "0", flags="sc1")
            e.bstore("buffer_store_dwordx4", CT, 4, T0, SRD_WS, "0", 1024, flags="sc1")
        self.wave0_only(clr, "clr", S_CLR)
        if c["tlbpf"]:
            def tl():
                e.s(f"""s_lshr_b32 s{S_T2}, s{S_HP}, 1
s_lshl_b32 s{S_T3}, s{S_B}, 3
s_add_u32 s{S_T2}, s{S_T2}, s{S_T3}
s_lshl_b32 s{S_T2}, s{S_T2}, 17
s_lshl_b32 s{S_T3}, s{S_HP}, 18""")
                e.v(f"v_min_u32 v{T0+1}, 1, v{L}")
                e.v(f"v_lshlrev_b32 v{T0+1}, 31, v{T0+1}")
                e.bload("buffer_load_dword", 243, 1, T0 + 1, SRD_K, f"s{S_T2}")
                e.bload("buffer_load_dword", 243, 1, T0 + 1, SRD_V, f"s{S_T2}")
                e.bload("buffer_load_dword", 243, 1, T0 + 1, SRD_WO, f"s{S_T3}")
                e.s(f"s_lshl_b32 s{S_T2}, s{S_GRP}, 20\ns_lshl_b32 s{S_T3}, s{S_B}, 17")
                e.bload("buffer_load_dword", 243, 1, T0 + 1, SRD_WS, f"s{S_T2}")
                e.bload("buffer_load_dword", 243, 1, T0 + 1, SRD_OUT, f"s{S_T3}")
                e.s(f"s_mov_b32 s{S_T2}, {WS_F + 0x10000}")
                e.bload("buffer_load_dword", 243, 1, T0 + 1, SRD_WS, f"s{S_T2}")
            e.s(f"s_xor_b32 s{S_CNT}, s{S_WAVE}, 1")
            self.wave0_only(tl, "tlb", S_CNT)

    def dump(self, base, n, tag):
        e = self.e
        e.nop(12)
        e.s(f"s_lshl_b32 s{S_T0}, s2, 2\ns_add_u32 s{S_T0}, s{S_T0}, s{S_WAVE}\ns_mul_i32 s{S_T0}, s{S_T0}, {n*256}\ns_add_u32 s{S_T0}, s{S_T0}, {18<<20}")
        e.v(f"v_lshlrev_b32 v{T0+1}, 2, v{V_LANE}")
        for r in range(n):
            if r and r % 16 == 0: e.s(f"s_add_u32 s{S_T0}, s{S_T0}, 4096")
            e.bstore("buffer_store_dword", base + r, 1, T0 + 1, SRD_WS, f"s{S_T0}", (r % 16) * 256)
        e.vmcnt(0)

    def run_mfmas(self, M, fill, W, pre=None):
        e = self.e
        for g, (d, a, b, cc) in enumerate(M):
            for f in (pre or {}).get(g, []): f()
            if W > 1 and g % W == 0:
                regs = R(b, 4)
                for k in range(g, min(g + W, len(M))): regs = regs | R(M[k][1], 4)
                e.wait_regs(regs)
            e.mfma(d, a, b, cc)
            for f in fill.get(g, []): f()

    def place(self, reads, bar, n, LEAD):
        e = self.e
        fill = {}; head = []
        for g in range(n):
            ops = []
            if g in bar:
                def fb(nm=bar[g]):
                    if nm in ("B1_0", "B1_8", "BK_1", "BK_8", "BK_16", "B3_2", "B3_4", "B3_6"): self.stamp("c", "pre" + nm)
                    e.barrier()
                    if nm in ("B1_0", "BK_0"): self.stamp("c", "post" + nm)
                ops.append(fb)
            ops += reads.get(g, [])
            if g < LEAD: head += ops
            else: fill.setdefault(g - LEAD, []).extend(ops)
        return fill, head

    def compute(self):
        e, c = self.e, self.c
        NF = c["NF"]
        e.raw(".p2align 12\n;@PAGED")
        e.label("L_compute"); e.hist = []
        self.stamp("c", "setup")
        fr = lambda g: FR + 4 * (g % NF)
        def spread(fill, ops, g0, per):
            for n, f in enumerate(ops): fill.setdefault(g0 + n // per, []).append(f)
        M = []; reads = {}; bar = {}
        for kt in range(16):
            slot = self.items[f"q{kt}"]["lds"]
            win, so = (0, slot) if slot < 65536 else (4, slot - 65536)
            for s2 in range(2):
                st = kt * 2 + s2
                xb = XB + 4 * (st % 3)
                for t in range(4):
                    g = len(M)
                    M.append((ACC + 16 * t, fr(g), xb, None if st == 0 else ACC + 16 * t))
                    rl = []
                    if t == 0:
                        xo = self.items[f"x{kt//2}"]["lds"] - KR
                        rl.append(lambda xb=xb, s=st % 4, xo=xo: e.ds128(xb, A_X + s, xo))
                    o = so + s2 * 8192
                    rl.append(lambda d=fr(g), t=t, o=o, win=win: e.dstr(d, A_WQ + win + t, o))
                    rl.append(lambda d=fr(g), t=t, o=o, win=win: e.dstr(d + 2, A_WQ + win + t, o + 2048))
                    reads[g] = rl
            bar[kt * 8] = f"B1_{kt}"
        fill, head = self.place(reads, bar, len(M), c["L1"])
        fill.setdefault(8 * c["TPOS"], []).append(lambda: e.raw(";@TOUCH2"))
        def arrive():
            e.vmcnt(0)
            e.bstore("buffer_store_dword", V_ONE, 1, V_RDY, SRD_DBG, "0", flags="sc1")
        fill.setdefault(41, []).append(lambda: self.wave0_only(arrive, "arr", S_CLR))
        for f in head: f()
        self.run_mfmas(M, fill, c["W1"])
        self.stamp("c", "P1end")
        M = []; reads = {}; bar = {}
        def addQK(j):
            bar[len(M)] = f"BK_{j}"
            so = self.items[f"k{j}"]["lds"] - KR
            for s in range(8):
                g = len(M); S = SS + 16 * (j % 2)
                M.append((S, fr(g), QP + 4 * s, CT if s == 0 else S))
                reads[g] = [lambda d=fr(g), s=s, so=so: e.ds128(d, A_K + s, so)]
        def addPV(j):
            so = self.items[f"v{j}"]["lds"] - VR
            for u in range(2):
                for t in range(4):
                    g = len(M)
                    M.append((ACC + 16 * t, fr(g), PP + 4 * u, None if (j == 0 and u == 0) else ACC + 16 * t))
                    o = so + u * 4096
                    reads[g] = [lambda d=fr(g), t=t, o=o: e.dstr(d, A_V + t, o),
                                lambda d=fr(g), t=t, o=o: e.dstr(d + 2, A_V + t, o + 2048)]
        addQK(0)
        for j in range(15): addQK(j + 1); addPV(j)
        bar[len(M)] = "BK_16"
        addPV(15)
        fill, head = self.place(reads, bar, len(M), c["L2"])
        def ex(j, r): return lambda: e.v(f"v_exp_f32 v{SS+16*(j%2)+r}, v{SS+16*(j%2)+r}")
        def cv(j, k): return lambda: e.v(f"v_cvt_pk_bf16_f32 v{PP+k}, v{SS+16*(j%2)+2*k}, v{SS+16*(j%2)+2*k+1}")
        def ad(j, r): return lambda: e.v(f"v_add_f32 v{V_L0+(r%2)}, v{V_L0+(r%2)}, v{SS+16*(j%2)+r}")
        def put(j, g, spec):
            front = []
            for tok in spec.split():
                first = tok[0] == "<"
                if first: tok = tok[1:]
                f = {"e": ex, "c": cv, "a": ad}[tok[0]](j, int(tok[1:]))
                if first: front.append(f)
                else: fill.setdefault(g, []).append(f)
            fill[g] = front + fill.get(g, [])
        TAB = c["tab"] or {-5: "e0", -4: "e1 e2", -3: "e3 e4 c0", -2: "e5 e6 c1", -1: "e7 c2 a0", 0: "e8 e9 c3", 1: "e10 c4 a1",
                           2: "e11 e12", 3: "e13 c5", 4: "e14 c6 a2", 5: "e15 a3 a4", 6: "c7 a5 a6 a7", 7: "a8 a9 a10",
                           8: "a11 a12 a13", 9: "a14 a15"}
        TAB0 = {1: "e0", 2: "e1 e2 e3", 3: "e4 e5 c0", 4: "e6 e7 c1", 5: "e8 c2 c3", 6: "e9 e10 c4", 7: "e11 e12", 8: "e13 e14 c5",
                9: "e15 c6 a0", 10: "c7 a1 a2 a3 a4", 11: "a5 a6 a7", 12: "a8 a9", 13: "a10 a11", 14: "a12 a13", 15: "a14 a15"}
        neg = " ".join(v for k, v in TAB.items() if k < 0).split()
        rest = [t for t in " ".join(v for k, v in TAB.items() if k >= 0).split()]
        for j in range(15):
            for k, sp in (TAB0 if j == 0 else TAB).items(): put(j, 8 + 16 * j + k, sp)
        g0 = 8 + 16 * 15
        for k, sp in TAB.items():
            if k < 0: put(15, g0 + k, sp)
        assert "c3" in rest and "e7" in neg and "e8" in rest
        put(15, g0 - 1, "c3")
        adds = [t for t in rest if t[0] == "a"]
        for k, sp in enumerate(["e8 e9 " + adds[0], "e10 e11 c4 " + adds[1], "e12 e13 c5 " + adds[2], "<e14 <e15 <c6 <c7 " + adds[3],
                                " ".join(adds[4:10]), " ".join(adds[10:])]):
            put(15, g0 + k, sp)
        l, t1, t2, RC = V_L0, T0, T0 + 1, T0 + 3
        def lchain():
            e.v(f"v_add_f32 v{l}, v{V_L0}, v{V_L1}")
            e.v(f"v_mov_b32 v{t1}, v{l}")
            e.s(f"s_mov_b32 s{S_T0}, {f2u(2.0**-30):#x}\ns_mov_b32 s{S_T1}, {f2u(2.0**30):#x}")
            e.v(f"v_permlane32_swap_b32 v{l}, v{t1}")
            e.v(f"v_add_f32 v{l}, v{l}, v{t1}")
            e.v(f"v_rcp_f32 v{RC}, v{l}")
            e.v(f"v_cmp_nle_f32 vcc, s{S_T0}, v{l}")
            e.v(f"v_cmp_nge_f32 s[56:57], s{S_T1}, v{l}")
        def rdyload(): e.bload("buffer_load_dword", T0 + 2, 1, V_RDY, SRD_DBG, "0", flags="sc1")
        fill.setdefault(8 + 16 * 11 + 10, []).append(lambda: self.wave0_only(rdyload, "rl"))
        def qscale(t, pk):
            ops = []
            for k in range(8):
                r = ACC + 16 * t + 2 * k
                if pk: ops.append(lambda r=r: e.v(f"v_pk_mul_f32 v[{r}:{r+1}], v[{r}:{r+1}], s[{S_SC}:{S_SC+1}]"))
                else: ops += [lambda r=r: e.v(f"v_mul_f32 v{r}, s{S_SC}, v{r}"), lambda r=r: e.v(f"v_mul_f32 v{r+1}, s{S_SC}, v{r+1}")]
            for k in range(8):
                r = ACC + 16 * t + 2 * k
                ops.append(lambda r=r, k=k: e.v(f"v_cvt_pk_bf16_f32 v{QP+8*t+k}, v{r}, v{r+1}"))
            return ops
        for f in qscale(0, True): f()
        for f in head: f()
        for f in qscale(1, True): f()
        if c["dump"] == "q":
            for f in qscale(2, True) + qscale(3, True): f()
            self.dump(QP, 32, "q")
        else:
            spread(fill, qscale(2, False), 0, 7)
            spread(fill, qscale(3, False)[:12], 3, 4); spread(fill, qscale(3, False)[12:], 4, 6)
        self.stamp("c", "P2start")
        self.run_mfmas(M, fill, c["W2"])
        self.stamp("c", "P2end")
        AC = lambda i: (AC3A, AC3B)[i % 2]
        M = []; reads = {}; bar = {}; done = {}
        seq = [(0, 0), (1, 0), (0, 1), (1, 1)] + [(i, hs) for i in range(2, 8) for hs in range(2)]
        for i, hs in seq:
            slot = WOSLOT[i]; win = slot >> 16; so = slot & 0xffff
            if hs == 0 and 2 <= i <= c["NB3"]: bar[len(M)] = f"B3_{i}"
            for k in range(8):
                g = len(M)
                M.append((AC(i), fr(g), (OWN if hs == 0 else OTH) + 4 * k, None if (hs == 0 and k == 0) else AC(i)))
                o = so + k * 2048
                reads[g] = [lambda d=fr(g), o=o, a=A_WO + 2 * win + hs: e.dstr(d, a, o),
                            lambda d=fr(g), o=o, a=A_WO + 2 * win + hs: e.dstr(d + 2, a, o + 1024)]
            if hs == 1: done[i] = len(M) - 1
        L3 = c["L3"]
        fill, head = self.place(reads, bar, len(M), L3)
        e.lgkm(0)
        e.label("L_norm")
        lchain()
        for f in head[:8]: f()
        def onorm(t, pk):
            ops = []
            for k in range(8):
                r = ACC + 16 * t + 2 * k
                if pk: ops.append(lambda r=r: e.v(f"v_pk_mul_f32 v[{r}:{r+1}], v[{r}:{r+1}], v[{RC-1}:{RC}] op_sel:[0,1] op_sel_hi:[1,1]"))
                else: ops += [lambda r=r: e.v(f"v_mul_f32 v{r}, v{RC}, v{r}"), lambda r=r: e.v(f"v_mul_f32 v{r+1}, v{RC}, v{r+1}")]
            for k in range(8):
                r = ACC + 16 * t + 2 * k
                ops.append(lambda r=r, k=k: e.v(f"v_cvt_pk_bf16_f32 v{OWN+8*t+k}, v{r}, v{r+1}"))
            return ops
        wr = lambda k: (lambda: e.ds_write("ds_write_b128", V_XW, OWN + 4 * k, 4, 1024 * k))
        for f in onorm(0, True): f()
        e.s(f"s_or_b64 vcc, vcc, s[56:57]\ns_cmp_lg_u32 s{S_FIN}, 0\ns_cbranch_scc1 L_novote\ns_cbranch_vccz L_novote")
        mark = list(e.hist)
        e.v(f"v_mov_b32 v{OWN}, -1")
        for i in e.hist:
            if i not in mark: i.states = 0
        e.label("L_novote")
        for f in head[8:]: f()
        wr(0)(); wr(1)()
        if c["dump"] == "o":
            for t in (1, 2, 3):
                for f in onorm(t, True): f()
            self.dump(OWN, 32, "o")
            for k in range(2, 8): wr(k)()
        else:
            for f in onorm(1, True): f()
            for t in (2, 3):
                ops = onorm(t, False)
                spread(fill, [wr(2 * t - 2)] + ops[:12], 2 * t - 4, 13); spread(fill, [wr(2 * t - 1)] + ops[12:], 2 * t - 3, 13)
            fill.setdefault(4, []).append(wr(6)); fill.setdefault(5, []).append(wr(7))
        def rdy():
            e.label("L_rdy"); e.vmcnt(0)
            e.v(f"v_readfirstlane_b32 s{S_T0}, v{T0+2}")
            e.s(f"s_cmp_eq_u32 s{S_T0}, 1\ns_cbranch_scc1 L_rdyok")
            e.bload("buffer_load_dword", T0 + 2, 1, V_RDY, SRD_DBG, "0", flags="sc1")
            e.s(f"s_add_u32 s{S_CNT}, s{S_CNT}, 1\ns_cmp_lt_u32 s{S_CNT}, 0x40000\ns_cbranch_scc1 L_rdy")
            e.label("L_rdyok")
        def bx():
            e.s(f"s_mov_b32 s{S_CNT}, 0")
            self.wave0_only(rdy, "rdy")
            e.v(f"v_and_b32 v{t1}, 3, v{V_LANE}")
            e.v(f"v_lshlrev_b32 v{t1}, 13, v{t1}")
            e.v(f"v_add_u32 v{t1}, {KR}, v{t1}")
            nw = max(n for n, p in enumerate(e.pend) if not p) if any(not p for p in e.pend) else -1
            if nw >= 0: e.lgkm(len(e.pend) - 1 - nw)
            self.stamp("c", "preBX")
            e.barrier()
            self.stamp("c", "postBX")
            e.ds32(t2, t1)
        GX = c["GX"]
        fill[GX] = [bx] + fill.get(GX, [])
        for k in range(8):
            fill.setdefault(min(GX + k, 11 + k), []).append(lambda k=k: e.ds128(OTH + 4 * k, V_XR, 1024 * k))
        def vote():
            e.v(f"v_cmp_eq_u32 vcc, -1, v{t2}")
            e.s(f"s_cmp_lg_u32 s{S_FIN}, 0\ns_cbranch_scc1 L_voted\ns_cbranch_vccnz L_slow")
            e.label("L_voted")
        fill[GX + 3] = [vote] + fill.get(GX + 3, [])
        FL = c["FLAGLAG"]
        vseq = []
        def pub_cvt(i, k): return lambda: e.v(f"v_cvt_pk_bf16_f32 v{PK+8*(i%2)+k}, v{AC(i)+2*k}, v{AC(i)+2*k+1}")
        def pub_so(i):
            def f():
                e.s(f"s_add_u32 s{S_T0}, s{S_R3}, {i}\ns_and_b32 s{S_T0}, s{S_T0}, 7\ns_lshl_b32 s{S_T1}, s{S_T0}, 17")
                if i: e.s(f"s_add_u32 s{S_T1}, s{S_T1}, {i*8192}")
            return f
        def pub_st(i, q):
            def f():
                if c["nopub"]:
                    vseq.append(("S", i)); return
                e.bstore("buffer_store_dwordx4", PK + 8 * (i % 2) + 4 * q, 4, V_PUB, SRD_WS, f"s{S_T1}", 1024 * q, flags=c["fpub"])
                vseq.append(("S", i))
            return f
        def pub_flag(i):
            def f():
                e.s(f"s_add_u32 s{S_T2}, s{S_R3}, {i}\ns_and_b32 s{S_T2}, s{S_T2}, 7\ns_lshl_b32 s{S_T2}, s{S_T2}, 8")
                last = max(n for n, x in enumerate(vseq) if x == ("S", i))
                e.vmcnt(len(vseq) - 1 - last)
                e.bstore("buffer_store_dword", V_ONE, 1, V_FLG, SRD_WS, f"s{S_T2}", 16 * i, flags=c["fflag"])
                vseq.append(("F", i))
            return f
        late = []
        for i in range(7):
            g = done[i] + 1 + (min(c["PUBG"], 3) if i == 0 else c["PUBG"])
            fill.setdefault(g - 1, []).append(pub_so(i))
            for k in range(8): fill.setdefault(g + k // 2, []).append(pub_cvt(i, k))
            fill.setdefault(g + 2, []).append(pub_st(i, 0))
            fill.setdefault(g + 4, []).append(pub_st(i, 1))
            gf = g + 7 + 16 * FL
            if gf < len(M): fill.setdefault(gf, []).append(pub_flag(i))
            else: late.append(i)
        self.run_mfmas(M, fill, c["W3"])
        self.stamp("c", "P3end")
        e.s(f"s_and_b32 s{S_T0}, s{S_D}, 1\ns_lshr_b32 s{S_T1}, s{S_WAVE}, 1\ns_cmp_eq_u32 s{S_T0}, s{S_T1}\ns_cbranch_scc1 L_own")
        h0 = list(e.hist); v0 = list(vseq)
        pub_so(7)()
        for k in range(8): pub_cvt(7, k)()
        pub_st(7, 0)(); pub_st(7, 1)()
        for i in late + [7]: pub_flag(i)()
        e.s("s_branch L_fin")
        e.label("L_own"); e.hist = h0; vseq[:] = v0
        e.s(f"s_and_b32 s{S_T0}, s{S_WAVE}, 1\ns_lshl_b32 s{S_T0}, s{S_T0}, 12\ns_add_u32 s{S_T0}, s{S_T0}, {VR}")
        e.v(f"v_lshl_add_u32 v{T0}, v{V_LANE}, 4, s{S_T0}")
        for p in range(4): e.ds_write("ds_write_b128", T0, AC(7) + 4 * p, 4, 1024 * p)
        for i in late: pub_flag(i)()
        e.lgkm(0)
        e.label("L_fin")
        e.barrier()
        self.stamp("c", "flagged")
        self.write_stamps("c")
        e.other("s_endpgm")
        self.slow()

    def slow(self):
        e = self.e
        L = V_LANE
        e.raw(";@UNPAGED")
        e.label("L_slow"); e.hist = []; e.pend = []
        e.other("s_waitcnt vmcnt(0) lgkmcnt(0)"); e.nop(16)
        e.barrier()
        KA, VA, MX, t1 = T0, T0 + 1, T0 + 6, T0 + 7
        e.s(f"""s_mov_b32 s{S_FIN}, 1
s_lshr_b32 s{S_T0}, s{S_HP}, 1
s_lshl_b32 s{S_T1}, s{S_B}, 3
s_add_u32 s{S_T0}, s{S_T0}, s{S_T1}
s_lshl_b32 s{S_T0}, s{S_T0}, 17""")
        e.v(f"v_and_b32 v{t1}, 31, v{L}")
        e.v(f"v_lshrrev_b32 v{MX}, 5, v{L}")
        e.v(f"v_lshlrev_b32 v{KA}, 8, v{t1}")
        e.v(f"v_lshl_add_u32 v{KA}, v{MX}, 4, v{KA}")
        e.v(f"v_add_u32 v{KA}, s{S_T0}, v{KA}")
        e.v(f"v_lshlrev_b32 v{VA}, 10, v{MX}")
        e.v(f"v_lshl_add_u32 v{VA}, v{t1}, 1, v{VA}")
        e.v(f"v_add_u32 v{VA}, s{S_T0}, v{VA}")
        e.v(f"v_mov_b32 v{MX}, 0xff800000")
        def qk(cinit):
            for s in range(8): e.bload("buffer_load_dwordx4", FR + 4 * s, 4, KA, SRD_K, f"s{S_T1}", 32 * s)
            e.vmcnt(0)
            for s in range(8): e.mfma(SS, FR + 4 * s, QP + 4 * s, cinit if s == 0 else SS)
        e.s(f"s_mov_b32 s{S_T1}, 0")
        e.label("L_s1"); e.nop(12)
        qk(None)
        for r in range(0, 16, 2): e.v(f"v_max3_f32 v{MX}, v{MX}, v{SS+r}, v{SS+r+1}")
        e.s(f"s_add_u32 s{S_T1}, s{S_T1}, 8192\ns_cmp_lt_u32 s{S_T1}, 0x20000\ns_cbranch_scc1 L_s1")
        e.v(f"v_mov_b32 v{t1}, v{MX}")
        e.v(f"v_permlane32_swap_b32 v{MX}, v{t1}")
        e.v(f"v_max_f32 v{MX}, v{MX}, v{t1}")
        for r in range(16): e.v(f"v_sub_f32 v{CT+r}, 0, v{MX}")
        for r in range(64): e.v(f"v_mov_b32 v{ACC+r}, 0")
        e.v(f"v_mov_b32 v{V_L0}, 0"); e.v(f"v_mov_b32 v{V_L1}, 0")
        e.s(f"s_mov_b32 s{S_T1}, 0")
        e.label("L_s2"); e.nop(12)
        qk(CT)
        for r in range(16): e.v(f"v_exp_f32 v{SS+r}, v{SS+r}")
        for r in range(16): e.v(f"v_add_f32 v{V_L0}, v{V_L0}, v{SS+r}")
        for k in range(8): e.v(f"v_cvt_pk_bf16_f32 v{PP+k}, v{SS+2*k}, v{SS+2*k+1}")
        for u in range(2):
            e.s(f"s_add_u32 s{S_T2}, s{S_T1}, {u*4096}")
            for t in range(4):
                for j in range(8):
                    row = 8 * (j // 4) + j % 4
                    op = "buffer_load_short_d16_hi" if j % 2 else "buffer_load_short_d16"
                    e.bload(op, FR + 4 * t + j // 2, 1, VA, SRD_V, f"s{S_T2}", row * 256 + t * 64)
                    if j % 2 == 0: e.vmcnt(0)
            e.vmcnt(0)
            for t in range(4): e.mfma(ACC + 16 * t, FR + 4 * t, PP + 4 * u, ACC + 16 * t)
            e.nop(8)
        e.s(f"s_add_u32 s{S_T1}, s{S_T1}, 8192\ns_cmp_lt_u32 s{S_T1}, 0x20000\ns_cbranch_scc1 L_s2")
        e.nop(16)
        e.v(f"v_mov_b32 v{T0+2}, 1")
        e.s("s_branch L_norm")

    def build(self):
        e = self.e
        self.plan()
        e.raw(f"""; Fused GQA block (two branches), gfx950.  Generated by the author's own generator script.
; @launch grid=(256,1,1) block=(512,1,1) lds={LDS}
.amdgcn_target "amdgcn-amd-amdhsa--gfx950"
.text
.globl {KN}
.p2align 8
.type {KN},@function
{KN}:""")
        self.prologue()
        self.helper()
        self.compute()
        e.label("L_end"); e.other("s_endpgm")
        e.raw(f""".section .rodata,"a"
.p2align 6
.amdhsa_kernel {KN}
  .amdhsa_next_free_vgpr 248
  .amdhsa_next_free_sgpr 102
  .amdhsa_accum_offset 248
  .amdhsa_group_segment_fixed_size 0
  .amdhsa_kernarg_size 104
  .amdhsa_user_sgpr_count 2
  .amdhsa_user_sgpr_kernarg_segment_ptr 1
  .amdhsa_system_sgpr_workgroup_id_x 1
.end_amdhsa_kernel""")
        assert e.maxv < 248
        return self.paginate(e.out)

    def paginate(self, lines):
        import subprocess, re, tempfile, os
        isins = lambda l: l.startswith("    ") and not l.strip().startswith((";", "."))
        with tempfile.TemporaryDirectory() as d:
            open(d + "/a.s", "w").write("\n".join(lines) + "\n")
            subprocess.run(["clang", "-x", "assembler", "-target", "amdgcn-amd-amdhsa", "-mcpu=gfx950", "-c",
                            "-o", d + "/a.o", d + "/a.s".replace("a.s", "a.s")], check=True)
            dis = subprocess.run(["llvm-objdump", "-d", "--mcpu=gfx950", d + "/a.o"], capture_output=True, text=True).stdout
        enc = [(int(m.group(1), 16), len(m.group(2).split()) * 4, m.group(0)) for m in re.finditer(r"// ([0-9A-F]{12}): ((?:[0-9A-F]{8} ?)+)", dis)]
        sizes = []; j = 0; addr = 0
        for l in lines:
            if l.startswith(".p2align 12"):
                addr = (addr + 4095) // 4096 * 4096
                while enc[j][0] < addr: j += 1
            if isins(l):
                assert enc[j][0] == addr, (l, hex(addr), enc[j])
                sizes.append(enc[j][1]); addr += enc[j][1]; j += 1
        n2 = 0
        while True:
            out, nm = self._marks(lines, sizes, isins, n2)
            if nm == n2: break
            n2 = nm
        return self._touches(out, nm)

    def _marks(self, lines, sizes, isins, n2):
        out = []; paged = False; off = 0; nm = 0; k = 0; self.page0 = None; tot = 0
        for l in lines:
            if l == ";@TOUCH2" and n2: off += 8 + 8 * n2
            if l == ";@PAGED":
                paged = True; off = 0
                if self.page0 is None: self.page0 = tot
                continue
            if l == ";@UNPAGED": paged = False; continue
            if l == ";@MARK":
                if self.c["touch"]:
                    nm += 1; out += [f"L_mk{nm}:", f"    s_cbranch_execz L_rt{nm}"]; off += 4
                continue
            if isins(l):
                sz = sizes[k]; k += 1; tot += sz
                if paged and self.c["touch"]:
                    if off % 4096 and off // 4096 != (off + sz - 1) // 4096:
                        out.append("    s_nop 0"); off += 4
                    if off and off % 4096 == 0:
                        nm += 1; out += [f"L_mk{nm}:", f"    s_cbranch_execz L_rt{nm}"]; off += 4
                off += sz
            out.append(l)
        return out, nm

    def _touches(self, out, nm):
        res = []
        for l in out:
            if l in (";@TOUCH1", ";@TOUCH2"):
                ks = list(range(1, nm + 1))
                if not ks: continue
                res.append("    s_mov_b64 exec, 0")
                for n, kk in enumerate(ks):
                    res += [f"    s_cmp_eq_u32 s{S_WAVE}, {n % 4}", f"    s_cbranch_scc1 L_mk{kk}", f"L_rt{kk}:"]
                res.append("    s_mov_b64 exec, -1")
            else: res.append(l)
        assert self.page0 + 80 < 4096 - 768, self.page0
        self.npages = nm
        return "\n".join(res) + "\n"

if __name__ == "__main__":
    kw = eval("dict(%s)" % (sys.argv[2] if len(sys.argv) > 2 else ""))
    g = Gen(**kw)
    t = g.build()
    open(sys.argv[1], "w").write(t)
    print("page0", g.page0, "marks", g.npages, "nops", g.e.nnop, "waits", g.e.nwait, "lines", len(g.e.out))
    for n in range(-1, len(g.bars)):
        print(g.bars[n] if n >= 0 else "start", [i["name"] for i in g.sched[n]])
```

```python
import sys, math, struct
from emit import *

NAME = "concat_heads__gqa_block_cached__gqa_block_cached__near_ridge"
KN = NAME + "_kernel"

def f2u(f): return struct.unpack("<I", struct.pack("<f", f))[0]

DEF = dict(
    NF=8, L1=5, W1=2, L2=7, W2=4, L3=6, W3=2, GX=8,
    r1b=(0, 2), r1h=4,
    r3b=(1, 2),
    fx="", fq="", fk="", fv="", fo="",
    kvpre=16,
    NREG=0, PACE3=None, PUBG=6, PREPOLL=7, wopos=(11, 12, 13, 14, 15, 16),
    prio_c=0, prio_h=0,
    stamp=0, dump=None, FLAGLAG=2, touch=1, NB3=7, rounds=tuple((i,) for i in range(8)), l2pf=1, TPOS=1, PSLEEP=0, fpoll='sc1', fgat='sc1', fpub='sc1', fflag='sc1', tlbpf=1, kvalt=0, kvrot=1, trace=0, nst=0, NORMV=0, GEARLY=0, FLMAX=8, BY=1, GLATE=1, A3=(2, 2, 3, 4), skip=(), warm=0, warmd=0, SENT=8, CLRJ=2, CLRF=5, noclear=0, B17=1, RSLEEP=4, wsoff=0, fout='', CAP=64, pad=None, nodma=0, tab=None, nopub=0,
)

W0 = 0; KR = 98304; VR = 131072; LDS = 163840
XSLOT = [KR, KR + 8192, VR, KR + 16384, VR + 8192, KR + 24576, VR + 16384, VR + 24576]
WOSLOT = [0, 32768, 65536, VR, KR, 0, 32768, 65536]
WS_X = 0
WS_F = 16 << 20
WS_DBG = 17 << 20
WS_SIZE = 32 << 20
S_WAVE, S_BR, S_B, S_HP, S_D = 3, 4, 5, 6, 7
SRD_X, SRD_K, SRD_V, SRD_WQ, SRD_WO, SRD_WS, SRD_OUT, SRD_DBG = 8, 12, 16, 20, 24, 28, 32, 36
S_GRP, S_R1, S_R3, S_T0, S_T1, S_T2, S_T3 = 40, 41, 42, 43, 44, 45, 46
S_CX, S_CQ, S_CKV, S_CO, S_M2, S_M4, S_FIN, S_SC = 47, 48, 49, 50, 51, 52, 53, 54
S_CNT = 56
S_CLR = 100
S_KP, S_KQ, S_KE, S_KF = 96, 97, 98, 99
S_STAMP = 60
V_LANE = 1
A_WQ = 2
A_X = 10
A_K = 14
A_V = 22
A_WO = 26
V_PUB, V_FLG, V_XW, V_XR, V_L0, V_L1 = 32, 33, 34, 35, 36, 37
T0 = 38
FR = 48
XB = 80
PP = 80
QP = 92
ACC = 128
SS = 192
CT = 224
OWN = 192
OTH = 128
AC3A, AC3B = 224, 160
PK = 176
V_ONE, V_RDY = 240, 241
V_M1 = 244
H_X, H_Q, H_K, H_V, H_O = 2, 4, 8, 10, 12
H_G, H_F, H_OUT, H_T = 16, 17, 18, 19
H_ACC = 24
H_TMP = 32
H_BUF = 160
H_REG = 64
H_W = 40


class Gen:
    def __init__(self, **kw):
        self.c = dict(DEF); self.c.update(kw)
        for k in kw: assert k in DEF, k
        self.e = Em()
        self.nst = {"c": 0, "h": 0}
        self.stamp_names = {"c": [], "h": []}

    def stamp(self, who, name):
        if not self.c["stamp"]: return
        if self.c["nst"] and who == "c" and name in ("setup", "preB1_0", "postB1_0", "preB1_8", "postBK_0", "preBK_1", "preBK_8"): return
        if name.startswith("n_") and not self.c["nst"]: return
        k = self.nst[who]; self.nst[who] += 1
        assert k < 19
        self.stamp_names[who].append(name)
        self.e.other(f"{'s_memrealtime' if self.c['stamp'] == 2 else 's_memtime'} s[{S_STAMP+2*k}:{S_STAMP+2*k+1}]")

    def write_stamps(self, who):
        if not self.c["stamp"]: return
        e = self.e
        if self.c["pad"]:
            T, w, nm = self.c["pad"]
            if w == who:
                k = self.stamp_names[who].index(nm)
                e.lgkm(0)
                e.s(f"s_add_u32 s{S_T0}, s{S_STAMP+2*k}, {T//10}")
                e.label(f"L_pad{who}")
                e.other("s_memrealtime s[98:99]"); e.lgkm(0)
                e.s(f"s_sub_u32 s{S_T1}, s98, s{S_T0}\ns_cmp_lt_i32 s{S_T1}, 0\ns_cbranch_scc1 L_pad{who}")
            return
        e.other("s_memrealtime s[98:99]")
        e.lgkm(0)
        e.v("v_mov_b32 v44, 0")
        for k in range(self.nst[who]): e.v(f"v_writelane_b32 v44, s{S_STAMP+2*k}, {k}")
        e.v("v_writelane_b32 v44, s98, 30"); e.v("v_writelane_b32 v44, s58, 31")
        e.v(f"v_lshlrev_b32 v45, 2, v{V_LANE}")
        e.s(f"s_lshl_b32 s{S_T0}, s2, 3\ns_add_u32 s{S_T0}, s{S_T0}, s{S_WAVE}\ns_lshl_b32 s{S_T0}, s{S_T0}, 8\ns_add_u32 s{S_T0}, s{S_T0}, {WS_DBG}")
        e.bstore("buffer_store_dword", 44, 1, 45, SRD_WS, f"s{S_T0}")
        if self.c["trace"] and who == "h":
            e.s(f"s_add_u32 s{S_T0}, s{S_T0}, 0x80000")
            e.bstore("buffer_store_dword", 46, 1, 45, SRD_WS, f"s{S_T0}")

    def plan(self):
        c = self.c
        bars = [f"B1_{k}" for k in range(16)] + [f"BK_{k}" for k in range(17 + c["B17"])] + ["BX"] + ["BY"] * c["BY"] + [f"B3_{k}" for k in range(2, c["NB3"] + 1)]
        bi = {n: i for i, n in enumerate(bars)}
        items = {}
        def add(name, lds, after, needed): items[name] = dict(name=name, lds=lds, after=after, need=needed)
        xfree = lambda cc: bi[f"B1_{2*cc+3}"] if cc <= 6 else bi["BK_0"]
        qfree = lambda kt: bi[f"B1_{kt+2}"] if kt <= 13 else bi["BK_0"]
        for cc in range(8): add(f"x{cc}", XSLOT[cc], -1, bi[f"B1_{2*cc}"])
        for kt in range(16): add(f"q{kt}", W0 + (kt % 6) * 16384, -1 if kt < 6 else qfree(kt - 6), bi[f"B1_{kt}"])
        for j in range(16):
            a = KR + (j % 4) * 8192
            add(f"k{j}", a, xfree(XSLOT.index(a)) if j < 4 else bi[f"BK_{max(j-3, 2)}"], bi[f"BK_{j}"])
            a = VR + (j % 4) * 8192
            add(f"v{j}", a, xfree(XSLOT.index(a)) if j < 4 else bi[f"BK_{j-1}"], bi[f"BK_{j+1}"])
        NREG = c["NREG"]
        for i in range(8):
            for hf in range(2):
                a = WOSLOT[i] + hf * 16384
                if i < 3:
                    last = max(kt for kt in range(16) if (kt % 6) * 16384 == a)
                    aft = qfree(last)
                else: aft = bi["BK_17" if c["B17"] else "BX"] if i == 3 else (bi["BY"] if (i == 4 and c["BY"]) else bi[f"B3_{c['A3'][i-4]}"])
                if i >= 8 - NREG:
                    add(f"o{i}{'ab'[hf]}", a, -1, aft)
                    items[f"o{i}{'ab'[hf]}"]["reg"] = H_REG + 32 * (i - (8 - NREG)) + 16 * hf
                else:
                    add(f"o{i}{'ab'[hf]}", a, aft, bi[f"BK_{16 + c['B17']}"] if i <= 1 else bi[f"B3_{min(i, c['NB3'])}"])
        order = []
        kvq = ["k0", "k1", "v0", "k2", "v1", "k3", "v2"]
        for kt in range(16):
            if kt % 2 == 0: order.append(f"x{kt//2}")
            order.append(f"q{kt}")
            if kt + 1 >= c["kvpre"] and kt < 15 and kvq and items[kvq[0]]["after"] <= items[f"q{kt}"]["after"]:
                order.append(kvq.pop(0))
        order += kvq
        wo = [f"o{i}{h}" for i in list(range(3)) + list(range(8 - NREG, 8)) for h in "ab"]
        wp = list(c["wopos"])
        order.append("v3")
        for n in range(0, 17):
            if 4 <= n + 1 <= 15: order.append(f"v{n+1}")
            if n == 2: order.append("k4")
            if 5 <= n + 3 <= 15: order.append(f"k{n+3}")
            while wp and wo and wp[0] <= n:
                nm = wo.pop(0); wp.pop(0)
                items[nm]["after"] = max(items[nm]["after"], bi[f"BK_{n}"])
                order.append(nm)
        order += wo
        order += [f"o{i}{h}" for i in range(3, 8 - NREG) for h in "ab"]
        assert sorted(order) == sorted(items), (set(items) - set(order), len(order), len(items))
        cur = -1
        sched = {i: [] for i in range(-1, len(bars))}
        size = lambda n: 16 if n[0] in "qo" else 8
        issued = []
        nP1 = bi["BK_0"]
        for n in order:
            it = items[n]
            cur = max(cur, it["after"])
            while cur < nP1 and sum(size(m) for m in issued if items[m]["need"] > cur) + size(n) > c["CAP"]:
                cur += 1
            assert cur < it["need"], (n, bars[cur], bars[it["need"]])
            sched[cur].append(it); issued.append(n)
        self.bars, self.bi, self.items, self.sched, self.order = bars, bi, items, sched, order

    def prologue(self):
        e, c = self.e, self.c
        e.s("s_cmp_ge_u32 s2, 256\ns_cbranch_scc1 L_end")
        if c["stamp"]: e.other("s_memrealtime s[58:59]")
        e.s(f"""
s_and_b32 s{S_T0}, s2, 7
s_lshr_b32 s{S_BR}, s{S_T0}, 2
s_mul_i32 s{S_T1}, s{S_BR}, 40
s_add_u32 s{S_T2}, s0, s{S_T1}
s_addc_u32 s{S_T3}, s1, 0""")
        assert S_T3 == S_T2 + 1
        e.s(f"s_mov_b32 s56, s{S_T2}\ns_mov_b32 s57, s{S_T3}")
        for srd, off in ((SRD_X, 0), (SRD_WQ, 24), (SRD_K, 8), (SRD_V, 16), (SRD_WO, 32)):
            e.other(f"s_load_dwordx2 s[{srd}:{srd+1}], s[56:57], {off}")
        for srd, off in ((SRD_OUT, 80), (SRD_DBG, 88), (SRD_WS, 96)):
            e.other(f"s_load_dwordx2 s[{srd}:{srd+1}], s[0:1], {off}")
        self.stamp("c", "start"); self.nst["h"] = self.nst["c"]; self.stamp_names["h"] = list(self.stamp_names["c"])
        e.v(f"v_lshrrev_b32 v2, 6, v0")
        e.v(f"v_and_b32 v{V_LANE}, 63, v0")
        e.v(f"v_readfirstlane_b32 s{S_WAVE}, v2")
        for srd, n in ((SRD_X, 512 << 10), (SRD_K, 8 << 20), (SRD_V, 8 << 20), (SRD_WQ, 4 << 20), (SRD_WO, 4 << 20),
                       (SRD_WS, WS_SIZE), (SRD_OUT, 1 << 20), (SRD_DBG, 256)):
            e.s(f"s_mov_b32 s{srd+2}, {n}\ns_mov_b32 s{srd+3}, 0x20000")
        e.s(f"""
s_and_b32 s{S_T0}, s{S_T0}, 3
s_lshr_b32 s{S_T1}, s2, 3
s_and_b32 s{S_B}, s{S_T1}, 7
s_lshr_b32 s{S_T1}, s{S_T1}, 3
s_lshl_b32 s{S_T0}, s{S_T0}, 2
s_add_u32 s{S_HP}, s{S_T0}, s{S_T1}
s_lshl_b32 s{S_GRP}, s{S_BR}, 3
s_add_u32 s{S_GRP}, s{S_GRP}, s{S_B}
s_lshr_b32 s{S_T0}, s{S_B}, {c['r1b'][0]}
s_mul_i32 s{S_T0}, s{S_T0}, {c['r1b'][1]}
s_mul_i32 s{S_T1}, s{S_T1}, {c['r1h']}
s_add_u32 s{S_R1}, s{S_T0}, s{S_T1}
s_and_b32 s{S_R1}, s{S_R1}, 15
s_lshr_b32 s{S_T0}, s{S_B}, {c['r3b'][0]}
s_mul_i32 s{S_T0}, s{S_T0}, {2*c['r3b'][1]}
s_add_u32 s{S_D}, s{S_HP}, s{S_T0}
s_and_b32 s{S_D}, s{S_D}, 15
s_lshr_b32 s{S_R3}, s{S_D}, 1
s_add_u32 s{S_R3}, s{S_R3}, 1
s_and_b32 s{S_R3}, s{S_R3}, 7
s_cmp_ge_u32 s{S_WAVE}, 4
s_cbranch_scc1 L_helper""")
        self.compute_setup()
        e.s("s_branch L_compute")

    def helper(self):
        e, c = self.e, self.c
        L = V_LANE
        e.label("L_helper"); e.hist = []
        HW = S_T3
        e.s(f"s_sub_u32 s{HW}, s{S_WAVE}, 4")
        if c["prio_h"]: e.other(f"s_setprio {c['prio_h']}")
        t, u = 20, 21
        e.v(f"v_lshrrev_b32 v{t}, 3, v{L}")
        e.s(f"s_lshl_b32 s{S_T0}, s{HW}, 4\ns_lshl_b32 s{S_T1}, s{S_B}, 6\ns_add_u32 s{S_T0}, s{S_T0}, s{S_T1}")
        e.v(f"v_add_lshl_u32 v{H_X}, v{t}, s{S_T0}, 10")
        e.v(f"v_lshrrev_b32 v{u}, 4, v{L}")
        e.v(f"v_and_b32 v22, 7, v{L}")
        e.v(f"v_xor_b32 v22, v22, v{u}")
        e.v(f"v_xor_b32 v23, 4, v22")
        e.v(f"v_lshl_add_u32 v{H_X+1}, v23, 4, v{H_X}")
        e.v(f"v_add_u32 v{H_X+1}, {8*1024-1024}, v{H_X+1}")
        e.v(f"v_lshl_add_u32 v{H_X}, v22, 4, v{H_X}")
        e.v(f"v_lshrrev_b32 v22, 5, v{L}")
        e.s(f"s_lshl_b32 s{S_T0}, s{HW}, 3\ns_lshl_b32 s{S_T1}, s{S_HP}, 9")
        e.v(f"v_add_lshl_u32 v23, v22, s{S_T0}, 13")
        e.v(f"v_add_u32 v23, s{S_T1}, v23")
        e.v(f"v_lshlrev_b32 v22, 2, v22")
        e.v(f"v_and_b32 v19, 31, v{L}")
        e.v(f"v_xor_b32 v22, v22, v19")
        e.v(f"v_lshl_add_u32 v{H_Q}, v22, 4, v23")
        e.v(f"v_xor_b32 v22, 8, v22")
        e.v(f"v_lshl_add_u32 v{H_Q+1}, v22, 4, v23")
        e.v(f"v_add_u32 v{H_Q+2}, {2*(16384-1024)}, v{H_Q}")
        e.v(f"v_add_u32 v{H_Q+3}, {3*(16384-1024)}, v{H_Q+1}")
        e.v(f"v_add_u32 v{H_Q+1}, {16384-1024}, v{H_Q+1}")
        e.s(f"""s_lshl_b32 s{S_CQ}, s{S_R1}, 18
s_lshl_b32 s{S_CX}, s{S_R1}, 6
s_lshl_b32 s{S_M2}, s{HW}, 11
s_lshl_b32 s{S_M4}, s{HW}, 12""")
        first = list(self.sched[-1])
        e.other("s_waitcnt lgkmcnt(0)")
        self.wsoff()
        self.hseq = 0
        nfirst = 0
        while nfirst < len(first) and first[nfirst]["name"][0] in "xq" and nfirst < 3:
            self.issue(first[nfirst]); nfirst += 1
        e.s(f"""s_lshr_b32 s{S_T0}, s{S_HP}, 1
s_lshl_b32 s{S_T1}, s{S_B}, 3
s_add_u32 s{S_T0}, s{S_T0}, s{S_T1}
s_lshl_b32 s{S_T0}, s{S_T0}, 17
s_lshl_b32 s{S_T1}, s{HW}, 11
s_add_u32 s{S_T0}, s{S_T0}, s{S_T1}
s_and_b32 s{S_T1}, s{HW}, 1
s_lshl_b32 s{S_T1}, s{S_T1}, 3""")
        e.v(f"v_lshlrev_b32 v23, 8, v{u}")
        e.v(f"v_add_u32 v23, s{S_T0}, v23")
        e.v(f"v_and_b32 v19, 15, v{L}")
        e.v(f"v_add_u32 v22, s{S_T1}, v{u}")
        e.v(f"v_xor_b32 v22, v22, v19")
        e.v(f"v_lshl_add_u32 v{H_K}, v22, 4, v23")
        e.v(f"v_xor_b32 v22, 4, v22")
        e.v(f"v_lshl_add_u32 v{H_K+1}, v22, 4, v23")
        e.v(f"v_lshlrev_b32 v22, 2, v{u}")
        e.v(f"v_xor_b32 v22, v22, v19")
        e.v(f"v_lshl_add_u32 v{H_V}, v22, 4, v23")
        if c["kvrot"] and not c["kvalt"]:
            e.s(f"""s_lshr_b32 s{S_T0}, s{S_HP}, 1
s_and_b32 s{S_T0}, s{S_T0}, 1
s_lshl_b32 s{S_T0}, s{S_T0}, 3
s_add_u32 s{S_T0}, s{S_T0}, s{S_B}
s_mul_i32 s{S_T0}, s{S_T0}, {c['kvrot']}
s_and_b32 s{S_T0}, s{S_T0}, 15
s_lshl_b32 s{S_KP}, s{S_T0}, 13""")
        if c["kvalt"]:
            e.s(f"""s_and_b32 s{S_T0}, s{S_HP}, 1
s_lshl_b32 s{S_T0}, s{S_T0}, 14
s_and_b32 s{S_T1}, s{S_B}, 1""")
            if c["kvalt"] == 2: e.s(f"s_mov_b32 s{S_T1}, 0")
            e.s(f"""s_cmp_eq_u32 s{S_T1}, 0
s_cselect_b32 s{S_KE}, s{S_T0}, 0
s_cselect_b32 s{S_T1}, 0, s{S_T0}
s_sub_u32 s{S_KP}, s{S_KE}, s{S_T1}
s_sub_u32 s{S_KQ}, s{S_T1}, s{S_KE}
s_sub_u32 s{S_KF}, 0, s{S_KE}""")
        e.s(f"s_lshl_b32 s{S_T0}, s{HW}, 5\ns_lshl_b32 s{S_T1}, s{S_HP}, 8\ns_add_u32 s{S_T0}, s{S_T0}, s{S_T1}")
        e.v(f"v_add_lshl_u32 v23, v{t}, s{S_T0}, 10")
        e.v(f"v_and_b32 v22, 1, v{u}")
        e.v(f"v_lshlrev_b32 v22, 2, v22")
        e.v(f"v_and_b32 v19, 7, v{L}")
        e.v(f"v_xor_b32 v22, v22, v19")
        e.v(f"v_lshl_add_u32 v{H_O}, v22, 4, v23")
        for k in range(1, 4): e.v(f"v_add_u32 v{H_O+k}, {k*(8192-1024)}, v{H_O}")
        e.v(f"v_lshl_add_u32 v{H_W}, v{L}, 4, s{S_M4}")
        e.v(f"v_add_u32 v{H_W+1}, 0x10000, v{H_W}")
        e.s(f"""s_lshl_b32 s{S_T0}, s{S_GRP}, 4
s_add_u32 s{S_T0}, s{S_T0}, s{S_D}
s_lshl_b32 s{S_T1}, s{S_T0}, 7
s_add_u32 s{S_T1}, s{S_T1}, {WS_F}
s_lshl_b32 s{S_T0}, s{S_T0}, 16
s_and_b32 s{S_T2}, s{HW}, 1
s_lshl_b32 s{S_T2}, s{S_T2}, 11
s_add_u32 s{S_T0}, s{S_T0}, s{S_T2}
s_lshr_b32 s{S_T2}, s{HW}, 1
s_lshl_b32 s{S_T2}, s{S_T2}, 10
s_add_u32 s{S_T0}, s{S_T0}, s{S_T2}""")
        e.v(f"v_lshl_add_u32 v{H_G}, v{L}, 4, s{S_T0}")
        e.v(f"v_and_b32 v22, 31, v{L}")
        e.v(f"v_lshl_add_u32 v{H_F}, v22, 2, s{S_T1}")
        e.s(f"""s_lshl_b32 s{S_T0}, s{S_B}, 1
s_and_b32 s{S_T1}, s{HW}, 1
s_add_u32 s{S_T0}, s{S_T0}, s{S_T1}
s_lshl_b32 s{S_T0}, s{S_T0}, 16
s_lshl_b32 s{S_T1}, s{S_BR}, 10
s_add_u32 s{S_T0}, s{S_T0}, s{S_T1}
s_lshl_b32 s{S_T1}, s{S_D}, 6
s_add_u32 s{S_T0}, s{S_T0}, s{S_T1}
s_lshr_b32 s{S_T1}, s{HW}, 1
s_lshl_b32 s{S_T1}, s{S_T1}, 4
s_add_u32 s{S_T0}, s{S_T0}, s{S_T1}""")
        e.v(f"v_lshl_add_u32 v{H_OUT}, v22, 11, s{S_T0}")
        e.v(f"v_lshrrev_b32 v22, 5, v{L}")
        e.v(f"v_lshl_add_u32 v{H_OUT}, v22, 5, v{H_OUT}")
        e.v(f"v_and_b32 v{H_T}, 3, v{L}")
        e.v(f"v_lshlrev_b32 v{H_T}, 13, v{H_T}")
        e.v(f"v_add_u32 v{H_T}, {KR}, v{H_T}")
        for it in first[nfirst:]: self.issue(it)
        self.stamp("h", "issued0")
        waited = -1; self.prepolled = False
        if c["trace"]: e.v("v_mov_b32 v46, 0")
        for n, bn in enumerate(self.bars):
            lastneed = max([it["last"] for it in self.items.values() if it["need"] <= n and "last" in it] + [-1])
            assert all("last" in it for it in self.items.values() if it["need"] <= n)
            if lastneed > waited and not c["nodma"]:
                e.vmcnt(self.hseq - 1 - lastneed); waited = lastneed
            if e.pend: e.lgkm(0)
            if bn in ("B1_0", "B1_8", "BK_0", "BK_8", "BK_16", "B3_4", "B3_6"): self.stamp("h", "pre" + bn)
            e.barrier()
            if c["trace"]:
                e.other("s_memrealtime s[94:95]"); e.other("s_waitcnt lgkmcnt(0)")
                e.v(f"v_writelane_b32 v46, s94, {n}")
            if bn == "BX":
                e.ds32(22, H_T)
                e.v("v_cmp_eq_u32 vcc, -1, v22")
                e.s(f"s_cbranch_vccnz L_hslow")
                e.label("L_hgo")
            for it in self.sched[n]: self.issue(it)
            if bn == f"B3_{c['PREPOLL']}" and not c["nodma"]:
                e.bload("buffer_load_dword", 22, 1, H_F, SRD_WS, "0", flags=c["fpoll"])
                self.hseq += 1; self.prepolled = True
            for it in self.items.values():
                if "reg" in it and it["need"] == n:
                    for j in range(4):
                        a = it["lds"] + 1024 * j
                        e.ds_write("ds_write_b128", H_W + (a >> 16), it["reg"] + 4 * j, 4, a & 0xffff)
            if bn == "B1_9":
                e.s("s_branch L_h2"); e.raw(".p2align 12\nL_pg1:\n;@PAGED\n;@MARK"); e.label("L_h2")
        OWNA = H_T
        e.s(f"""s_and_b32 s{S_T2}, s{S_WAVE}, 1
s_and_b32 s{S_CX}, s{S_D}, 1
s_xor_b32 s{S_CX}, s{S_CX}, 1
s_lshl_b32 s{S_CQ}, s{S_CX}, 1
s_add_u32 s{S_CQ}, s{S_CQ}, 28
s_lshl_b32 s{S_CQ}, 1, s{S_CQ}
s_lshl_b32 s{S_CX}, s{S_CX}, 12
s_add_u32 s{S_CX}, s{S_CX}, {14*4096}
s_sub_u32 s{S_T0}, s{S_WAVE}, 4
s_lshr_b32 s{S_T0}, s{S_T0}, 1
s_lshl_b32 s{S_T0}, s{S_T0}, 11
s_lshl_b32 s{S_T1}, s{S_T2}, 12
s_add_u32 s{S_T0}, s{S_T0}, s{S_T1}
s_add_u32 s{S_T0}, s{S_T0}, {VR}""")
        e.v(f"v_lshl_add_u32 v{OWNA}, v{L}, 4, s{S_T0}")
        first_acc = [True]
        if c['SENT'] == 0:
            for j in range(8): e.v(f'v_mov_b32 v{H_ACC+j}, 0')
            first_acc[0] = False
        def accum(k):
            dst = H_ACC if first_acc[0] else H_TMP
            for j in range(4):
                e.v(f"v_lshlrev_b32 v{dst+2*j}, 16, v{H_BUF+4*k+j}")
                e.v(f"v_and_b32 v{dst+2*j+1}, 0xffff0000, v{H_BUF+4*k+j}")
            if not first_acc[0]:
                for j in range(4):
                    e.v(f"v_pk_add_f32 v[{H_ACC+2*j}:{H_ACC+2*j+1}], v[{H_ACC+2*j}:{H_ACC+2*j+1}], v[{H_TMP+2*j}:{H_TMP+2*j+1}]")
            first_acc[0] = False
        prev = []
        e.s(f"s_mov_b32 s{S_CNT}, 0")
        def be():
            e.barrier()
            e.ds128(H_BUF + 60, OWNA, 0); e.ds128(H_BUF + 64, OWNA, 1024)
        if c["GLATE"] and not c["GEARLY"]: be()
        if not self.prepolled:
            e.bload("buffer_load_dword", 22, 1, H_F, SRD_WS, "0", flags=c["fpoll"])
        e.vmcnt(0)
        e.v("v_cmp_eq_u32 vcc, 1, v22")
        SENT = c["SENT"]
        rounds = [tuple(i for i in st if i < SENT) for st in c["rounds"]]
        rounds = [st for st in rounds if st] or [()]
        for r, steps in enumerate(rounds):
            fsteps = tuple(steps) + (tuple(range(SENT, 8)) if r == 0 else ())
            mask = sum(5 << (4 * i) for i in fsteps if i < 7)
            e.s(f"s_mov_b32 s{S_CKV}, {mask:#x}")
            if 7 in fsteps: e.s(f"s_or_b32 s{S_CKV}, s{S_CKV}, s{S_CQ}")
            e.s(f"s_lshl_b32 s{S_CKV}, s{S_CKV}, s{S_T2}")
            if c["GLATE"] and c["GEARLY"] and steps and steps[0] == c["GEARLY"]: be()
            e.label(f"L_poll{r}")
            e.s(f"s_and_b32 s{S_T0}, vcc_lo, s{S_CKV}\ns_cmp_eq_u32 s{S_T0}, s{S_CKV}\ns_cbranch_scc1 L_got{r}")
            if c["PSLEEP"]: e.other(f"s_sleep {c['PSLEEP']}")
            e.bload("buffer_load_dword", 22, 1, H_F, SRD_WS, "0", flags=c["fpoll"])
            e.s(f"s_add_u32 s{S_CNT}, s{S_CNT}, 1")
            e.vmcnt(0)
            e.v("v_cmp_eq_u32 vcc, 1, v22")
            e.s(f"s_cmp_lt_u32 s{S_CNT}, 0x40000\ns_cbranch_scc1 L_poll{r}")
            e.label(f"L_got{r}"); e.hist = []
            if 0 in steps or 3 in steps or 5 in steps or 7 in steps: self.stamp("h", f"got{r}")
            for i in steps:
                for p in range(1 if i == 7 else 2):
                    k = 2 * i + p
                    if i == 7: so = f"s{S_CX}"
                    elif k == 0: so = "0"
                    else:
                        e.s(f"s_mov_b32 s{S_T0}, {k*4096}"); so = f"s{S_T0}"
                    e.bload("buffer_load_dwordx4", H_BUF + 4 * k, 4, H_G, SRD_WS, so, flags=c["fgat"])
                    prev.append(k)
        def own():
            if c["GLATE"]: return
            e.barrier()
            e.ds128(H_BUF + 60, OWNA, 0); e.ds128(H_BUF + 64, OWNA, 1024)
        def ownadd():
            for j in range(4):
                e.v(f"v_pk_add_f32 v[{H_ACC+2*j}:{H_ACC+2*j+1}], v[{H_ACC+2*j}:{H_ACC+2*j+1}], v[{H_BUF+60+2*j}:{H_BUF+61+2*j}]")
        if SENT > 7:
            nearly = len(prev) - 3
            for n, k in enumerate(prev[:nearly]):
                e.vmcnt(len(prev) - 1 - n); accum(k)
            prev = prev[nearly:]
            own(); ownadd()
            for n, k in enumerate(prev):
                e.vmcnt(len(prev) - 1 - n); accum(k)
        else:
            own()
            self.stamp("h", "BE")
            for n, k in enumerate(prev):
                e.vmcnt(len(prev) - 1 - n); accum(k)
            ownadd()
            ks = [2 * i + p for i in range(SENT, 8) for p in range(1 if i == 7 else 2)]
            e.s(f"s_mov_b32 s{S_CNT}, 0")
            for k in ks:
                e.label(f"L_si{k}"); e.hist = []
                if k == 14: so = f"s{S_CX}"
                else:
                    e.s(f"s_mov_b32 s{S_T0}, {k*4096}"); so = f"s{S_T0}"
                e.bload("buffer_load_dwordx4", H_BUF + 4 * k, 4, H_G, SRD_WS, so, flags=c["fgat"])
            e.s(f"s_add_u32 s{S_CNT}, s{S_CNT}, 1\ns_cmp_ge_u32 s{S_CNT}, 0x40000\ns_cbranch_scc1 L_sdone")
            e.vmcnt(0)
            for k in ks:
                b = H_BUF + 4 * k
                e.v(f"v_max3_u32 v22, v{b}, v{b+1}, v{b+2}")
                e.v(f"v_max_u32 v22, v22, v{b+3}")
                e.v("v_cmp_eq_u32 vcc, -1, v22")
                e.s(f"s_cbranch_vccz L_sok{k}")
                if c["RSLEEP"]: e.other(f"s_sleep {c['RSLEEP']}")
                e.s(f"s_branch L_si{k}")
                e.label(f"L_sok{k}")
            e.label("L_sdone"); e.hist = []
            e.vmcnt(0)
            self.stamp("h", "sent")
            for k in ks: accum(k)
        for j in range(4): e.v(f"v_cvt_pk_bf16_f32 v{H_TMP+j}, v{H_ACC+2*j}, v{H_ACC+2*j+1}")
        e.bstore("buffer_store_dwordx4", H_TMP, 4, H_OUT, SRD_OUT, "0", flags=c["fout"])
        self.stamp("h", "stored")
        if c["stamp"]:
            e.vmcnt(0); self.stamp("h", "end")
        self.write_stamps("h")
        e.other("s_endpgm")
        e.label("L_hslow"); e.hist = []
        e.barrier()
        e.barrier()
        e.s("s_branch L_hgo")

    def wsoff(self):
        if self.c["wsoff"]:
            self.e.s(f"s_add_u32 s{SRD_WS}, s{SRD_WS}, {self.c['wsoff'] << 20}\ns_addc_u32 s{SRD_WS+1}, s{SRD_WS+1}, 0")

    def issue(self, it):
        e, c = self.e, self.c
        n = it["name"]; k = n[0]
        if c["nodma"]:
            cnt = 0
        elif k == "x":
            e.s(f"s_add_u32 m0, s{S_M2}, {it['lds']}")
            e.dma(H_X, SRD_X, f"s{S_CX}", 0, c["fx"]); e.dma(H_X + 1, SRD_X, f"s{S_CX}", 1024, c["fx"])
            if n != "x7": e.s(f"s_add_u32 s{S_CX}, s{S_CX}, 128\ns_and_b32 s{S_CX}, s{S_CX}, 0x3ff")
            cnt = 2
        elif k == "q":
            e.s(f"s_add_u32 m0, s{S_M4}, {it['lds']}")
            for j in range(4): e.dma(H_Q + j, SRD_WQ, f"s{S_CQ}", 1024 * j, c["fq"])
            if n != "q15": e.s(f"s_add_u32 s{S_CQ}, s{S_CQ}, 0x40000\ns_and_b32 s{S_CQ}, s{S_CQ}, 0x3fffff")
            cnt = 4
        elif k in "kv":
            j = int(n[1:])
            e.s(f"s_add_u32 m0, s{S_M2}, {it['lds']}")
            if c["kvalt"]:
                sreg = S_KE if j < 2 else (S_KF if j >= 14 else (S_KP if j % 4 < 2 else S_KQ))
                e.s(f"s_add_u32 s{S_CKV}, s{sreg}, {j*8192}")
            elif c["kvrot"]: e.s(f"s_add_u32 s{S_CKV}, s{S_KP}, {j*8192}\ns_and_b32 s{S_CKV}, s{S_CKV}, 0x1ffff")
            else: e.s(f"s_mov_b32 s{S_CKV}, {j*8192}")
            if k == "k":
                e.dma(H_K, SRD_K, f"s{S_CKV}", 0, c["fk"]); e.dma(H_K + 1, SRD_K, f"s{S_CKV}", 1024, c["fk"])
            else:
                e.dma(H_V, SRD_V, f"s{S_CKV}", 0, c["fv"]); e.dma(H_V, SRD_V, f"s{S_CKV}", 1024, c["fv"])
            cnt = 2
        else:
            if "reg" not in it: e.s(f"s_add_u32 m0, s{S_M4}, {it['lds']}")
            if n[2] == "a":
                e.s(f"s_add_u32 s{S_CO}, s{S_R3}, {n[1]}\ns_and_b32 s{S_CO}, s{S_CO}, 7\ns_lshl_b32 s{S_CO}, s{S_CO}, 7")
            else: e.s(f"s_add_u32 s{S_CO}, s{S_CO}, 0x20000")
            for j in range(4):
                if "reg" in it: e.bload("buffer_load_dwordx4", it["reg"] + 4 * j, 4, H_O + j, SRD_WO, f"s{S_CO}", 1024 * j, c["fo"])
                else:
                    if c["PACE3"] is not None and int(n[1]) >= 3: e.vmcnt(c["PACE3"])
                    e.dma(H_O + j, SRD_WO, f"s{S_CO}", 1024 * j, c["fo"])
            cnt = 4
        self.hseq += cnt
        it["last"] = self.hseq - 1

    def wave0_only(self, fn, tag, sreg=S_WAVE):
        e = self.e
        e.s(f"s_cmp_lg_u32 s{sreg}, 0\ns_cbranch_scc1 L_w0_{tag}")
        h0 = len(e.out); mark = list(e.hist)
        fn()
        blk = [i for i in e.hist if i not in mark]
        for i in blk: i.states = 0
        e.label(f"L_w0_{tag}")

    def compute_setup(self):
        e, c = self.e, self.c
        L = V_LANE
        if c["prio_c"]: e.other(f"s_setprio {c['prio_c']}")
        if c["l2pf"]:
            e.other("s_getpc_b64 s[92:93]")
            e.s(f"s_and_b32 s92, s92, 0xfffff000\ns_mov_b32 s94, L_end-L_pg1+4096\ns_mov_b32 s95, 0x20000\ns_lshr_b32 s{S_T0}, s2, 3\ns_lshl_b32 s{S_T0}, s{S_T0}, 10")
            e.v(f"v_lshlrev_b32 v48, 7, v{L}")
            e.v(f"v_lshrrev_b32 v49, 3, v{L}")
            e.v(f"v_lshl_or_b32 v48, v49, 28, v48")
            self.wave0_only(lambda: e.bload("buffer_load_dword", 242, 1, 48, 92, f"s{S_T0}"), "pf")
        MB, HH = S_T0, S_T1
        e.s(f"s_and_b32 s{MB}, s{S_WAVE}, 1\ns_lshr_b32 s{HH}, s{S_WAVE}, 1")
        h, rr, g, c0, c1, l32, a, b = 48, 49, 50, 51, 52, 53, 54, 55
        e.v(f"v_lshrrev_b32 v{h}, 5, v{L}")
        e.v(f"v_bfe_u32 v{rr}, v{L}, 2, 2")
        e.v(f"v_bfe_u32 v{g}, v{L}, 4, 1")
        e.v(f"v_and_b32 v{c0}, 1, v{L}")
        e.v(f"v_bfe_u32 v{c1}, v{L}, 1, 1")
        e.v(f"v_and_b32 v{l32}, 31, v{L}")
        e.v(f"v_lshl_add_u32 v{a}, v{h}, 3, v{rr}")
        e.v(f"v_lshlrev_b32 v{a}, 9, v{a}")
        e.s(f"s_lshl_b32 s{S_T2}, s{HH}, 8")
        e.v(f"v_lshl_add_u32 v{a}, v{g}, 5, v{a}")
        e.v(f"v_lshl_add_u32 v{a}, v{c0}, 4, v{a}")
        e.v(f"v_lshl_add_u32 v{a}, v{c1}, 3, v{a}")
        e.v(f"v_add_u32 v{a}, s{S_T2}, v{a}")
        e.v(f"v_lshl_add_u32 v{A_WQ}, v{rr}, 6, v{a}")
        for t in range(1, 4): e.v(f"v_xor_b32 v{A_WQ+t}, {t<<6}, v{A_WQ}")
        for t in range(4): e.v(f"v_add_u32 v{A_WQ+4+t}, 0x10000, v{A_WQ+t}")
        e.s(f"s_lshl_b32 s{S_T2}, s{MB}, 12\ns_add_u32 s{S_T2}, s{S_T2}, {KR}")
        e.v(f"v_lshl_add_u32 v{a}, v{l32}, 7, s{S_T2}")
        e.v(f"v_bfe_u32 v{b}, v{L}, 1, 3")
        e.v(f"v_xor_b32 v{b}, v{b}, v{h}")
        e.v(f"v_lshl_add_u32 v{A_X}, v{b}, 4, v{a}")
        for s in range(1, 4): e.v(f"v_xor_b32 v{A_X+s}, {s<<5}, v{A_X}")
        e.v(f"v_lshlrev_b32 v{a}, 8, v{l32}")
        e.v(f"v_add_u32 v{a}, {KR}, v{a}")
        e.v(f"v_and_b32 v{b}, 15, v{L}")
        e.v(f"v_xor_b32 v{b}, v{b}, v{h}")
        e.v(f"v_lshl_add_u32 v{A_K}, v{b}, 4, v{a}")
        for s in range(1, 8): e.v(f"v_xor_b32 v{A_K+s}, {s<<5}, v{A_K}")
        e.v(f"v_lshl_add_u32 v{a}, v{h}, 2, v{rr}")
        e.v(f"v_lshlrev_b32 v{b}, 8, v{a}")
        e.v(f"v_add_u32 v{b}, {VR}, v{b}")
        e.v(f"v_lshl_add_u32 v{b}, v{g}, 5, v{b}")
        e.v(f"v_lshl_add_u32 v{b}, v{c1}, 4, v{b}")
        e.v(f"v_lshl_add_u32 v{b}, v{c0}, 3, v{b}")
        e.v(f"v_lshl_add_u32 v{A_V}, v{rr}, 6, v{b}")
        for t in range(1, 4): e.v(f"v_xor_b32 v{A_V+t}, {t<<6}, v{A_V}")
        e.v(f"v_lshlrev_b32 v{a}, 7, v{a}")
        e.v(f"v_lshl_add_u32 v{a}, v{c0}, 5, v{a}")
        e.v(f"v_lshl_add_u32 v{a}, v{g}, 4, v{a}")
        e.v(f"v_lshl_add_u32 v{a}, v{c1}, 3, v{a}")
        e.v(f"v_lshrrev_b32 v{b}, 1, v{rr}")
        e.v(f"v_xor_b32 v{b}, s{HH}, v{b}")
        e.v(f"v_lshl_add_u32 v{a}, v{b}, 6, v{a}")
        e.s(f"s_lshl_b32 s{S_T2}, s{HH}, 14")
        e.v(f"v_add_u32 v{A_WO}, s{S_T2}, v{a}")
        e.v(f"v_xor_b32 v{A_WO+1}, 0x4000, v{A_WO}")
        for w in (1, 2):
            e.v(f"v_add_u32 v{A_WO+2*w}, {w*0x10000}, v{A_WO}")
            e.v(f"v_add_u32 v{A_WO+2*w+1}, {w*0x10000}, v{A_WO+1}")
        e.s(f"s_lshl_b32 s{S_T2}, s{S_WAVE}, 13\ns_add_u32 s{S_T2}, s{S_T2}, {KR}")
        e.v(f"v_lshl_add_u32 v{V_XW}, v{L}, 4, s{S_T2}")
        e.v(f"v_xor_b32 v{V_XR}, 0x4000, v{V_XW}")
        e.s(f"""s_lshl_b32 s{S_T2}, s{S_GRP}, 20
s_lshl_b32 s{S_T3}, s{HH}, 16
s_add_u32 s{S_T2}, s{S_T2}, s{S_T3}
s_and_b32 s{S_T3}, s{S_D}, 1
s_lshl_b32 s{S_T3}, s{S_T3}, 12
s_add_u32 s{S_T2}, s{S_T2}, s{S_T3}
s_lshl_b32 s{S_T3}, s{MB}, 11
s_add_u32 s{S_T2}, s{S_T2}, s{S_T3}""")
        e.v(f"v_lshl_add_u32 v{V_PUB}, v{L}, 4, s{S_T2}")
        e.s(f"""s_lshl_b32 s{S_T2}, s{S_GRP}, 4
s_add_u32 s{S_T2}, s{S_T2}, s{HH}
s_lshl_b32 s{S_T2}, s{S_T2}, 5
s_and_b32 s{S_T3}, s{S_D}, 1
s_lshl_b32 s{S_T3}, s{S_T3}, 1
s_add_u32 s{S_T2}, s{S_T2}, s{S_T3}
s_add_u32 s{S_T2}, s{S_T2}, s{MB}
s_lshl_b32 s{S_T2}, s{S_T2}, 2
s_add_u32 s{S_T2}, s{S_T2}, {WS_F}""")
        e.v(f"v_min_u32 v{a}, 1, v{L}")
        e.v(f"v_lshlrev_b32 v{a}, 31, v{a}")
        e.v(f"v_add_u32 v{V_FLG}, s{S_T2}, v{a}")
        e.s(f"s_lshl_b32 s{S_T2}, s{S_GRP}, 4")
        e.v(f"v_add_u32 v{V_RDY}, s{S_T2}, v{a}")
        e.v(f"v_mov_b32 v{V_ONE}, 1")
        for r in range(4): e.v(f"v_mov_b32 v{V_M1+r}, -1")
        e.v(f"v_mov_b32 v{V_L0}, 0"); e.v(f"v_mov_b32 v{V_L1}, 0")
        for r in range(16): e.v(f"v_mov_b32 v{CT+r}, 0")
        sc = f2u(math.log2(math.e) / math.sqrt(128.0))
        e.s(f"s_mov_b32 s{S_SC}, {sc:#x}\ns_mov_b32 s{S_SC+1}, {sc:#x}\ns_mov_b32 s{S_FIN}, 0")
        e.s(f"""s_lshl_b32 s{S_T2}, s{S_GRP}, 11
s_add_u32 s{S_T2}, s{S_T2}, {WS_F}
s_or_b32 s{S_CLR}, s{S_WAVE}, s{S_HP}""")
        e.v(f"v_lshl_add_u32 v{T0}, v{L}, 4, s{S_T2}")
        e.other("s_waitcnt lgkmcnt(0)")
        self.wsoff()
        def clr():
            e.bstore("buffer_store_dwordx4", CT, 4, T0, SRD_WS, "0", flags="sc1")
            e.bstore("buffer_store_dwordx4", CT, 4, T0, SRD_WS, "0", 1024, flags="sc1")
        self.wave0_only(clr, "clr", S_CLR)
        if c["tlbpf"]:
            def tl():
                e.s(f"""s_lshr_b32 s{S_T2}, s{S_HP}, 1
s_lshl_b32 s{S_T3}, s{S_B}, 3
s_add_u32 s{S_T2}, s{S_T2}, s{S_T3}
s_lshl_b32 s{S_T2}, s{S_T2}, 17
s_lshl_b32 s{S_T3}, s{S_HP}, 18""")
                e.v(f"v_min_u32 v{T0+1}, 1, v{L}")
                e.v(f"v_lshlrev_b32 v{T0+1}, 31, v{T0+1}")
                e.bload("buffer_load_dword", 243, 1, T0 + 1, SRD_K, f"s{S_T2}")
                e.bload("buffer_load_dword", 243, 1, T0 + 1, SRD_V, f"s{S_T2}")
                e.bload("buffer_load_dword", 243, 1, T0 + 1, SRD_WO, f"s{S_T3}")
                e.s(f"s_lshl_b32 s{S_T2}, s{S_GRP}, 20\ns_lshl_b32 s{S_T3}, s{S_B}, 17")
                e.bload("buffer_load_dword", 243, 1, T0 + 1, SRD_WS, f"s{S_T2}")
                e.bload("buffer_load_dword", 243, 1, T0 + 1, SRD_OUT, f"s{S_T3}")
                e.s(f"s_mov_b32 s{S_T2}, {WS_F + 0x10000}")
                e.bload("buffer_load_dword", 243, 1, T0 + 1, SRD_WS, f"s{S_T2}")
            e.s(f"s_xor_b32 s{S_CNT}, s{S_WAVE}, 1")
            self.wave0_only(tl, "tlb", S_CNT)

    def dump(self, base, n, tag):
        e = self.e
        e.nop(12)
        e.s(f"s_lshl_b32 s{S_T0}, s2, 2\ns_add_u32 s{S_T0}, s{S_T0}, s{S_WAVE}\ns_mul_i32 s{S_T0}, s{S_T0}, {n*256}\ns_add_u32 s{S_T0}, s{S_T0}, {18<<20}")
        e.v(f"v_lshlrev_b32 v{T0+1}, 2, v{V_LANE}")
        for r in range(n):
            if r and r % 16 == 0: e.s(f"s_add_u32 s{S_T0}, s{S_T0}, 4096")
            e.bstore("buffer_store_dword", base + r, 1, T0 + 1, SRD_WS, f"s{S_T0}", (r % 16) * 256)
        e.vmcnt(0)

    def run_mfmas(self, M, fill, W, pre=None, ph=0):
        e = self.e
        for g, (d, a, b, cc) in enumerate(M):
            for f in (pre or {}).get(g, []): f()
            if W > 1 and g % W == 0:
                regs = R(b, 4)
                for k in range(g, min(g + W, len(M))): regs = regs | R(M[k][1], 4)
                e.wait_regs(regs)
            if any(ph == p and a0 <= g < a1 and g % m == m - 1 for p, a0, a1, m in self.c["skip"]) and cc is not None: e.wait_regs(R(a, 4) | R(b, 4)); e.nop(6)
            else: e.mfma(d, a, b, cc)
            for f in fill.get(g, []): f()

    def place(self, reads, bar, n, LEAD):
        e = self.e
        fill = {}; head = []
        for g in range(n):
            ops = []
            if g in bar:
                def fb(nm=bar[g]):
                    if nm in ("B1_0", "B1_8", "BK_1", "BK_8", "BK_16", "B3_2", "B3_4", "B3_6"): self.stamp("c", "pre" + nm)
                    e.barrier()
                    if nm in ("B1_0", "BK_0"): self.stamp("c", "post" + nm)
                ops.append(fb)
            ops += reads.get(g, [])
            if g < LEAD: head += ops
            else: fill.setdefault(g - LEAD, []).extend(ops)
        return fill, head

    def compute(self):
        e, c = self.e, self.c
        NF = c["NF"]
        e.raw(".p2align 12\n;@PAGED")
        e.label("L_compute"); e.hist = []
        self.stamp("c", "setup")
        for n in range(c["warm"]):
            e.mfma(SS, A_WQ, A_K, None if n == 0 else SS)
            if c["warmd"]: e.nop(c["warmd"])
        fr = lambda g: FR + 4 * (g % NF)
        def spread(fill, ops, g0, per):
            for n, f in enumerate(ops): fill.setdefault(g0 + n // per, []).append(f)
        M = []; reads = {}; bar = {}
        for kt in range(16):
            slot = self.items[f"q{kt}"]["lds"]
            win, so = (0, slot) if slot < 65536 else (4, slot - 65536)
            for s2 in range(2):
                st = kt * 2 + s2
                xb = XB + 4 * (st % 3)
                for t in range(4):
                    g = len(M)
                    M.append((ACC + 16 * t, fr(g), xb, None if st == 0 else ACC + 16 * t))
                    rl = []
                    if t == 0:
                        xo = self.items[f"x{kt//2}"]["lds"] - KR
                        rl.append(lambda xb=xb, s=st % 4, xo=xo: e.ds128(xb, A_X + s, xo))
                    o = so + s2 * 8192
                    rl.append(lambda d=fr(g), t=t, o=o, win=win: e.dstr(d, A_WQ + win + t, o))
                    rl.append(lambda d=fr(g), t=t, o=o, win=win: e.dstr(d + 2, A_WQ + win + t, o + 2048))
                    reads[g] = rl
            bar[kt * 8] = f"B1_{kt}"
        fill, head = self.place(reads, bar, len(M), c["L1"])
        fill.setdefault(8 * c["TPOS"], []).append(lambda: e.raw(";@TOUCH2"))
        def arrive():
            e.vmcnt(0)
            e.bstore("buffer_store_dword", V_ONE, 1, V_RDY, SRD_DBG, "0", flags="sc1")
        fill.setdefault(41, []).append(lambda: self.wave0_only(arrive, "arr", S_CLR))
        for f in head: f()
        self.run_mfmas(M, fill, c["W1"], ph=1)
        self.stamp("c", "P1end")
        M = []; reads = {}; bar = {}
        def addQK(j):
            bar[len(M)] = f"BK_{j}"
            so = self.items[f"k{j}"]["lds"] - KR
            for s in range(8):
                g = len(M); S = SS + 16 * (j % 2)
                M.append((S, fr(g), QP + 4 * s, CT if s == 0 else S))
                reads[g] = [lambda d=fr(g), s=s, so=so: e.ds128(d, A_K + s, so)]
        def addPV(j):
            so = self.items[f"v{j}"]["lds"] - VR
            for u in range(2):
                for t in range(4):
                    g = len(M)
                    M.append((ACC + 16 * t, fr(g), PP + 4 * u, None if (j == 0 and u == 0) else ACC + 16 * t))
                    o = so + u * 4096
                    reads[g] = [lambda d=fr(g), t=t, o=o: e.dstr(d, A_V + t, o),
                                lambda d=fr(g), t=t, o=o: e.dstr(d + 2, A_V + t, o + 2048)]
        addQK(0)
        for j in range(15): addQK(j + 1); addPV(j)
        bar[len(M)] = "BK_16"
        addPV(15)
        fill, head = self.place(reads, bar, len(M), c["L2"])
        def ex(j, r): return lambda: e.v(f"v_exp_f32 v{SS+16*(j%2)+r}, v{SS+16*(j%2)+r}")
        def cv(j, k): return lambda: e.v(f"v_cvt_pk_bf16_f32 v{PP+k}, v{SS+16*(j%2)+2*k}, v{SS+16*(j%2)+2*k+1}")
        def ad(j, r): return lambda: e.v(f"v_add_f32 v{V_L0+(r%2)}, v{V_L0+(r%2)}, v{SS+16*(j%2)+r}")
        def put(j, g, spec):
            front = []
            for tok in spec.split():
                first = tok[0] == "<"
                if first: tok = tok[1:]
                f = {"e": ex, "c": cv, "a": ad}[tok[0]](j, int(tok[1:]))
                if first: front.append(f)
                else: fill.setdefault(g, []).append(f)
            fill[g] = front + fill.get(g, [])
        TAB = c["tab"] or {-5: "e0", -4: "e1 e2", -3: "e3 e4 c0", -2: "e5 e6 c1", -1: "e7 c2 a0", 0: "e8 e9 c3", 1: "e10 c4 a1",
                           2: "e11 e12", 3: "e13 c5", 4: "e14 c6 a2", 5: "e15 a3 a4", 6: "c7 a5 a6 a7", 7: "a8 a9 a10",
                           8: "a11 a12 a13", 9: "a14 a15"}
        TAB0 = {1: "e0", 2: "e1 e2 e3", 3: "e4 e5 c0", 4: "e6 e7 c1", 5: "e8 c2 c3", 6: "e9 e10 c4", 7: "e11 e12", 8: "e13 e14 c5",
                9: "e15 c6 a0", 10: "c7 a1 a2 a3 a4", 11: "a5 a6 a7", 12: "a8 a9", 13: "a10 a11", 14: "a12 a13", 15: "a14 a15"}
        neg = " ".join(v for k, v in TAB.items() if k < 0).split()
        rest = [t for t in " ".join(v for k, v in TAB.items() if k >= 0).split()]
        for j in range(15):
            for k, sp in (TAB0 if j == 0 else TAB).items(): put(j, 8 + 16 * j + k, sp)
        g0 = 8 + 16 * 15
        for k, sp in TAB.items():
            if k < 0: put(15, g0 + k, sp)
        assert "c3" in rest and "e7" in neg and "e8" in rest
        put(15, g0 - 1, "c3")
        adds = [t for t in rest if t[0] == "a"]
        for k, sp in enumerate(["e8 e9 " + adds[0], "e10 e11 c4 " + adds[1], "e12 e13 c5 " + adds[2], "<e14 <e15 <c6 <c7 " + adds[3],
                                " ".join(adds[4:10]), " ".join(adds[10:])]):
            put(15, g0 + k, sp)
        l, t1, t2, RC = V_L0, T0, T0 + 1, T0 + 3
        def lchain():
            e.v(f"v_add_f32 v{l}, v{V_L0}, v{V_L1}")
            e.v(f"v_mov_b32 v{t1}, v{l}")
            e.s(f"s_mov_b32 s{S_T0}, {f2u(2.0**-30):#x}\ns_mov_b32 s{S_T1}, {f2u(2.0**30):#x}")
            e.v(f"v_permlane32_swap_b32 v{l}, v{t1}")
            e.v(f"v_add_f32 v{l}, v{l}, v{t1}")
            e.v(f"v_rcp_f32 v{RC}, v{l}")
            e.v(f"v_cmp_nle_f32 vcc, s{S_T0}, v{l}")
            e.v(f"v_cmp_nge_f32 s[56:57], s{S_T1}, v{l}")
        def rdyload(): e.bload("buffer_load_dword", T0 + 2, 1, V_RDY, SRD_DBG, "0", flags="sc1")
        def rdy():
            e.label("L_rdy"); e.vmcnt(0)
            e.v(f"v_readfirstlane_b32 s{S_T0}, v{T0+2}")
            e.s(f"s_cmp_eq_u32 s{S_T0}, 1\ns_cbranch_scc1 L_rdyok")
            e.bload("buffer_load_dword", T0 + 2, 1, V_RDY, SRD_DBG, "0", flags="sc1")
            e.s(f"s_add_u32 s{S_CNT}, s{S_CNT}, 1\ns_cmp_lt_u32 s{S_CNT}, 0x40000\ns_cbranch_scc1 L_rdy")
            e.label("L_rdyok")
        SENT = c["SENT"]
        J0 = 8 + 16 * c["CLRJ"]; J1 = 8 + 16 * c["CLRF"]
        fill.setdefault(8 + 10, []).append(lambda: self.wave0_only(rdyload, "rl"))
        def rdychk():
            e.s(f"s_mov_b32 s{S_CNT}, 0"); self.wave0_only(rdy, "rdy")
        gb = J1 - 16 + 16 - c["L2"]
        fill[gb] = [rdychk] + fill.get(gb, [])
        def so_pub(i):
            e.s(f"s_add_u32 s{S_T0}, s{S_R3}, {i}\ns_and_b32 s{S_T0}, s{S_T0}, 7\ns_lshl_b32 s{S_T1}, s{S_T0}, 17")
            if i: e.s(f"s_add_u32 s{S_T1}, s{S_T1}, {i*8192}")
        def so_flag(i):
            e.s(f"s_add_u32 s{S_T2}, s{S_R3}, {i}\ns_and_b32 s{S_T2}, s{S_T2}, 7\ns_lshl_b32 s{S_T2}, s{S_T2}, 8")
        for n, i in enumerate(range(SENT, 8)):
            if not c["noclear"]:
                fill.setdefault(J0 + 16 * (n // 2) + 9 + 2 * (n % 2), []).append(lambda i=i: so_pub(i))
                for q in range(2):
                    fill.setdefault(J0 + 16 * (n // 2) + 10 + 2 * (n % 2) + 0 * q, []).append(
                        lambda q=q: e.bstore("buffer_store_dwordx4", V_M1, 4, V_PUB, SRD_WS, f"s{S_T1}", 1024 * q, flags=c["fpub"]))
            def fl(i=i, n=n):
                so_flag(i)
                if n == 0: e.vmcnt(0)
                e.bstore("buffer_store_dword", V_ONE, 1, V_FLG, SRD_WS, f"s{S_T2}", 16 * i, flags=c["fflag"])
            fill.setdefault(J1 + 16 * (n // 2) + 9 + (n % 2), []).append(fl)
        def qscale(t, pk):
            ops = []
            for k in range(8):
                r = ACC + 16 * t + 2 * k
                if pk: ops.append(lambda r=r: e.v(f"v_pk_mul_f32 v[{r}:{r+1}], v[{r}:{r+1}], s[{S_SC}:{S_SC+1}]"))
                else: ops += [lambda r=r: e.v(f"v_mul_f32 v{r}, s{S_SC}, v{r}"), lambda r=r: e.v(f"v_mul_f32 v{r+1}, s{S_SC}, v{r+1}")]
            for k in range(8):
                r = ACC + 16 * t + 2 * k
                ops.append(lambda r=r, k=k: e.v(f"v_cvt_pk_bf16_f32 v{QP+8*t+k}, v{r}, v{r+1}"))
            return ops
        for f in qscale(0, True): f()
        for f in head: f()
        for f in qscale(1, True): f()
        if c["dump"] == "q":
            for f in qscale(2, True) + qscale(3, True): f()
            self.dump(QP, 32, "q")
        else:
            spread(fill, qscale(2, False), 0, 7)
            spread(fill, qscale(3, False)[:12], 3, 4); spread(fill, qscale(3, False)[12:], 4, 6)
        self.stamp("c", "P2start")
        self.run_mfmas(M, fill, c["W2"], ph=2)
        self.stamp("c", "P2end")
        AC = lambda i: (AC3A, AC3B)[i % 2]
        M = []; reads = {}; bar = {}; done = {}
        seq = [(0, 0), (1, 0), (0, 1), (1, 1)] + [(i, hs) for i in range(2, 8) for hs in range(2)]
        for i, hs in seq:
            slot = WOSLOT[i]; win = slot >> 16; so = slot & 0xffff
            if hs == 0 and 2 <= i <= c["NB3"]: bar[len(M)] = f"B3_{i}"
            for k in range(8):
                g = len(M)
                M.append((AC(i), fr(g), (OWN if hs == 0 else OTH) + 4 * k, None if (hs == 0 and k == 0) else AC(i)))
                o = so + k * 2048
                reads[g] = [lambda d=fr(g), o=o, a=A_WO + 2 * win + hs: e.dstr(d, a, o),
                            lambda d=fr(g), o=o, a=A_WO + 2 * win + hs: e.dstr(d + 2, a, o + 1024)]
            if hs == 1: done[i] = len(M) - 1
        L3 = c["L3"]
        fill, head = self.place(reads, bar, len(M), L3)
        e.lgkm(0)
        if c["B17"]: e.barrier()
        e.label("L_norm")
        self.stamp("c", "n_17")
        lchain()
        for f in head[:8]: f()
        for gg in (0, 3, 7, 15): fill.setdefault(gg, []).insert(0, lambda gg=gg: self.stamp("c", f"n_m{gg}"))
        def onorm(t, pk):
            ops = []
            for k in range(8):
                r = ACC + 16 * t + 2 * k
                if pk: ops.append(lambda r=r: e.v(f"v_pk_mul_f32 v[{r}:{r+1}], v[{r}:{r+1}], v[{RC-1}:{RC}] op_sel:[0,1] op_sel_hi:[1,1]"))
                else: ops += [lambda r=r: e.v(f"v_mul_f32 v{r}, v{RC}, v{r}"), lambda r=r: e.v(f"v_mul_f32 v{r+1}, v{RC}, v{r+1}")]
            for k in range(8):
                r = ACC + 16 * t + 2 * k
                ops.append(lambda r=r, k=k: e.v(f"v_cvt_pk_bf16_f32 v{OWN+8*t+k}, v{r}, v{r+1}"))
            return ops
        wr = lambda k: (lambda: e.ds_write("ds_write_b128", V_XW, OWN + 4 * k, 4, 1024 * k))
        for f in onorm(0, True): f()
        e.s(f"s_or_b64 vcc, vcc, s[56:57]\ns_cmp_lg_u32 s{S_FIN}, 0\ns_cbranch_scc1 L_novote\ns_cbranch_vccz L_novote")
        mark = list(e.hist)
        e.v(f"v_mov_b32 v{OWN}, -1")
        for i in e.hist:
            if i not in mark: i.states = 0
        e.label("L_novote")
        for f in head[8:]: f()
        wr(0)(); wr(1)()
        if c["dump"] == "o":
            for t in (1, 2, 3):
                for f in onorm(t, True): f()
            self.dump(OWN, 32, "o")
            for k in range(2, 8): wr(k)()
        else:
            for f in onorm(1, True): f()
            for t in (2, 3):
                ops = onorm(t, False)
                spread(fill, [wr(2 * t - 2)] + ops[:12], 2 * t - 4, 13); spread(fill, [wr(2 * t - 1)] + ops[12:], 2 * t - 3, 13)
            fill.setdefault(4, []).append(wr(6)); fill.setdefault(5, []).append(wr(7))
        def bx():
            e.v(f"v_and_b32 v{t1}, 3, v{V_LANE}")
            e.v(f"v_lshlrev_b32 v{t1}, 13, v{t1}")
            e.v(f"v_add_u32 v{t1}, {KR}, v{t1}")
            nw = max(n for n, p in enumerate(e.pend) if not p) if any(not p for p in e.pend) else -1
            if nw >= 0: e.lgkm(len(e.pend) - 1 - nw)
            self.stamp("c", "preBX")
            e.barrier()
            self.stamp("c", "postBX")
            e.ds32(t2, t1)
        GX = c["GX"]
        fill[GX] = [bx] + fill.get(GX, [])
        for k in range(8):
            fill.setdefault(GX + k // 2 if c["BY"] else min(GX + k, 11 + k), []).append(lambda k=k: e.ds128(OTH + 4 * k, V_XR, 1024 * k))
        if c["BY"]:
            def by():
                e.wait_regs(R(OTH, 32)); e.barrier()
            fill[GX + 6] = [by] + fill.get(GX + 6, [])
        def vote():
            e.v(f"v_cmp_eq_u32 vcc, -1, v{t2}")
            e.s(f"s_cmp_lg_u32 s{S_FIN}, 0\ns_cbranch_scc1 L_voted\ns_cbranch_vccnz L_slow")
            e.label("L_voted")
        fill[GX + 3] = [vote] + fill.get(GX + 3, [])
        FL = c["FLAGLAG"]
        vseq = []
        def pub_cvt(i, k): return lambda: e.v(f"v_cvt_pk_bf16_f32 v{PK+8*(i%2)+k}, v{AC(i)+2*k}, v{AC(i)+2*k+1}")
        def pub_min(i, k): return lambda: e.v(f"v_min_u32 v{PK+8*(i%2)+k}, -2, v{PK+8*(i%2)+k}")
        def pub_so(i): return lambda: so_pub(i)
        def pub_st(i, q):
            def f():
                if c["nopub"]:
                    vseq.append(("S", i)); return
                e.bstore("buffer_store_dwordx4", PK + 8 * (i % 2) + 4 * q, 4, V_PUB, SRD_WS, f"s{S_T1}", 1024 * q, flags=c["fpub"])
                vseq.append(("S", i))
            return f
        def pub_flag(i):
            def f():
                so_flag(i)
                last = max(n for n, x in enumerate(vseq) if x == ("S", i))
                e.vmcnt(len(vseq) - 1 - last)
                e.bstore("buffer_store_dword", V_ONE, 1, V_FLG, SRD_WS, f"s{S_T2}", 16 * i, flags=c["fflag"])
                vseq.append(("F", i))
            return f
        late = []
        for i in range(7):
            g = done[i] + 1 + (min(c["PUBG"], 3) if i == 0 else c["PUBG"])
            fill.setdefault(g - 1, []).append(pub_so(i))
            for k in range(8):
                fill.setdefault(g + k // 2, []).append(pub_cvt(i, k))
                if i >= SENT: fill.setdefault(g + k // 2 + 1, []).insert(0, pub_min(i, k))
            fill.setdefault(g + 2, []).append(pub_st(i, 0))
            fill.setdefault(g + 4, []).append(pub_st(i, 1))
            if i >= SENT: continue
            gf = g + 7 + 16 * FL
            if gf < len(M) and i < c["FLMAX"]: fill.setdefault(gf, []).append(pub_flag(i))
            else: late.append(i)
        self.run_mfmas(M, fill, c["W3"], ph=3)
        self.stamp("c", "P3end")
        e.s(f"s_and_b32 s{S_T0}, s{S_D}, 1\ns_lshr_b32 s{S_T1}, s{S_WAVE}, 1\ns_cmp_eq_u32 s{S_T0}, s{S_T1}\ns_cbranch_scc1 L_own")
        h0 = list(e.hist); v0 = list(vseq)
        pub_so(7)()
        for k in range(8): pub_cvt(7, k)()
        if SENT <= 7:
            for k in range(8): pub_min(7, k)()
        pub_st(7, 0)(); pub_st(7, 1)()
        if c["GLATE"]: e.barrier()
        for i in late + ([7] if SENT > 7 else []): pub_flag(i)()
        e.s("s_branch L_fin")
        e.label("L_own"); e.hist = h0; vseq[:] = v0
        e.s(f"s_and_b32 s{S_T0}, s{S_WAVE}, 1\ns_lshl_b32 s{S_T0}, s{S_T0}, 12\ns_add_u32 s{S_T0}, s{S_T0}, {VR}")
        e.v(f"v_lshl_add_u32 v{T0}, v{V_LANE}, 4, s{S_T0}")
        for p in range(4): e.ds_write("ds_write_b128", T0, AC(7) + 4 * p, 4, 1024 * p)
        if c["GLATE"]: e.lgkm(0); e.barrier()
        for i in late: pub_flag(i)()
        e.lgkm(0)
        e.label("L_fin")
        if not c["GLATE"]: e.barrier()
        self.stamp("c", "flagged")
        self.write_stamps("c")
        e.other("s_endpgm")
        self.slow()

    def slow(self):
        e = self.e
        L = V_LANE
        e.raw(";@UNPAGED")
        e.label("L_slow"); e.hist = []; e.pend = []
        e.other("s_waitcnt vmcnt(0) lgkmcnt(0)"); e.nop(16)
        e.barrier()
        KA, VA, MX, t1 = T0, T0 + 1, T0 + 6, T0 + 7
        e.s(f"""s_mov_b32 s{S_FIN}, 1
s_lshr_b32 s{S_T0}, s{S_HP}, 1
s_lshl_b32 s{S_T1}, s{S_B}, 3
s_add_u32 s{S_T0}, s{S_T0}, s{S_T1}
s_lshl_b32 s{S_T0}, s{S_T0}, 17""")
        e.v(f"v_and_b32 v{t1}, 31, v{L}")
        e.v(f"v_lshrrev_b32 v{MX}, 5, v{L}")
        e.v(f"v_lshlrev_b32 v{KA}, 8, v{t1}")
        e.v(f"v_lshl_add_u32 v{KA}, v{MX}, 4, v{KA}")
        e.v(f"v_add_u32 v{KA}, s{S_T0}, v{KA}")
        e.v(f"v_lshlrev_b32 v{VA}, 10, v{MX}")
        e.v(f"v_lshl_add_u32 v{VA}, v{t1}, 1, v{VA}")
        e.v(f"v_add_u32 v{VA}, s{S_T0}, v{VA}")
        e.v(f"v_mov_b32 v{MX}, 0xff800000")
        def qk(cinit):
            for s in range(8): e.bload("buffer_load_dwordx4", FR + 4 * s, 4, KA, SRD_K, f"s{S_T1}", 32 * s)
            e.vmcnt(0)
            for s in range(8): e.mfma(SS, FR + 4 * s, QP + 4 * s, cinit if s == 0 else SS)
        e.s(f"s_mov_b32 s{S_T1}, 0")
        e.label("L_s1"); e.nop(12)
        qk(None)
        for r in range(0, 16, 2): e.v(f"v_max3_f32 v{MX}, v{MX}, v{SS+r}, v{SS+r+1}")
        e.s(f"s_add_u32 s{S_T1}, s{S_T1}, 8192\ns_cmp_lt_u32 s{S_T1}, 0x20000\ns_cbranch_scc1 L_s1")
        e.v(f"v_mov_b32 v{t1}, v{MX}")
        e.v(f"v_permlane32_swap_b32 v{MX}, v{t1}")
        e.v(f"v_max_f32 v{MX}, v{MX}, v{t1}")
        for r in range(16): e.v(f"v_sub_f32 v{CT+r}, 0, v{MX}")
        for r in range(64): e.v(f"v_mov_b32 v{ACC+r}, 0")
        e.v(f"v_mov_b32 v{V_L0}, 0"); e.v(f"v_mov_b32 v{V_L1}, 0")
        e.s(f"s_mov_b32 s{S_T1}, 0")
        e.label("L_s2"); e.nop(12)
        qk(CT)
        for r in range(16): e.v(f"v_exp_f32 v{SS+r}, v{SS+r}")
        for r in range(16): e.v(f"v_add_f32 v{V_L0}, v{V_L0}, v{SS+r}")
        for k in range(8): e.v(f"v_cvt_pk_bf16_f32 v{PP+k}, v{SS+2*k}, v{SS+2*k+1}")
        for u in range(2):
            e.s(f"s_add_u32 s{S_T2}, s{S_T1}, {u*4096}")
            for t in range(4):
                for j in range(8):
                    row = 8 * (j // 4) + j % 4
                    op = "buffer_load_short_d16_hi" if j % 2 else "buffer_load_short_d16"
                    e.bload(op, FR + 4 * t + j // 2, 1, VA, SRD_V, f"s{S_T2}", row * 256 + t * 64)
                    if j % 2 == 0: e.vmcnt(0)
            e.vmcnt(0)
            for t in range(4): e.mfma(ACC + 16 * t, FR + 4 * t, PP + 4 * u, ACC + 16 * t)
            e.nop(8)
        e.s(f"s_add_u32 s{S_T1}, s{S_T1}, 8192\ns_cmp_lt_u32 s{S_T1}, 0x20000\ns_cbranch_scc1 L_s2")
        e.nop(16)
        e.s("s_branch L_norm")

    def build(self):
        e = self.e
        self.plan()
        e.raw(f"""; Fused GQA block (two branches), gfx950.  Generated by the author's own generator script.
; @launch grid=(256,1,1) block=(512,1,1) lds={LDS}
.amdgcn_target "amdgcn-amd-amdhsa--gfx950"
.text
.globl {KN}
.p2align 8
.type {KN},@function
{KN}:""")
        self.prologue()
        self.helper()
        self.compute()
        e.label("L_end"); e.other("s_endpgm")
        e.raw(f""".section .rodata,"a"
.p2align 6
.amdhsa_kernel {KN}
  .amdhsa_next_free_vgpr 248
  .amdhsa_next_free_sgpr 102
  .amdhsa_accum_offset 248
  .amdhsa_group_segment_fixed_size 0
  .amdhsa_kernarg_size 104
  .amdhsa_user_sgpr_count 2
  .amdhsa_user_sgpr_kernarg_segment_ptr 1
  .amdhsa_system_sgpr_workgroup_id_x 1
.end_amdhsa_kernel""")
        assert e.maxv < 248
        return self.paginate(e.out)

    def paginate(self, lines):
        import subprocess, re, tempfile, os
        isins = lambda l: l.startswith("    ") and not l.strip().startswith((";", "."))
        with tempfile.TemporaryDirectory() as d:
            open(d + "/a.s", "w").write("\n".join(lines) + "\n")
            subprocess.run(["clang", "-x", "assembler", "-target", "amdgcn-amd-amdhsa", "-mcpu=gfx950", "-c",
                            "-o", d + "/a.o", d + "/a.s".replace("a.s", "a.s")], check=True)
            dis = subprocess.run(["llvm-objdump", "-d", "--mcpu=gfx950", d + "/a.o"], capture_output=True, text=True).stdout
        enc = [(int(m.group(1), 16), len(m.group(2).split()) * 4, m.group(0)) for m in re.finditer(r"// ([0-9A-F]{12}): ((?:[0-9A-F]{8} ?)+)", dis)]
        sizes = []; j = 0; addr = 0
        for l in lines:
            if l.startswith(".p2align 12"):
                addr = (addr + 4095) // 4096 * 4096
                while enc[j][0] < addr: j += 1
            if isins(l):
                assert enc[j][0] == addr, (l, hex(addr), enc[j])
                sizes.append(enc[j][1]); addr += enc[j][1]; j += 1
        n2 = 0
        while True:
            out, nm = self._marks(lines, sizes, isins, n2)
            if nm == n2: break
            n2 = nm
        return self._touches(out, nm)

    def _marks(self, lines, sizes, isins, n2):
        out = []; paged = False; off = 0; nm = 0; k = 0; self.page0 = None; tot = 0
        for l in lines:
            if l == ";@TOUCH2" and n2: off += 8 + 8 * n2
            if l == ";@PAGED":
                paged = True; off = 0
                if self.page0 is None: self.page0 = tot
                continue
            if l == ";@UNPAGED": paged = False; continue
            if l == ";@MARK":
                if self.c["touch"]:
                    nm += 1; out += [f"L_mk{nm}:", f"    s_cbranch_execz L_rt{nm}"]; off += 4
                continue
            if isins(l):
                sz = sizes[k]; k += 1; tot += sz
                if paged and self.c["touch"]:
                    if off % 4096 and off // 4096 != (off + sz - 1) // 4096:
                        out.append("    s_nop 0"); off += 4
                    if off and off % 4096 == 0:
                        nm += 1; out += [f"L_mk{nm}:", f"    s_cbranch_execz L_rt{nm}"]; off += 4
                off += sz
            out.append(l)
        return out, nm

    def _touches(self, out, nm):
        res = []
        for l in out:
            if l in (";@TOUCH1", ";@TOUCH2"):
                ks = list(range(1, nm + 1))
                if not ks: continue
                res.append("    s_mov_b64 exec, 0")
                for n, kk in enumerate(ks):
                    res += [f"    s_cmp_eq_u32 s{S_WAVE}, {n % 4}", f"    s_cbranch_scc1 L_mk{kk}", f"L_rt{kk}:"]
                res.append("    s_mov_b64 exec, -1")
            else: res.append(l)
        assert self.page0 + 80 < 4096 - 768, self.page0
        self.npages = nm
        return "\n".join(res) + "\n"

if __name__ == "__main__":
    kw = eval("dict(%s)" % (sys.argv[2] if len(sys.argv) > 2 else ""))
    g = Gen(**kw)
    t = g.build()
    open(sys.argv[1], "w").write(t)
    print("page0", g.page0, "marks", g.npages, "nops", g.e.nnop, "waits", g.e.nwait, "lines", len(g.e.out))
    for n in range(-1, len(g.bars)):
        print(g.bars[n] if n >= 0 else "start", [i["name"] for i in g.sched[n]])
```

```python
import sys, math, struct
from emit import *

NAME = "concat_heads__gqa_block_cached__gqa_block_cached__near_ridge"
KN = NAME + "_kernel"

def f2u(f): return struct.unpack("<I", struct.pack("<f", f))[0]

DEF = dict(
    NF=8, L1=5, W1=2, L2=7, W2=4, L3=6, W3=2, GX=8,
    r1b=(0, 2), r1h=4,
    r3b=(1, 2),
    fx="", fq="", fk="", fv="", fo="",
    kvpre=16,
    NREG=0, PACE3=None, PUBG=6, PREPOLL=9, wopos=(11, 12, 13, 14, 15, 16),
    prio_c=0, prio_h=0,
    stamp=0, dump=None, FLAGLAG=1, touch=1, NB3=6, rounds=tuple((i,) for i in range(8)), l2pf=1, TPOS=1, PSLEEP=0, fpoll='sc1', fgat='sc1', fpub='sc1', fflag='sc1', tlbpf=1, kvalt=0, kvrot=1, trace=0, nst=0, NORMV=0, GEARLY=2, FLMAX=3, BY=1, GLATE=1, A3=(2, 2, 3, 4), skip=(), warm=0, warmd=0, SENT=8, CLRJ=2, CLRF=5, noclear=0, B17=1, RSLEEP=4, wsoff=0, fout='sc1', CAP=64, pad=None, nodma=0, tab=None, nopub=0,
)

W0 = 0; KR = 98304; VR = 131072; LDS = 163840
XSLOT = [KR, KR + 8192, VR, KR + 16384, VR + 8192, KR + 24576, VR + 16384, VR + 24576]
WOSLOT = [0, 32768, 65536, VR, KR, 0, 32768, 65536]
WS_X = 0
WS_F = 16 << 20
WS_DBG = 17 << 20
WS_SIZE = 32 << 20
S_WAVE, S_BR, S_B, S_HP, S_D = 3, 4, 5, 6, 7
SRD_X, SRD_K, SRD_V, SRD_WQ, SRD_WO, SRD_WS, SRD_OUT, SRD_DBG = 8, 12, 16, 20, 24, 28, 32, 36
S_GRP, S_R1, S_R3, S_T0, S_T1, S_T2, S_T3 = 40, 41, 42, 43, 44, 45, 46
S_CX, S_CQ, S_CKV, S_CO, S_M2, S_M4, S_FIN, S_SC = 47, 48, 49, 50, 51, 52, 53, 54
S_CNT = 56
S_CLR = 100
S_KP, S_KQ, S_KE, S_KF = 96, 97, 98, 99
S_STAMP = 60
V_LANE = 1
A_WQ = 2
A_X = 10
A_K = 14
A_V = 22
A_WO = 26
V_PUB, V_FLG, V_XW, V_XR, V_L0, V_L1 = 32, 33, 34, 35, 36, 37
T0 = 38
FR = 48
XB = 80
PP = 80
QP = 92
ACC = 128
SS = 192
CT = 224
OWN = 192
OTH = 128
AC3A, AC3B = 224, 160
PK = 176
V_ONE, V_RDY = 240, 241
V_M1 = 244
H_X, H_Q, H_K, H_V, H_O = 2, 4, 8, 10, 12
H_G, H_F, H_OUT, H_T = 16, 17, 18, 19
H_OWN, H_PRM = 42, 43
H_ACC = 24
H_TMP = 32
H_BUF = 160
H_REG = 64
H_W = 40


class Gen:
    def __init__(self, **kw):
        self.c = dict(DEF); self.c.update(kw)
        for k in kw: assert k in DEF, k
        self.e = Em()
        self.nst = {"c": 0, "h": 0}
        self.stamp_names = {"c": [], "h": []}

    def stamp(self, who, name):
        if not self.c["stamp"]: return
        if self.c["nst"] and who == "c" and name in ("setup", "preB1_0", "postB1_0", "preB1_8", "postBK_0", "preBK_1", "preBK_8"): return
        if name.startswith("n_") and not self.c["nst"]: return
        k = self.nst[who]; self.nst[who] += 1
        assert k < 19
        self.stamp_names[who].append(name)
        self.e.other(f"{'s_memrealtime' if self.c['stamp'] == 2 else 's_memtime'} s[{S_STAMP+2*k}:{S_STAMP+2*k+1}]")

    def write_stamps(self, who):
        if not self.c["stamp"]: return
        e = self.e
        if self.c["pad"]:
            T, w, nm = self.c["pad"]
            if w == who:
                k = self.stamp_names[who].index(nm)
                e.lgkm(0)
                e.s(f"s_add_u32 s{S_T0}, s{S_STAMP+2*k}, {T//10}")
                e.label(f"L_pad{who}")
                e.other("s_memrealtime s[98:99]"); e.lgkm(0)
                e.s(f"s_sub_u32 s{S_T1}, s98, s{S_T0}\ns_cmp_lt_i32 s{S_T1}, 0\ns_cbranch_scc1 L_pad{who}")
            return
        e.other("s_memrealtime s[98:99]")
        e.lgkm(0)
        e.v("v_mov_b32 v44, 0")
        for k in range(self.nst[who]): e.v(f"v_writelane_b32 v44, s{S_STAMP+2*k}, {k}")
        e.v("v_writelane_b32 v44, s98, 30"); e.v("v_writelane_b32 v44, s58, 31")
        e.v(f"v_lshlrev_b32 v45, 2, v{V_LANE}")
        e.s(f"s_lshl_b32 s{S_T0}, s2, 3\ns_add_u32 s{S_T0}, s{S_T0}, s{S_WAVE}\ns_lshl_b32 s{S_T0}, s{S_T0}, 8\ns_add_u32 s{S_T0}, s{S_T0}, {WS_DBG}")
        e.bstore("buffer_store_dword", 44, 1, 45, SRD_WS, f"s{S_T0}")
        if self.c["trace"] and who == "h":
            e.s(f"s_add_u32 s{S_T0}, s{S_T0}, 0x80000")
            e.bstore("buffer_store_dword", 46, 1, 45, SRD_WS, f"s{S_T0}")

    def plan(self):
        c = self.c
        bars = [f"B1_{k}" for k in range(16)] + [f"BK_{k}" for k in range(17 + c["B17"])] + ["BX"] + ["BY"] * c["BY"] + [f"B3_{k}" for k in range(2, c["NB3"] + 1)]
        bi = {n: i for i, n in enumerate(bars)}
        items = {}
        def add(name, lds, after, needed): items[name] = dict(name=name, lds=lds, after=after, need=needed)
        xfree = lambda cc: bi[f"B1_{2*cc+3}"] if cc <= 6 else bi["BK_0"]
        qfree = lambda kt: bi[f"B1_{kt+2}"] if kt <= 13 else bi["BK_0"]
        for cc in range(8): add(f"x{cc}", XSLOT[cc], -1, bi[f"B1_{2*cc}"])
        for kt in range(16): add(f"q{kt}", W0 + (kt % 6) * 16384, -1 if kt < 6 else qfree(kt - 6), bi[f"B1_{kt}"])
        for j in range(16):
            a = KR + (j % 4) * 8192
            add(f"k{j}", a, xfree(XSLOT.index(a)) if j < 4 else bi[f"BK_{max(j-3, 2)}"], bi[f"BK_{j}"])
            a = VR + (j % 4) * 8192
            add(f"v{j}", a, xfree(XSLOT.index(a)) if j < 4 else bi[f"BK_{j-1}"], bi[f"BK_{j+1}"])
        NREG = c["NREG"]
        for i in range(8):
            for hf in range(2):
                a = WOSLOT[i] + hf * 16384
                if i < 3:
                    last = max(kt for kt in range(16) if (kt % 6) * 16384 == a)
                    aft = qfree(last)
                else: aft = bi["BK_17" if c["B17"] else "BX"] if i == 3 else (bi["BY"] if (i == 4 and c["BY"]) else bi[f"B3_{c['A3'][i-4]}"])
                if i >= 8 - NREG:
                    add(f"o{i}{'ab'[hf]}", a, -1, aft)
                    items[f"o{i}{'ab'[hf]}"]["reg"] = H_REG + 32 * (i - (8 - NREG)) + 16 * hf
                else:
                    add(f"o{i}{'ab'[hf]}", a, aft, bi[f"BK_{16 + c['B17']}"] if i <= 1 else bi[f"B3_{min(i, c['NB3'])}"])
        order = []
        kvq = ["k0", "k1", "v0", "k2", "v1", "k3", "v2"]
        for kt in range(16):
            if kt % 2 == 0: order.append(f"x{kt//2}")
            order.append(f"q{kt}")
            if kt + 1 >= c["kvpre"] and kt < 15 and kvq and items[kvq[0]]["after"] <= items[f"q{kt}"]["after"]:
                order.append(kvq.pop(0))
        order += kvq
        wo = [f"o{i}{h}" for i in list(range(3)) + list(range(8 - NREG, 8)) for h in "ab"]
        wp = list(c["wopos"])
        order.append("v3")
        for n in range(0, 17):
            if 4 <= n + 1 <= 15: order.append(f"v{n+1}")
            if n == 2: order.append("k4")
            if 5 <= n + 3 <= 15: order.append(f"k{n+3}")
            while wp and wo and wp[0] <= n:
                nm = wo.pop(0); wp.pop(0)
                items[nm]["after"] = max(items[nm]["after"], bi[f"BK_{n}"])
                order.append(nm)
        order += wo
        order += [f"o{i}{h}" for i in range(3, 8 - NREG) for h in "ab"]
        assert sorted(order) == sorted(items), (set(items) - set(order), len(order), len(items))
        cur = -1
        sched = {i: [] for i in range(-1, len(bars))}
        size = lambda n: 16 if n[0] in "qo" else 8
        issued = []
        nP1 = bi["BK_0"]
        for n in order:
            it = items[n]
            cur = max(cur, it["after"])
            while cur < nP1 and sum(size(m) for m in issued if items[m]["need"] > cur) + size(n) > c["CAP"]:
                cur += 1
            assert cur < it["need"], (n, bars[cur], bars[it["need"]])
            sched[cur].append(it); issued.append(n)
        self.bars, self.bi, self.items, self.sched, self.order = bars, bi, items, sched, order

    def prologue(self):
        e, c = self.e, self.c
        e.s("s_cmp_ge_u32 s2, 256\ns_cbranch_scc1 L_end")
        if c["stamp"]: e.other("s_memrealtime s[58:59]")
        e.s(f"""
s_and_b32 s{S_T0}, s2, 7
s_lshr_b32 s{S_BR}, s{S_T0}, 2
s_mul_i32 s{S_T1}, s{S_BR}, 40
s_add_u32 s{S_T2}, s0, s{S_T1}
s_addc_u32 s{S_T3}, s1, 0""")
        assert S_T3 == S_T2 + 1
        e.s(f"s_mov_b32 s56, s{S_T2}\ns_mov_b32 s57, s{S_T3}")
        for srd, off in ((SRD_X, 0), (SRD_WQ, 24), (SRD_K, 8), (SRD_V, 16), (SRD_WO, 32)):
            e.other(f"s_load_dwordx2 s[{srd}:{srd+1}], s[56:57], {off}")
        for srd, off in ((SRD_OUT, 80), (SRD_DBG, 88), (SRD_WS, 96)):
            e.other(f"s_load_dwordx2 s[{srd}:{srd+1}], s[0:1], {off}")
        self.stamp("c", "start"); self.nst["h"] = self.nst["c"]; self.stamp_names["h"] = list(self.stamp_names["c"])
        e.v(f"v_lshrrev_b32 v2, 6, v0")
        e.v(f"v_and_b32 v{V_LANE}, 63, v0")
        e.v(f"v_readfirstlane_b32 s{S_WAVE}, v2")
        for srd, n in ((SRD_X, 512 << 10), (SRD_K, 8 << 20), (SRD_V, 8 << 20), (SRD_WQ, 4 << 20), (SRD_WO, 4 << 20),
                       (SRD_WS, WS_SIZE), (SRD_OUT, 1 << 20), (SRD_DBG, 256)):
            e.s(f"s_mov_b32 s{srd+2}, {n}\ns_mov_b32 s{srd+3}, 0x20000")
        e.s(f"""
s_and_b32 s{S_T0}, s{S_T0}, 3
s_lshr_b32 s{S_T1}, s2, 3
s_and_b32 s{S_B}, s{S_T1}, 7
s_lshr_b32 s{S_T1}, s{S_T1}, 3
s_lshl_b32 s{S_T0}, s{S_T0}, 2
s_add_u32 s{S_HP}, s{S_T0}, s{S_T1}
s_lshl_b32 s{S_GRP}, s{S_BR}, 3
s_add_u32 s{S_GRP}, s{S_GRP}, s{S_B}
s_lshr_b32 s{S_T0}, s{S_B}, {c['r1b'][0]}
s_mul_i32 s{S_T0}, s{S_T0}, {c['r1b'][1]}
s_mul_i32 s{S_T1}, s{S_T1}, {c['r1h']}
s_add_u32 s{S_R1}, s{S_T0}, s{S_T1}
s_and_b32 s{S_R1}, s{S_R1}, 15
s_lshr_b32 s{S_T0}, s{S_B}, {c['r3b'][0]}
s_mul_i32 s{S_T0}, s{S_T0}, {2*c['r3b'][1]}
s_add_u32 s{S_D}, s{S_HP}, s{S_T0}
s_and_b32 s{S_D}, s{S_D}, 15
s_lshr_b32 s{S_R3}, s{S_D}, 1
s_add_u32 s{S_R3}, s{S_R3}, 1
s_and_b32 s{S_R3}, s{S_R3}, 7
s_cmp_ge_u32 s{S_WAVE}, 4
s_cbranch_scc1 L_helper""")
        self.compute_setup()
        e.s("s_branch L_compute")

    def helper(self):
        e, c = self.e, self.c
        L = V_LANE
        e.label("L_helper"); e.hist = []
        HW = S_T3
        e.s(f"s_sub_u32 s{HW}, s{S_WAVE}, 4")
        if c["prio_h"]: e.other(f"s_setprio {c['prio_h']}")
        t, u = 20, 21
        e.v(f"v_lshrrev_b32 v{t}, 3, v{L}")
        e.s(f"s_lshl_b32 s{S_T0}, s{HW}, 4\ns_lshl_b32 s{S_T1}, s{S_B}, 6\ns_add_u32 s{S_T0}, s{S_T0}, s{S_T1}")
        e.v(f"v_add_lshl_u32 v{H_X}, v{t}, s{S_T0}, 10")
        e.v(f"v_lshrrev_b32 v{u}, 4, v{L}")
        e.v(f"v_and_b32 v22, 7, v{L}")
        e.v(f"v_xor_b32 v22, v22, v{u}")
        e.v(f"v_xor_b32 v23, 4, v22")
        e.v(f"v_lshl_add_u32 v{H_X+1}, v23, 4, v{H_X}")
        e.v(f"v_add_u32 v{H_X+1}, {8*1024-1024}, v{H_X+1}")
        e.v(f"v_lshl_add_u32 v{H_X}, v22, 4, v{H_X}")
        e.v(f"v_lshrrev_b32 v22, 5, v{L}")
        e.s(f"s_lshl_b32 s{S_T0}, s{HW}, 3\ns_lshl_b32 s{S_T1}, s{S_HP}, 9")
        e.v(f"v_add_lshl_u32 v23, v22, s{S_T0}, 13")
        e.v(f"v_add_u32 v23, s{S_T1}, v23")
        e.v(f"v_lshlrev_b32 v22, 2, v22")
        e.v(f"v_and_b32 v19, 31, v{L}")
        e.v(f"v_xor_b32 v22, v22, v19")
        e.v(f"v_lshl_add_u32 v{H_Q}, v22, 4, v23")
        e.v(f"v_xor_b32 v22, 8, v22")
        e.v(f"v_lshl_add_u32 v{H_Q+1}, v22, 4, v23")
        e.v(f"v_add_u32 v{H_Q+2}, {2*(16384-1024)}, v{H_Q}")
        e.v(f"v_add_u32 v{H_Q+3}, {3*(16384-1024)}, v{H_Q+1}")
        e.v(f"v_add_u32 v{H_Q+1}, {16384-1024}, v{H_Q+1}")
        e.s(f"""s_lshl_b32 s{S_CQ}, s{S_R1}, 18
s_lshl_b32 s{S_CX}, s{S_R1}, 6
s_lshl_b32 s{S_M2}, s{HW}, 11
s_lshl_b32 s{S_M4}, s{HW}, 12""")
        first = list(self.sched[-1])
        e.other("s_waitcnt lgkmcnt(0)")
        self.wsoff()
        self.hseq = 0
        nfirst = 0
        while nfirst < len(first) and first[nfirst]["name"][0] in "xq" and nfirst < 3:
            self.issue(first[nfirst]); nfirst += 1
        e.s(f"""s_lshr_b32 s{S_T0}, s{S_HP}, 1
s_lshl_b32 s{S_T1}, s{S_B}, 3
s_add_u32 s{S_T0}, s{S_T0}, s{S_T1}
s_lshl_b32 s{S_T0}, s{S_T0}, 17
s_lshl_b32 s{S_T1}, s{HW}, 11
s_add_u32 s{S_T0}, s{S_T0}, s{S_T1}
s_and_b32 s{S_T1}, s{HW}, 1
s_lshl_b32 s{S_T1}, s{S_T1}, 3""")
        e.v(f"v_lshlrev_b32 v23, 8, v{u}")
        e.v(f"v_add_u32 v23, s{S_T0}, v23")
        e.v(f"v_and_b32 v19, 15, v{L}")
        e.v(f"v_add_u32 v22, s{S_T1}, v{u}")
        e.v(f"v_xor_b32 v22, v22, v19")
        e.v(f"v_lshl_add_u32 v{H_K}, v22, 4, v23")
        e.v(f"v_xor_b32 v22, 4, v22")
        e.v(f"v_lshl_add_u32 v{H_K+1}, v22, 4, v23")
        e.v(f"v_lshlrev_b32 v22, 2, v{u}")
        e.v(f"v_xor_b32 v22, v22, v19")
        e.v(f"v_lshl_add_u32 v{H_V}, v22, 4, v23")
        if c["kvrot"] and not c["kvalt"]:
            e.s(f"""s_lshr_b32 s{S_T0}, s{S_HP}, 1
s_and_b32 s{S_T0}, s{S_T0}, 1
s_lshl_b32 s{S_T0}, s{S_T0}, 3
s_add_u32 s{S_T0}, s{S_T0}, s{S_B}
s_mul_i32 s{S_T0}, s{S_T0}, {c['kvrot']}
s_and_b32 s{S_T0}, s{S_T0}, 15
s_lshl_b32 s{S_KP}, s{S_T0}, 13""")
        if c["kvalt"]:
            e.s(f"""s_and_b32 s{S_T0}, s{S_HP}, 1
s_lshl_b32 s{S_T0}, s{S_T0}, 14
s_and_b32 s{S_T1}, s{S_B}, 1""")
            if c["kvalt"] == 2: e.s(f"s_mov_b32 s{S_T1}, 0")
            e.s(f"""s_cmp_eq_u32 s{S_T1}, 0
s_cselect_b32 s{S_KE}, s{S_T0}, 0
s_cselect_b32 s{S_T1}, 0, s{S_T0}
s_sub_u32 s{S_KP}, s{S_KE}, s{S_T1}
s_sub_u32 s{S_KQ}, s{S_T1}, s{S_KE}
s_sub_u32 s{S_KF}, 0, s{S_KE}""")
        e.s(f"s_lshl_b32 s{S_T0}, s{HW}, 5\ns_lshl_b32 s{S_T1}, s{S_HP}, 8\ns_add_u32 s{S_T0}, s{S_T0}, s{S_T1}")
        e.v(f"v_add_lshl_u32 v23, v{t}, s{S_T0}, 10")
        e.v(f"v_and_b32 v22, 1, v{u}")
        e.v(f"v_lshlrev_b32 v22, 2, v22")
        e.v(f"v_and_b32 v19, 7, v{L}")
        e.v(f"v_xor_b32 v22, v22, v19")
        e.v(f"v_lshl_add_u32 v{H_O}, v22, 4, v23")
        for k in range(1, 4): e.v(f"v_add_u32 v{H_O+k}, {k*(8192-1024)}, v{H_O}")
        e.v(f"v_lshl_add_u32 v{H_W}, v{L}, 4, s{S_M4}")
        e.v(f"v_add_u32 v{H_W+1}, 0x10000, v{H_W}")
        e.s(f"""s_lshl_b32 s{S_T0}, s{S_GRP}, 4
s_add_u32 s{S_T0}, s{S_T0}, s{S_D}
s_lshl_b32 s{S_T1}, s{S_T0}, 7
s_add_u32 s{S_T1}, s{S_T1}, {WS_F}
s_lshl_b32 s{S_T0}, s{S_T0}, 16
s_lshl_b32 s{S_T2}, s{HW}, 7""")
        e.v(f"v_and_b32 v22, 7, v{L}")
        e.v(f"v_bfe_u32 v23, v{L}, 3, 1")
        e.v(f"v_lshl_add_u32 v22, v23, 5, v22")
        e.v(f"v_lshl_add_u32 v22, v22, 4, s{S_T2}")
        e.v(f"v_lshrrev_b32 v23, 4, v{L}")
        e.v(f"v_lshl_add_u32 v{H_G}, v23, 10, v22")
        e.v(f"v_add_u32 v{H_G}, s{S_T0}, v{H_G}")
        e.v(f"v_lshl_add_u32 v{H_OWN}, v23, 11, v22")
        e.v(f"v_add_u32 v{H_OWN}, {VR}, v{H_OWN}")
        e.v(f"v_and_b32 v22, 31, v{L}")
        e.v(f"v_lshl_add_u32 v{H_F}, v22, 2, s{S_T1}")
        e.s(f"""s_lshl_b32 s{S_T0}, s{S_B}, 1
s_and_b32 s{S_T1}, s{S_D}, 1
s_add_u32 s{S_T0}, s{S_T0}, s{S_T1}
s_lshl_b32 s{S_T0}, s{S_T0}, 2
s_add_u32 s{S_T0}, s{S_T0}, s{HW}
s_lshl_b32 s{S_T0}, s{S_T0}, 14
s_lshl_b32 s{S_T1}, s{S_BR}, 10
s_add_u32 s{S_T0}, s{S_T0}, s{S_T1}
s_lshr_b32 s{S_T1}, s{S_D}, 1
s_lshl_b32 s{S_T1}, s{S_T1}, 7
s_add_u32 s{S_T0}, s{S_T0}, s{S_T1}""")
        e.v(f"v_lshl_add_u32 v{H_OUT}, v{t}, 11, s{S_T0}")
        e.v(f"v_and_b32 v22, 7, v{L}")
        e.v(f"v_lshl_add_u32 v{H_OUT}, v22, 4, v{H_OUT}")
        e.v(f"v_bfe_u32 v22, v{L}, 2, 1")
        e.v(f"v_lshl_add_u32 v{H_PRM}, v22, 5, v{t}")
        e.v(f"v_and_b32 v22, 1, v{L}")
        e.v(f"v_lshl_add_u32 v{H_PRM}, v22, 4, v{H_PRM}")
        e.v(f"v_bfe_u32 v22, v{L}, 1, 1")
        e.v(f"v_lshl_add_u32 v{H_PRM}, v22, 3, v{H_PRM}")
        e.v(f"v_lshlrev_b32 v{H_PRM}, 2, v{H_PRM}")
        e.v(f"v_and_b32 v{H_T}, 3, v{L}")
        e.v(f"v_lshlrev_b32 v{H_T}, 13, v{H_T}")
        e.v(f"v_add_u32 v{H_T}, {KR}, v{H_T}")
        for it in first[nfirst:]: self.issue(it)
        self.stamp("h", "issued0")
        waited = -1; self.prepolled = False
        if c["trace"]: e.v("v_mov_b32 v46, 0")
        for n, bn in enumerate(self.bars):
            lastneed = max([it["last"] for it in self.items.values() if it["need"] <= n and "last" in it] + [-1])
            assert all("last" in it for it in self.items.values() if it["need"] <= n)
            if lastneed > waited and not c["nodma"]:
                e.vmcnt(self.hseq - 1 - lastneed); waited = lastneed
            if e.pend: e.lgkm(0)
            if bn in ("B1_0", "B1_8", "BK_0", "BK_8", "BK_16", "B3_4", "B3_6"): self.stamp("h", "pre" + bn)
            e.barrier()
            if c["trace"]:
                e.other("s_memrealtime s[94:95]"); e.other("s_waitcnt lgkmcnt(0)")
                e.v(f"v_writelane_b32 v46, s94, {n}")
            if bn == "BX":
                e.ds32(22, H_T)
                e.v("v_cmp_eq_u32 vcc, -1, v22")
                e.s(f"s_cbranch_vccnz L_hslow")
                e.label("L_hgo")
            for it in self.sched[n]: self.issue(it)
            if bn == f"B3_{c['PREPOLL']}" and not c["nodma"]:
                e.bload("buffer_load_dword", 22, 1, H_F, SRD_WS, "0", flags=c["fpoll"])
                self.hseq += 1; self.prepolled = True
            for it in self.items.values():
                if "reg" in it and it["need"] == n:
                    for j in range(4):
                        a = it["lds"] + 1024 * j
                        e.ds_write("ds_write_b128", H_W + (a >> 16), it["reg"] + 4 * j, 4, a & 0xffff)
            if bn == "B1_9":
                e.s("s_branch L_h2"); e.raw(".p2align 12\nL_pg1:\n;@PAGED\n;@MARK"); e.label("L_h2")
        OWNA = H_OWN
        e.s(f"""s_and_b32 s{S_CX}, s{S_D}, 1
s_xor_b32 s{S_CX}, s{S_CX}, 1
s_lshl_b32 s{S_CQ}, s{S_CX}, 1
s_add_u32 s{S_CQ}, s{S_CQ}, 28
s_lshl_b32 s{S_CQ}, 3, s{S_CQ}
s_lshl_b32 s{S_CX}, s{S_CX}, 12
s_add_u32 s{S_CX}, s{S_CX}, {14*4096}""")
        first_acc = [True]
        if c['SENT'] == 0:
            for j in range(8): e.v(f'v_mov_b32 v{H_ACC+j}, 0')
            first_acc[0] = False
        def accum(k):
            dst = H_ACC if first_acc[0] else H_TMP
            for j in range(4):
                e.v(f"v_lshlrev_b32 v{dst+2*j}, 16, v{H_BUF+4*k+j}")
                e.v(f"v_and_b32 v{dst+2*j+1}, 0xffff0000, v{H_BUF+4*k+j}")
            if not first_acc[0]:
                for j in range(4):
                    e.v(f"v_pk_add_f32 v[{H_ACC+2*j}:{H_ACC+2*j+1}], v[{H_ACC+2*j}:{H_ACC+2*j+1}], v[{H_TMP+2*j}:{H_TMP+2*j+1}]")
            first_acc[0] = False
        prev = []
        e.s(f"s_mov_b32 s{S_CNT}, 0")
        def be():
            e.barrier()
            e.ds128(H_BUF + 60, OWNA, 0); e.ds128(H_BUF + 64, OWNA, 1024)
        if c["GLATE"] and not c["GEARLY"]: be()
        if not self.prepolled:
            e.bload("buffer_load_dword", 22, 1, H_F, SRD_WS, "0", flags=c["fpoll"])
        e.vmcnt(0)
        e.v("v_cmp_eq_u32 vcc, 1, v22")
        SENT = c["SENT"]
        rounds = [tuple(i for i in st if i < SENT) for st in c["rounds"]]
        rounds = [st for st in rounds if st] or [()]
        for r, steps in enumerate(rounds):
            fsteps = tuple(steps) + (tuple(range(SENT, 8)) if r == 0 else ())
            mask = sum(15 << (4 * i) for i in fsteps if i < 7)
            e.s(f"s_mov_b32 s{S_CKV}, {mask:#x}")
            if 7 in fsteps: e.s(f"s_or_b32 s{S_CKV}, s{S_CKV}, s{S_CQ}")
            if c["GLATE"] and c["GEARLY"] and steps and steps[0] == c["GEARLY"]: be()
            e.label(f"L_poll{r}")
            e.s(f"s_and_b32 s{S_T0}, vcc_lo, s{S_CKV}\ns_cmp_eq_u32 s{S_T0}, s{S_CKV}\ns_cbranch_scc1 L_got{r}")
            if c["PSLEEP"]: e.other(f"s_sleep {c['PSLEEP']}")
            e.bload("buffer_load_dword", 22, 1, H_F, SRD_WS, "0", flags=c["fpoll"])
            e.s(f"s_add_u32 s{S_CNT}, s{S_CNT}, 1")
            e.vmcnt(0)
            e.v("v_cmp_eq_u32 vcc, 1, v22")
            e.s(f"s_cmp_lt_u32 s{S_CNT}, 0x40000\ns_cbranch_scc1 L_poll{r}")
            e.label(f"L_got{r}"); e.hist = []
            if 0 in steps or 3 in steps or 5 in steps or 7 in steps: self.stamp("h", f"got{r}")
            for i in steps:
                for p in range(1 if i == 7 else 2):
                    k = 2 * i + p
                    if i == 7: so = f"s{S_CX}"
                    elif k == 0: so = "0"
                    else:
                        e.s(f"s_mov_b32 s{S_T0}, {k*4096}"); so = f"s{S_T0}"
                    e.bload("buffer_load_dwordx4", H_BUF + 4 * k, 4, H_G, SRD_WS, so, flags=c["fgat"])
                    prev.append(k)
        def own():
            if c["GLATE"]: return
            e.barrier()
            e.ds128(H_BUF + 60, OWNA, 0); e.ds128(H_BUF + 64, OWNA, 1024)
        def ownadd():
            for j in range(4):
                e.v(f"v_pk_add_f32 v[{H_ACC+2*j}:{H_ACC+2*j+1}], v[{H_ACC+2*j}:{H_ACC+2*j+1}], v[{H_BUF+60+2*j}:{H_BUF+61+2*j}]")
        if SENT > 7:
            nearly = len(prev) - 3
            for n, k in enumerate(prev[:nearly]):
                e.vmcnt(len(prev) - 1 - n); accum(k)
            prev = prev[nearly:]
            own(); ownadd()
            for n, k in enumerate(prev):
                e.vmcnt(len(prev) - 1 - n); accum(k)
        else:
            own()
            self.stamp("h", "BE")
            for n, k in enumerate(prev):
                e.vmcnt(len(prev) - 1 - n); accum(k)
            ownadd()
            ks = [2 * i + p for i in range(SENT, 8) for p in range(1 if i == 7 else 2)]
            e.s(f"s_mov_b32 s{S_CNT}, 0")
            for k in ks:
                e.label(f"L_si{k}"); e.hist = []
                if k == 14: so = f"s{S_CX}"
                else:
                    e.s(f"s_mov_b32 s{S_T0}, {k*4096}"); so = f"s{S_T0}"
                e.bload("buffer_load_dwordx4", H_BUF + 4 * k, 4, H_G, SRD_WS, so, flags=c["fgat"])
            e.s(f"s_add_u32 s{S_CNT}, s{S_CNT}, 1\ns_cmp_ge_u32 s{S_CNT}, 0x40000\ns_cbranch_scc1 L_sdone")
            e.vmcnt(0)
            for k in ks:
                b = H_BUF + 4 * k
                e.v(f"v_max3_u32 v22, v{b}, v{b+1}, v{b+2}")
                e.v(f"v_max_u32 v22, v22, v{b+3}")
                e.v("v_cmp_eq_u32 vcc, -1, v22")
                e.s(f"s_cbranch_vccz L_sok{k}")
                if c["RSLEEP"]: e.other(f"s_sleep {c['RSLEEP']}")
                e.s(f"s_branch L_si{k}")
                e.label(f"L_sok{k}")
            e.label("L_sdone"); e.hist = []
            e.vmcnt(0)
            self.stamp("h", "sent")
            for k in ks: accum(k)
        for j in range(4): e.v(f"v_cvt_pk_bf16_f32 v{H_TMP+j}, v{H_ACC+2*j}, v{H_ACC+2*j+1}")
        for j in range(4):
            e.emit(Ins(f"ds_bpermute_b32 v{H_TMP+4+j}, v{H_PRM}, v{H_TMP+j}", "ds", rd=R(H_PRM) | R(H_TMP + j), wr=R(H_TMP + 4 + j)))
            e.pend.append(R(H_TMP + 4 + j))
        e.bstore("buffer_store_dwordx4", H_TMP + 4, 4, H_OUT, SRD_OUT, "0", flags=c["fout"])
        self.stamp("h", "stored")
        if c["stamp"]:
            e.vmcnt(0); self.stamp("h", "end")
        self.write_stamps("h")
        e.other("s_endpgm")
        e.label("L_hslow"); e.hist = []
        e.barrier()
        e.barrier()
        e.s("s_branch L_hgo")

    def wsoff(self):
        if self.c["wsoff"]:
            self.e.s(f"s_add_u32 s{SRD_WS}, s{SRD_WS}, {self.c['wsoff'] << 20}\ns_addc_u32 s{SRD_WS+1}, s{SRD_WS+1}, 0")

    def issue(self, it):
        e, c = self.e, self.c
        n = it["name"]; k = n[0]
        if c["nodma"]:
            cnt = 0
        elif k == "x":
            e.s(f"s_add_u32 m0, s{S_M2}, {it['lds']}")
            e.dma(H_X, SRD_X, f"s{S_CX}", 0, c["fx"]); e.dma(H_X + 1, SRD_X, f"s{S_CX}", 1024, c["fx"])
            if n != "x7": e.s(f"s_add_u32 s{S_CX}, s{S_CX}, 128\ns_and_b32 s{S_CX}, s{S_CX}, 0x3ff")
            cnt = 2
        elif k == "q":
            e.s(f"s_add_u32 m0, s{S_M4}, {it['lds']}")
            for j in range(4): e.dma(H_Q + j, SRD_WQ, f"s{S_CQ}", 1024 * j, c["fq"])
            if n != "q15": e.s(f"s_add_u32 s{S_CQ}, s{S_CQ}, 0x40000\ns_and_b32 s{S_CQ}, s{S_CQ}, 0x3fffff")
            cnt = 4
        elif k in "kv":
            j = int(n[1:])
            e.s(f"s_add_u32 m0, s{S_M2}, {it['lds']}")
            if c["kvalt"]:
                sreg = S_KE if j < 2 else (S_KF if j >= 14 else (S_KP if j % 4 < 2 else S_KQ))
                e.s(f"s_add_u32 s{S_CKV}, s{sreg}, {j*8192}")
            elif c["kvrot"]: e.s(f"s_add_u32 s{S_CKV}, s{S_KP}, {j*8192}\ns_and_b32 s{S_CKV}, s{S_CKV}, 0x1ffff")
            else: e.s(f"s_mov_b32 s{S_CKV}, {j*8192}")
            if k == "k":
                e.dma(H_K, SRD_K, f"s{S_CKV}", 0, c["fk"]); e.dma(H_K + 1, SRD_K, f"s{S_CKV}", 1024, c["fk"])
            else:
                e.dma(H_V, SRD_V, f"s{S_CKV}", 0, c["fv"]); e.dma(H_V, SRD_V, f"s{S_CKV}", 1024, c["fv"])
            cnt = 2
        else:
            if "reg" not in it: e.s(f"s_add_u32 m0, s{S_M4}, {it['lds']}")
            if n[2] == "a":
                e.s(f"s_add_u32 s{S_CO}, s{S_R3}, {n[1]}\ns_and_b32 s{S_CO}, s{S_CO}, 7\ns_lshl_b32 s{S_CO}, s{S_CO}, 7")
            else: e.s(f"s_add_u32 s{S_CO}, s{S_CO}, 0x20000")
            for j in range(4):
                if "reg" in it: e.bload("buffer_load_dwordx4", it["reg"] + 4 * j, 4, H_O + j, SRD_WO, f"s{S_CO}", 1024 * j, c["fo"])
                else:
                    if c["PACE3"] is not None and int(n[1]) >= 3: e.vmcnt(c["PACE3"])
                    e.dma(H_O + j, SRD_WO, f"s{S_CO}", 1024 * j, c["fo"])
            cnt = 4
        self.hseq += cnt
        it["last"] = self.hseq - 1

    def wave0_only(self, fn, tag, sreg=S_WAVE):
        e = self.e
        e.s(f"s_cmp_lg_u32 s{sreg}, 0\ns_cbranch_scc1 L_w0_{tag}")
        h0 = len(e.out); mark = list(e.hist)
        fn()
        blk = [i for i in e.hist if i not in mark]
        for i in blk: i.states = 0
        e.label(f"L_w0_{tag}")

    def compute_setup(self):
        e, c = self.e, self.c
        L = V_LANE
        if c["prio_c"]: e.other(f"s_setprio {c['prio_c']}")
        if c["l2pf"]:
            e.other("s_getpc_b64 s[92:93]")
            e.s(f"s_and_b32 s92, s92, 0xfffff000\ns_mov_b32 s94, L_end-L_pg1+4096\ns_mov_b32 s95, 0x20000\ns_lshr_b32 s{S_T0}, s2, 3\ns_lshl_b32 s{S_T0}, s{S_T0}, 10")
            e.v(f"v_lshlrev_b32 v48, 7, v{L}")
            e.v(f"v_lshrrev_b32 v49, 3, v{L}")
            e.v(f"v_lshl_or_b32 v48, v49, 28, v48")
            self.wave0_only(lambda: e.bload("buffer_load_dword", 242, 1, 48, 92, f"s{S_T0}"), "pf")
        MB, HH = S_T0, S_T1
        e.s(f"s_and_b32 s{MB}, s{S_WAVE}, 1\ns_lshr_b32 s{HH}, s{S_WAVE}, 1")
        h, rr, g, c0, c1, l32, a, b = 48, 49, 50, 51, 52, 53, 54, 55
        e.v(f"v_lshrrev_b32 v{h}, 5, v{L}")
        e.v(f"v_bfe_u32 v{rr}, v{L}, 2, 2")
        e.v(f"v_bfe_u32 v{g}, v{L}, 4, 1")
        e.v(f"v_and_b32 v{c0}, 1, v{L}")
        e.v(f"v_bfe_u32 v{c1}, v{L}, 1, 1")
        e.v(f"v_and_b32 v{l32}, 31, v{L}")
        e.v(f"v_lshl_add_u32 v{a}, v{h}, 3, v{rr}")
        e.v(f"v_lshlrev_b32 v{a}, 9, v{a}")
        e.s(f"s_lshl_b32 s{S_T2}, s{HH}, 8")
        e.v(f"v_lshl_add_u32 v{a}, v{g}, 5, v{a}")
        e.v(f"v_lshl_add_u32 v{a}, v{c0}, 4, v{a}")
        e.v(f"v_lshl_add_u32 v{a}, v{c1}, 3, v{a}")
        e.v(f"v_add_u32 v{a}, s{S_T2}, v{a}")
        e.v(f"v_lshl_add_u32 v{A_WQ}, v{rr}, 6, v{a}")
        for t in range(1, 4): e.v(f"v_xor_b32 v{A_WQ+t}, {t<<6}, v{A_WQ}")
        for t in range(4): e.v(f"v_add_u32 v{A_WQ+4+t}, 0x10000, v{A_WQ+t}")
        e.s(f"s_lshl_b32 s{S_T2}, s{MB}, 12\ns_add_u32 s{S_T2}, s{S_T2}, {KR}")
        e.v(f"v_lshl_add_u32 v{a}, v{l32}, 7, s{S_T2}")
        e.v(f"v_bfe_u32 v{b}, v{L}, 1, 3")
        e.v(f"v_xor_b32 v{b}, v{b}, v{h}")
        e.v(f"v_lshl_add_u32 v{A_X}, v{b}, 4, v{a}")
        for s in range(1, 4): e.v(f"v_xor_b32 v{A_X+s}, {s<<5}, v{A_X}")
        e.v(f"v_lshlrev_b32 v{a}, 8, v{l32}")
        e.v(f"v_add_u32 v{a}, {KR}, v{a}")
        e.v(f"v_and_b32 v{b}, 15, v{L}")
        e.v(f"v_xor_b32 v{b}, v{b}, v{h}")
        e.v(f"v_lshl_add_u32 v{A_K}, v{b}, 4, v{a}")
        for s in range(1, 8): e.v(f"v_xor_b32 v{A_K+s}, {s<<5}, v{A_K}")
        e.v(f"v_lshl_add_u32 v{a}, v{h}, 2, v{rr}")
        e.v(f"v_lshlrev_b32 v{b}, 8, v{a}")
        e.v(f"v_add_u32 v{b}, {VR}, v{b}")
        e.v(f"v_lshl_add_u32 v{b}, v{g}, 5, v{b}")
        e.v(f"v_lshl_add_u32 v{b}, v{c1}, 4, v{b}")
        e.v(f"v_lshl_add_u32 v{b}, v{c0}, 3, v{b}")
        e.v(f"v_lshl_add_u32 v{A_V}, v{rr}, 6, v{b}")
        for t in range(1, 4): e.v(f"v_xor_b32 v{A_V+t}, {t<<6}, v{A_V}")
        e.v(f"v_lshlrev_b32 v{a}, 7, v{a}")
        e.v(f"v_lshl_add_u32 v{a}, v{c0}, 5, v{a}")
        e.v(f"v_lshl_add_u32 v{a}, v{g}, 4, v{a}")
        e.v(f"v_lshl_add_u32 v{a}, v{c1}, 3, v{a}")
        e.v(f"v_lshrrev_b32 v{b}, 1, v{rr}")
        e.v(f"v_xor_b32 v{b}, s{HH}, v{b}")
        e.v(f"v_lshl_add_u32 v{a}, v{b}, 6, v{a}")
        e.s(f"s_lshl_b32 s{S_T2}, s{HH}, 14")
        e.v(f"v_add_u32 v{A_WO}, s{S_T2}, v{a}")
        e.v(f"v_xor_b32 v{A_WO+1}, 0x4000, v{A_WO}")
        for w in (1, 2):
            e.v(f"v_add_u32 v{A_WO+2*w}, {w*0x10000}, v{A_WO}")
            e.v(f"v_add_u32 v{A_WO+2*w+1}, {w*0x10000}, v{A_WO+1}")
        e.s(f"s_lshl_b32 s{S_T2}, s{S_WAVE}, 13\ns_add_u32 s{S_T2}, s{S_T2}, {KR}")
        e.v(f"v_lshl_add_u32 v{V_XW}, v{L}, 4, s{S_T2}")
        e.v(f"v_xor_b32 v{V_XR}, 0x4000, v{V_XW}")
        e.s(f"""s_lshl_b32 s{S_T2}, s{S_GRP}, 20
s_lshl_b32 s{S_T3}, s{MB}, 16
s_add_u32 s{S_T2}, s{S_T2}, s{S_T3}
s_and_b32 s{S_T3}, s{S_D}, 1
s_lshl_b32 s{S_T3}, s{S_T3}, 12
s_add_u32 s{S_T2}, s{S_T2}, s{S_T3}
s_lshl_b32 s{S_T3}, s{HH}, 11
s_add_u32 s{S_T2}, s{S_T2}, s{S_T3}""")
        e.v(f"v_lshl_add_u32 v{V_PUB}, v{L}, 4, s{S_T2}")
        e.s(f"""s_lshl_b32 s{S_T2}, s{S_GRP}, 4
s_add_u32 s{S_T2}, s{S_T2}, s{MB}
s_lshl_b32 s{S_T2}, s{S_T2}, 5
s_and_b32 s{S_T3}, s{S_D}, 1
s_lshl_b32 s{S_T3}, s{S_T3}, 1
s_add_u32 s{S_T2}, s{S_T2}, s{S_T3}
s_add_u32 s{S_T2}, s{S_T2}, s{HH}
s_lshl_b32 s{S_T2}, s{S_T2}, 2
s_add_u32 s{S_T2}, s{S_T2}, {WS_F}""")
        e.v(f"v_min_u32 v{a}, 1, v{L}")
        e.v(f"v_lshlrev_b32 v{a}, 31, v{a}")
        e.v(f"v_add_u32 v{V_FLG}, s{S_T2}, v{a}")
        e.s(f"s_lshl_b32 s{S_T2}, s{S_GRP}, 4")
        e.v(f"v_add_u32 v{V_RDY}, s{S_T2}, v{a}")
        e.v(f"v_mov_b32 v{V_ONE}, 1")
        for r in range(4): e.v(f"v_mov_b32 v{V_M1+r}, -1")
        e.v(f"v_mov_b32 v{V_L0}, 0"); e.v(f"v_mov_b32 v{V_L1}, 0")
        for r in range(16): e.v(f"v_mov_b32 v{CT+r}, 0")
        sc = f2u(math.log2(math.e) / math.sqrt(128.0))
        e.s(f"s_mov_b32 s{S_SC}, {sc:#x}\ns_mov_b32 s{S_SC+1}, {sc:#x}\ns_mov_b32 s{S_FIN}, 0")
        e.s(f"""s_lshl_b32 s{S_T2}, s{S_GRP}, 11
s_add_u32 s{S_T2}, s{S_T2}, {WS_F}
s_or_b32 s{S_CLR}, s{S_WAVE}, s{S_HP}""")
        e.v(f"v_lshl_add_u32 v{T0}, v{L}, 4, s{S_T2}")
        e.other("s_waitcnt lgkmcnt(0)")
        self.wsoff()
        def clr():
            e.bstore("buffer_store_dwordx4", CT, 4, T0, SRD_WS, "0", flags="sc1")
            e.bstore("buffer_store_dwordx4", CT, 4, T0, SRD_WS, "0", 1024, flags="sc1")
        self.wave0_only(clr, "clr", S_CLR)
        if c["tlbpf"]:
            def tl():
                e.s(f"""s_lshr_b32 s{S_T2}, s{S_HP}, 1
s_lshl_b32 s{S_T3}, s{S_B}, 3
s_add_u32 s{S_T2}, s{S_T2}, s{S_T3}
s_lshl_b32 s{S_T2}, s{S_T2}, 17
s_lshl_b32 s{S_T3}, s{S_HP}, 18""")
                e.v(f"v_min_u32 v{T0+1}, 1, v{L}")
                e.v(f"v_lshlrev_b32 v{T0+1}, 31, v{T0+1}")
                e.bload("buffer_load_dword", 243, 1, T0 + 1, SRD_K, f"s{S_T2}")
                e.bload("buffer_load_dword", 243, 1, T0 + 1, SRD_V, f"s{S_T2}")
                e.bload("buffer_load_dword", 243, 1, T0 + 1, SRD_WO, f"s{S_T3}")
                e.s(f"s_lshl_b32 s{S_T2}, s{S_GRP}, 20\ns_lshl_b32 s{S_T3}, s{S_B}, 17")
                e.bload("buffer_load_dword", 243, 1, T0 + 1, SRD_WS, f"s{S_T2}")
                e.bload("buffer_load_dword", 243, 1, T0 + 1, SRD_OUT, f"s{S_T3}")
                e.s(f"s_mov_b32 s{S_T2}, {WS_F + 0x10000}")
                e.bload("buffer_load_dword", 243, 1, T0 + 1, SRD_WS, f"s{S_T2}")
            e.s(f"s_xor_b32 s{S_CNT}, s{S_WAVE}, 1")
            self.wave0_only(tl, "tlb", S_CNT)

    def dump(self, base, n, tag):
        e = self.e
        e.nop(12)
        e.s(f"s_lshl_b32 s{S_T0}, s2, 2\ns_add_u32 s{S_T0}, s{S_T0}, s{S_WAVE}\ns_mul_i32 s{S_T0}, s{S_T0}, {n*256}\ns_add_u32 s{S_T0}, s{S_T0}, {18<<20}")
        e.v(f"v_lshlrev_b32 v{T0+1}, 2, v{V_LANE}")
        for r in range(n):
            if r and r % 16 == 0: e.s(f"s_add_u32 s{S_T0}, s{S_T0}, 4096")
            e.bstore("buffer_store_dword", base + r, 1, T0 + 1, SRD_WS, f"s{S_T0}", (r % 16) * 256)
        e.vmcnt(0)

    def run_mfmas(self, M, fill, W, pre=None, ph=0):
        e = self.e
        for g, (d, a, b, cc) in enumerate(M):
            for f in (pre or {}).get(g, []): f()
            if W > 1 and g % W == 0:
                regs = R(b, 4)
                for k in range(g, min(g + W, len(M))): regs = regs | R(M[k][1], 4)
                e.wait_regs(regs)
            if any(ph == p and a0 <= g < a1 and g % m == m - 1 for p, a0, a1, m in self.c["skip"]) and cc is not None: e.wait_regs(R(a, 4) | R(b, 4)); e.nop(6)
            else: e.mfma(d, a, b, cc)
            for f in fill.get(g, []): f()

    def place(self, reads, bar, n, LEAD):
        e = self.e
        fill = {}; head = []
        for g in range(n):
            ops = []
            if g in bar:
                def fb(nm=bar[g]):
                    if nm in ("B1_0", "B1_8", "BK_1", "BK_8", "BK_16", "B3_2", "B3_4", "B3_6"): self.stamp("c", "pre" + nm)
                    e.barrier()
                    if nm in ("B1_0", "BK_0"): self.stamp("c", "post" + nm)
                ops.append(fb)
            ops += reads.get(g, [])
            if g < LEAD: head += ops
            else: fill.setdefault(g - LEAD, []).extend(ops)
        return fill, head

    def compute(self):
        e, c = self.e, self.c
        NF = c["NF"]
        e.raw(".p2align 12\n;@PAGED")
        e.label("L_compute"); e.hist = []
        self.stamp("c", "setup")
        for n in range(c["warm"]):
            e.mfma(SS, A_WQ, A_K, None if n == 0 else SS)
            if c["warmd"]: e.nop(c["warmd"])
        fr = lambda g: FR + 4 * (g % NF)
        def spread(fill, ops, g0, per):
            for n, f in enumerate(ops): fill.setdefault(g0 + n // per, []).append(f)
        M = []; reads = {}; bar = {}
        for kt in range(16):
            slot = self.items[f"q{kt}"]["lds"]
            win, so = (0, slot) if slot < 65536 else (4, slot - 65536)
            for s2 in range(2):
                st = kt * 2 + s2
                xb = XB + 4 * (st % 3)
                for t in range(4):
                    g = len(M)
                    M.append((ACC + 16 * t, fr(g), xb, None if st == 0 else ACC + 16 * t))
                    rl = []
                    if t == 0:
                        xo = self.items[f"x{kt//2}"]["lds"] - KR
                        rl.append(lambda xb=xb, s=st % 4, xo=xo: e.ds128(xb, A_X + s, xo))
                    o = so + s2 * 8192
                    rl.append(lambda d=fr(g), t=t, o=o, win=win: e.dstr(d, A_WQ + win + t, o))
                    rl.append(lambda d=fr(g), t=t, o=o, win=win: e.dstr(d + 2, A_WQ + win + t, o + 2048))
                    reads[g] = rl
            bar[kt * 8] = f"B1_{kt}"
        fill, head = self.place(reads, bar, len(M), c["L1"])
        fill.setdefault(8 * c["TPOS"], []).append(lambda: e.raw(";@TOUCH2"))
        def arrive():
            e.vmcnt(0)
            e.bstore("buffer_store_dword", V_ONE, 1, V_RDY, SRD_DBG, "0", flags="sc1")
        fill.setdefault(41, []).append(lambda: self.wave0_only(arrive, "arr", S_CLR))
        for f in head: f()
        self.run_mfmas(M, fill, c["W1"], ph=1)
        self.stamp("c", "P1end")
        M = []; reads = {}; bar = {}
        def addQK(j):
            bar[len(M)] = f"BK_{j}"
            so = self.items[f"k{j}"]["lds"] - KR
            for s in range(8):
                g = len(M); S = SS + 16 * (j % 2)
                M.append((S, fr(g), QP + 4 * s, CT if s == 0 else S))
                reads[g] = [lambda d=fr(g), s=s, so=so: e.ds128(d, A_K + s, so)]
        def addPV(j):
            so = self.items[f"v{j}"]["lds"] - VR
            for u in range(2):
                for t in range(4):
                    g = len(M)
                    M.append((ACC + 16 * t, fr(g), PP + 4 * u, None if (j == 0 and u == 0) else ACC + 16 * t))
                    o = so + u * 4096
                    reads[g] = [lambda d=fr(g), t=t, o=o: e.dstr(d, A_V + t, o),
                                lambda d=fr(g), t=t, o=o: e.dstr(d + 2, A_V + t, o + 2048)]
        addQK(0)
        for j in range(15): addQK(j + 1); addPV(j)
        bar[len(M)] = "BK_16"
        addPV(15)
        fill, head = self.place(reads, bar, len(M), c["L2"])
        def ex(j, r): return lambda: e.v(f"v_exp_f32 v{SS+16*(j%2)+r}, v{SS+16*(j%2)+r}")
        def cv(j, k): return lambda: e.v(f"v_cvt_pk_bf16_f32 v{PP+k}, v{SS+16*(j%2)+2*k}, v{SS+16*(j%2)+2*k+1}")
        def ad(j, r): return lambda: e.v(f"v_add_f32 v{V_L0+(r%2)}, v{V_L0+(r%2)}, v{SS+16*(j%2)+r}")
        def put(j, g, spec):
            front = []
            for tok in spec.split():
                first = tok[0] == "<"
                if first: tok = tok[1:]
                f = {"e": ex, "c": cv, "a": ad}[tok[0]](j, int(tok[1:]))
                if first: front.append(f)
                else: fill.setdefault(g, []).append(f)
            fill[g] = front + fill.get(g, [])
        TAB = c["tab"] or {-5: "e0", -4: "e1 e2", -3: "e3 e4 c0", -2: "e5 e6 c1", -1: "e7 c2 a0", 0: "e8 e9 c3", 1: "e10 c4 a1",
                           2: "e11 e12", 3: "e13 c5", 4: "e14 c6 a2", 5: "e15 a3 a4", 6: "c7 a5 a6 a7", 7: "a8 a9 a10",
                           8: "a11 a12 a13", 9: "a14 a15"}
        TAB0 = {1: "e0", 2: "e1 e2 e3", 3: "e4 e5 c0", 4: "e6 e7 c1", 5: "e8 c2 c3", 6: "e9 e10 c4", 7: "e11 e12", 8: "e13 e14 c5",
                9: "e15 c6 a0", 10: "c7 a1 a2 a3 a4", 11: "a5 a6 a7", 12: "a8 a9", 13: "a10 a11", 14: "a12 a13", 15: "a14 a15"}
        neg = " ".join(v for k, v in TAB.items() if k < 0).split()
        rest = [t for t in " ".join(v for k, v in TAB.items() if k >= 0).split()]
        for j in range(15):
            for k, sp in (TAB0 if j == 0 else TAB).items(): put(j, 8 + 16 * j + k, sp)
        g0 = 8 + 16 * 15
        for k, sp in TAB.items():
            if k < 0: put(15, g0 + k, sp)
        assert "c3" in rest and "e7" in neg and "e8" in rest
        put(15, g0 - 1, "c3")
        adds = [t for t in rest if t[0] == "a"]
        for k, sp in enumerate(["e8 e9 " + adds[0], "e10 e11 c4 " + adds[1], "e12 e13 c5 " + adds[2], "<e14 <e15 <c6 <c7 " + adds[3],
                                " ".join(adds[4:10]), " ".join(adds[10:])]):
            put(15, g0 + k, sp)
        l, t1, t2, RC = V_L0, T0, T0 + 1, T0 + 3
        def lchain():
            e.v(f"v_add_f32 v{l}, v{V_L0}, v{V_L1}")
            e.v(f"v_mov_b32 v{t1}, v{l}")
            e.s(f"s_mov_b32 s{S_T0}, {f2u(2.0**-30):#x}\ns_mov_b32 s{S_T1}, {f2u(2.0**30):#x}")
            e.v(f"v_permlane32_swap_b32 v{l}, v{t1}")
            e.v(f"v_add_f32 v{l}, v{l}, v{t1}")
            e.v(f"v_rcp_f32 v{RC}, v{l}")
            e.v(f"v_cmp_nle_f32 vcc, s{S_T0}, v{l}")
            e.v(f"v_cmp_nge_f32 s[56:57], s{S_T1}, v{l}")
        def rdyload(): e.bload("buffer_load_dword", T0 + 2, 1, V_RDY, SRD_DBG, "0", flags="sc1")
        def rdy():
            e.label("L_rdy"); e.vmcnt(0)
            e.v(f"v_readfirstlane_b32 s{S_T0}, v{T0+2}")
            e.s(f"s_cmp_eq_u32 s{S_T0}, 1\ns_cbranch_scc1 L_rdyok")
            e.bload("buffer_load_dword", T0 + 2, 1, V_RDY, SRD_DBG, "0", flags="sc1")
            e.s(f"s_add_u32 s{S_CNT}, s{S_CNT}, 1\ns_cmp_lt_u32 s{S_CNT}, 0x40000\ns_cbranch_scc1 L_rdy")
            e.label("L_rdyok")
        SENT = c["SENT"]
        J0 = 8 + 16 * c["CLRJ"]; J1 = 8 + 16 * c["CLRF"]
        fill.setdefault(8 + 10, []).append(lambda: self.wave0_only(rdyload, "rl"))
        def rdychk():
            e.s(f"s_mov_b32 s{S_CNT}, 0"); self.wave0_only(rdy, "rdy")
        gb = J1 - 16 + 16 - c["L2"]
        fill[gb] = [rdychk] + fill.get(gb, [])
        def so_pub(i):
            e.s(f"s_add_u32 s{S_T0}, s{S_R3}, {i}\ns_and_b32 s{S_T0}, s{S_T0}, 7\ns_lshl_b32 s{S_T1}, s{S_T0}, 17")
            if i: e.s(f"s_add_u32 s{S_T1}, s{S_T1}, {i*8192}")
        def so_flag(i):
            e.s(f"s_add_u32 s{S_T2}, s{S_R3}, {i}\ns_and_b32 s{S_T2}, s{S_T2}, 7\ns_lshl_b32 s{S_T2}, s{S_T2}, 8")
        for n, i in enumerate(range(SENT, 8)):
            if not c["noclear"]:
                fill.setdefault(J0 + 16 * (n // 2) + 9 + 2 * (n % 2), []).append(lambda i=i: so_pub(i))
                for q in range(2):
                    fill.setdefault(J0 + 16 * (n // 2) + 10 + 2 * (n % 2) + 0 * q, []).append(
                        lambda q=q: e.bstore("buffer_store_dwordx4", V_M1, 4, V_PUB, SRD_WS, f"s{S_T1}", 1024 * q, flags=c["fpub"]))
            def fl(i=i, n=n):
                so_flag(i)
                if n == 0: e.vmcnt(0)
                e.bstore("buffer_store_dword", V_ONE, 1, V_FLG, SRD_WS, f"s{S_T2}", 16 * i, flags=c["fflag"])
            fill.setdefault(J1 + 16 * (n // 2) + 9 + (n % 2), []).append(fl)
        def qscale(t, pk):
            ops = []
            for k in range(8):
                r = ACC + 16 * t + 2 * k
                if pk: ops.append(lambda r=r: e.v(f"v_pk_mul_f32 v[{r}:{r+1}], v[{r}:{r+1}], s[{S_SC}:{S_SC+1}]"))
                else: ops += [lambda r=r: e.v(f"v_mul_f32 v{r}, s{S_SC}, v{r}"), lambda r=r: e.v(f"v_mul_f32 v{r+1}, s{S_SC}, v{r+1}")]
            for k in range(8):
                r = ACC + 16 * t + 2 * k
                ops.append(lambda r=r, k=k: e.v(f"v_cvt_pk_bf16_f32 v{QP+8*t+k}, v{r}, v{r+1}"))
            return ops
        for f in qscale(0, True): f()
        for f in head: f()
        for f in qscale(1, True): f()
        if c["dump"] == "q":
            for f in qscale(2, True) + qscale(3, True): f()
            self.dump(QP, 32, "q")
        else:
            spread(fill, qscale(2, False), 0, 7)
            spread(fill, qscale(3, False)[:12], 3, 4); spread(fill, qscale(3, False)[12:], 4, 6)
        self.stamp("c", "P2start")
        self.run_mfmas(M, fill, c["W2"], ph=2)
        self.stamp("c", "P2end")
        AC = lambda i: (AC3A, AC3B)[i % 2]
        M = []; reads = {}; bar = {}; done = {}
        seq = [(0, 0), (1, 0), (0, 1), (1, 1)] + [(i, hs) for i in range(2, 8) for hs in range(2)]
        for i, hs in seq:
            slot = WOSLOT[i]; win = slot >> 16; so = slot & 0xffff
            if hs == 0 and 2 <= i <= c["NB3"]: bar[len(M)] = f"B3_{i}"
            for k in range(8):
                g = len(M)
                M.append((AC(i), fr(g), (OWN if hs == 0 else OTH) + 4 * k, None if (hs == 0 and k == 0) else AC(i)))
                o = so + k * 2048
                reads[g] = [lambda d=fr(g), o=o, a=A_WO + 2 * win + hs: e.dstr(d, a, o),
                            lambda d=fr(g), o=o, a=A_WO + 2 * win + hs: e.dstr(d + 2, a, o + 1024)]
            if hs == 1: done[i] = len(M) - 1
        L3 = c["L3"]
        fill, head = self.place(reads, bar, len(M), L3)
        e.lgkm(0)
        if c["B17"]: e.barrier()
        e.label("L_norm")
        self.stamp("c", "n_17")
        lchain()
        for f in head[:8]: f()
        for gg in (0, 3, 7, 15): fill.setdefault(gg, []).insert(0, lambda gg=gg: self.stamp("c", f"n_m{gg}"))
        def onorm(t, pk):
            ops = []
            for k in range(8):
                r = ACC + 16 * t + 2 * k
                if pk: ops.append(lambda r=r: e.v(f"v_pk_mul_f32 v[{r}:{r+1}], v[{r}:{r+1}], v[{RC-1}:{RC}] op_sel:[0,1] op_sel_hi:[1,1]"))
                else: ops += [lambda r=r: e.v(f"v_mul_f32 v{r}, v{RC}, v{r}"), lambda r=r: e.v(f"v_mul_f32 v{r+1}, v{RC}, v{r+1}")]
            for k in range(8):
                r = ACC + 16 * t + 2 * k
                ops.append(lambda r=r, k=k: e.v(f"v_cvt_pk_bf16_f32 v{OWN+8*t+k}, v{r}, v{r+1}"))
            return ops
        wr = lambda k: (lambda: e.ds_write("ds_write_b128", V_XW, OWN + 4 * k, 4, 1024 * k))
        for f in onorm(0, True): f()
        e.s(f"s_or_b64 vcc, vcc, s[56:57]\ns_cmp_lg_u32 s{S_FIN}, 0\ns_cbranch_scc1 L_novote\ns_cbranch_vccz L_novote")
        mark = list(e.hist)
        e.v(f"v_mov_b32 v{OWN}, -1")
        for i in e.hist:
            if i not in mark: i.states = 0
        e.label("L_novote")
        for f in head[8:]: f()
        wr(0)(); wr(1)()
        if c["dump"] == "o":
            for t in (1, 2, 3):
                for f in onorm(t, True): f()
            self.dump(OWN, 32, "o")
            for k in range(2, 8): wr(k)()
        else:
            for f in onorm(1, True): f()
            for t in (2, 3):
                ops = onorm(t, False)
                spread(fill, [wr(2 * t - 2)] + ops[:12], 2 * t - 4, 13); spread(fill, [wr(2 * t - 1)] + ops[12:], 2 * t - 3, 13)
            fill.setdefault(4, []).append(wr(6)); fill.setdefault(5, []).append(wr(7))
        def bx():
            e.v(f"v_and_b32 v{t1}, 3, v{V_LANE}")
            e.v(f"v_lshlrev_b32 v{t1}, 13, v{t1}")
            e.v(f"v_add_u32 v{t1}, {KR}, v{t1}")
            nw = max(n for n, p in enumerate(e.pend) if not p) if any(not p for p in e.pend) else -1
            if nw >= 0: e.lgkm(len(e.pend) - 1 - nw)
            self.stamp("c", "preBX")
            e.barrier()
            self.stamp("c", "postBX")
            e.ds32(t2, t1)
        GX = c["GX"]
        fill[GX] = [bx] + fill.get(GX, [])
        for k in range(8):
            fill.setdefault(GX + k // 2 if c["BY"] else min(GX + k, 11 + k), []).append(lambda k=k: e.ds128(OTH + 4 * k, V_XR, 1024 * k))
        if c["BY"]:
            def by():
                e.wait_regs(R(OTH, 32)); e.barrier()
            fill[GX + 6] = [by] + fill.get(GX + 6, [])
        def vote():
            e.v(f"v_cmp_eq_u32 vcc, -1, v{t2}")
            e.s(f"s_cmp_lg_u32 s{S_FIN}, 0\ns_cbranch_scc1 L_voted\ns_cbranch_vccnz L_slow")
            e.label("L_voted")
        fill[GX + 3] = [vote] + fill.get(GX + 3, [])
        FL = c["FLAGLAG"]
        vseq = []
        def pub_cvt(i, k): return lambda: e.v(f"v_cvt_pk_bf16_f32 v{PK+8*(i%2)+k}, v{AC(i)+2*k}, v{AC(i)+2*k+1}")
        def pub_min(i, k): return lambda: e.v(f"v_min_u32 v{PK+8*(i%2)+k}, -2, v{PK+8*(i%2)+k}")
        def pub_so(i): return lambda: so_pub(i)
        def pub_st(i, q):
            def f():
                if c["nopub"]:
                    vseq.append(("S", i)); return
                e.bstore("buffer_store_dwordx4", PK + 8 * (i % 2) + 4 * q, 4, V_PUB, SRD_WS, f"s{S_T1}", 1024 * q, flags=c["fpub"])
                vseq.append(("S", i))
            return f
        def pub_flag(i):
            def f():
                so_flag(i)
                last = max(n for n, x in enumerate(vseq) if x == ("S", i))
                e.vmcnt(len(vseq) - 1 - last)
                e.bstore("buffer_store_dword", V_ONE, 1, V_FLG, SRD_WS, f"s{S_T2}", 16 * i, flags=c["fflag"])
                vseq.append(("F", i))
            return f
        late = []
        for i in range(7):
            g = done[i] + 1 + (min(c["PUBG"], 3) if i == 0 else c["PUBG"])
            fill.setdefault(g - 1, []).append(pub_so(i))
            for k in range(8):
                fill.setdefault(g + k // 2, []).append(pub_cvt(i, k))
                if i >= SENT: fill.setdefault(g + k // 2 + 1, []).insert(0, pub_min(i, k))
            fill.setdefault(g + 2, []).append(pub_st(i, 0))
            fill.setdefault(g + 4, []).append(pub_st(i, 1))
            if i >= SENT: continue
            gf = g + 7 + 16 * FL
            if gf < len(M) and i < c["FLMAX"]: fill.setdefault(gf, []).append(pub_flag(i))
            else: late.append(i)
        self.run_mfmas(M, fill, c["W3"], ph=3)
        self.stamp("c", "P3end")
        e.s(f"s_and_b32 s{S_T0}, s{S_D}, 1\ns_and_b32 s{S_T1}, s{S_WAVE}, 1\ns_cmp_eq_u32 s{S_T0}, s{S_T1}\ns_cbranch_scc1 L_own")
        h0 = list(e.hist); v0 = list(vseq)
        pub_so(7)()
        for k in range(8): pub_cvt(7, k)()
        if SENT <= 7:
            for k in range(8): pub_min(7, k)()
        pub_st(7, 0)(); pub_st(7, 1)()
        if c["GLATE"]: e.barrier()
        for i in late + ([7] if SENT > 7 else []): pub_flag(i)()
        e.s("s_branch L_fin")
        e.label("L_own"); e.hist = h0; vseq[:] = v0
        e.s(f"s_lshr_b32 s{S_T0}, s{S_WAVE}, 1\ns_lshl_b32 s{S_T0}, s{S_T0}, 12\ns_add_u32 s{S_T0}, s{S_T0}, {VR}")
        e.v(f"v_lshl_add_u32 v{T0}, v{V_LANE}, 4, s{S_T0}")
        for p in range(4): e.ds_write("ds_write_b128", T0, AC(7) + 4 * p, 4, 1024 * p)
        if c["GLATE"]: e.lgkm(0); e.barrier()
        for i in late: pub_flag(i)()
        e.lgkm(0)
        e.label("L_fin")
        if not c["GLATE"]: e.barrier()
        self.stamp("c", "flagged")
        self.write_stamps("c")
        e.other("s_endpgm")
        self.slow()

    def slow(self):
        e = self.e
        L = V_LANE
        e.raw(";@UNPAGED")
        e.label("L_slow"); e.hist = []; e.pend = []
        e.other("s_waitcnt vmcnt(0) lgkmcnt(0)"); e.nop(16)
        e.barrier()
        KA, VA, MX, t1 = T0, T0 + 1, T0 + 6, T0 + 7
        e.s(f"""s_mov_b32 s{S_FIN}, 1
s_lshr_b32 s{S_T0}, s{S_HP}, 1
s_lshl_b32 s{S_T1}, s{S_B}, 3
s_add_u32 s{S_T0}, s{S_T0}, s{S_T1}
s_lshl_b32 s{S_T0}, s{S_T0}, 17""")
        e.v(f"v_and_b32 v{t1}, 31, v{L}")
        e.v(f"v_lshrrev_b32 v{MX}, 5, v{L}")
        e.v(f"v_lshlrev_b32 v{KA}, 8, v{t1}")
        e.v(f"v_lshl_add_u32 v{KA}, v{MX}, 4, v{KA}")
        e.v(f"v_add_u32 v{KA}, s{S_T0}, v{KA}")
        e.v(f"v_lshlrev_b32 v{VA}, 10, v{MX}")
        e.v(f"v_lshl_add_u32 v{VA}, v{t1}, 1, v{VA}")
        e.v(f"v_add_u32 v{VA}, s{S_T0}, v{VA}")
        e.v(f"v_mov_b32 v{MX}, 0xff800000")
        def qk(cinit):
            for s in range(8): e.bload("buffer_load_dwordx4", FR + 4 * s, 4, KA, SRD_K, f"s{S_T1}", 32 * s)
            e.vmcnt(0)
            for s in range(8): e.mfma(SS, FR + 4 * s, QP + 4 * s, cinit if s == 0 else SS)
        e.s(f"s_mov_b32 s{S_T1}, 0")
        e.label("L_s1"); e.nop(12)
        qk(None)
        for r in range(0, 16, 2): e.v(f"v_max3_f32 v{MX}, v{MX}, v{SS+r}, v{SS+r+1}")
        e.s(f"s_add_u32 s{S_T1}, s{S_T1}, 8192\ns_cmp_lt_u32 s{S_T1}, 0x20000\ns_cbranch_scc1 L_s1")
        e.v(f"v_mov_b32 v{t1}, v{MX}")
        e.v(f"v_permlane32_swap_b32 v{MX}, v{t1}")
        e.v(f"v_max_f32 v{MX}, v{MX}, v{t1}")
        for r in range(16): e.v(f"v_sub_f32 v{CT+r}, 0, v{MX}")
        for r in range(64): e.v(f"v_mov_b32 v{ACC+r}, 0")
        e.v(f"v_mov_b32 v{V_L0}, 0"); e.v(f"v_mov_b32 v{V_L1}, 0")
        e.s(f"s_mov_b32 s{S_T1}, 0")
        e.label("L_s2"); e.nop(12)
        qk(CT)
        for r in range(16): e.v(f"v_exp_f32 v{SS+r}, v{SS+r}")
        for r in range(16): e.v(f"v_add_f32 v{V_L0}, v{V_L0}, v{SS+r}")
        for k in range(8): e.v(f"v_cvt_pk_bf16_f32 v{PP+k}, v{SS+2*k}, v{SS+2*k+1}")
        for u in range(2):
            e.s(f"s_add_u32 s{S_T2}, s{S_T1}, {u*4096}")
            for t in range(4):
                for j in range(8):
                    row = 8 * (j // 4) + j % 4
                    op = "buffer_load_short_d16_hi" if j % 2 else "buffer_load_short_d16"
                    e.bload(op, FR + 4 * t + j // 2, 1, VA, SRD_V, f"s{S_T2}", row * 256 + t * 64)
                    if j % 2 == 0: e.vmcnt(0)
            e.vmcnt(0)
            for t in range(4): e.mfma(ACC + 16 * t, FR + 4 * t, PP + 4 * u, ACC + 16 * t)
            e.nop(8)
        e.s(f"s_add_u32 s{S_T1}, s{S_T1}, 8192\ns_cmp_lt_u32 s{S_T1}, 0x20000\ns_cbranch_scc1 L_s2")
        e.nop(16)
        e.s("s_branch L_norm")

    def build(self):
        e = self.e
        self.plan()
        e.raw(f"""; Fused GQA block (two branches), gfx950.  Generated by the author's own generator script.
; @launch grid=(256,1,1) block=(512,1,1) lds={LDS}
.amdgcn_target "amdgcn-amd-amdhsa--gfx950"
.text
.globl {KN}
.p2align 8
.type {KN},@function
{KN}:""")
        self.prologue()
        self.helper()
        self.compute()
        e.label("L_end"); e.other("s_endpgm")
        e.raw(f""".section .rodata,"a"
.p2align 6
.amdhsa_kernel {KN}
  .amdhsa_next_free_vgpr 248
  .amdhsa_next_free_sgpr 102
  .amdhsa_accum_offset 248
  .amdhsa_group_segment_fixed_size 0
  .amdhsa_kernarg_size 104
  .amdhsa_user_sgpr_count 2
  .amdhsa_user_sgpr_kernarg_segment_ptr 1
  .amdhsa_system_sgpr_workgroup_id_x 1
.end_amdhsa_kernel""")
        assert e.maxv < 248
        return self.paginate(e.out)

    def paginate(self, lines):
        import subprocess, re, tempfile, os
        isins = lambda l: l.startswith("    ") and not l.strip().startswith((";", "."))
        with tempfile.TemporaryDirectory() as d:
            open(d + "/a.s", "w").write("\n".join(lines) + "\n")
            subprocess.run(["clang", "-x", "assembler", "-target", "amdgcn-amd-amdhsa", "-mcpu=gfx950", "-c",
                            "-o", d + "/a.o", d + "/a.s".replace("a.s", "a.s")], check=True)
            dis = subprocess.run(["llvm-objdump", "-d", "--mcpu=gfx950", d + "/a.o"], capture_output=True, text=True).stdout
        enc = [(int(m.group(1), 16), len(m.group(2).split()) * 4, m.group(0)) for m in re.finditer(r"// ([0-9A-F]{12}): ((?:[0-9A-F]{8} ?)+)", dis)]
        sizes = []; j = 0; addr = 0
        for l in lines:
            if l.startswith(".p2align 12"):
                addr = (addr + 4095) // 4096 * 4096
                while enc[j][0] < addr: j += 1
            if isins(l):
                assert enc[j][0] == addr, (l, hex(addr), enc[j])
                sizes.append(enc[j][1]); addr += enc[j][1]; j += 1
        n2 = 0
        while True:
            out, nm = self._marks(lines, sizes, isins, n2)
            if nm == n2: break
            n2 = nm
        return self._touches(out, nm)

    def _marks(self, lines, sizes, isins, n2):
        out = []; paged = False; off = 0; nm = 0; k = 0; self.page0 = None; tot = 0
        for l in lines:
            if l == ";@TOUCH2" and n2: off += 8 + 8 * n2
            if l == ";@PAGED":
                paged = True; off = 0
                if self.page0 is None: self.page0 = tot
                continue
            if l == ";@UNPAGED": paged = False; continue
            if l == ";@MARK":
                if self.c["touch"]:
                    nm += 1; out += [f"L_mk{nm}:", f"    s_cbranch_execz L_rt{nm}"]; off += 4
                continue
            if isins(l):
                sz = sizes[k]; k += 1; tot += sz
                if paged and self.c["touch"]:
                    if off % 4096 and off // 4096 != (off + sz - 1) // 4096:
                        out.append("    s_nop 0"); off += 4
                    if off and off % 4096 == 0:
                        nm += 1; out += [f"L_mk{nm}:", f"    s_cbranch_execz L_rt{nm}"]; off += 4
                off += sz
            out.append(l)
        return out, nm

    def _touches(self, out, nm):
        res = []
        for l in out:
            if l in (";@TOUCH1", ";@TOUCH2"):
                ks = list(range(1, nm + 1))
                if not ks: continue
                res.append("    s_mov_b64 exec, 0")
                for n, kk in enumerate(ks):
                    res += [f"    s_cmp_eq_u32 s{S_WAVE}, {n % 4}", f"    s_cbranch_scc1 L_mk{kk}", f"L_rt{kk}:"]
                res.append("    s_mov_b64 exec, -1")
            else: res.append(l)
        assert self.page0 + 80 < 4096 - 768, self.page0
        self.npages = nm
        return "\n".join(res) + "\n"

if __name__ == "__main__":
    kw = eval("dict(%s)" % (sys.argv[2] if len(sys.argv) > 2 else ""))
    g = Gen(**kw)
    t = g.build()
    open(sys.argv[1], "w").write(t)
    print("page0", g.page0, "marks", g.npages, "nops", g.e.nnop, "waits", g.e.nwait, "lines", len(g.e.out))
    for n in range(-1, len(g.bars)):
        print(g.bars[n] if n >= 0 else "start", [i["name"] for i in g.sched[n]])
```

```python
import sys, math, struct
from emit import *

NAME = "concat_heads__gqa_block_cached__gqa_block_cached__near_ridge"
KN = NAME + "_kernel"

def f2u(f): return struct.unpack("<I", struct.pack("<f", f))[0]

DEF = dict(
    NF=8, L1=5, W1=2, L2=7, W2=4, L3=7, W3=4, GX=9,
    r1b=(2, 8), r1h=4,
    r3b=(1, 2),
    fx="", fq="", fk="", fv="", fo="",
    kvpre=16,
    NREG=0, PACE3=None, PUBG=6, PREPOLL=9, wopos=(7, 9, 11, 13, 14, 15),
    prio_c=0, prio_h=0,
    stamp=0, dump=None, FLAGLAG=1, touch=1, NB3=6, rounds=tuple((i,) for i in range(8)), l2pf=1, TPOS=1, PSLEEP=0, fpoll='sc1', fgat='sc1', fpub='sc1', fflag='sc1', tlbpf=1, kvalt=0, kvrot=1, trace=0, QT=1, nobar=0, S3K=1, s3pos=(16, 16), CZ=1, nst=0, S3AT='BK_17', LCH=1, NORMV=1, GEARLY=2, FLMAX=3, BY=1, GLATE=1, A3=(2, 2, 3, 4), skip=(), warm=0, warmd=0, SENT=8, CLRJ=2, CLRF=5, noclear=0, B17=1, RSLEEP=4, wsoff=0, fout='sc1', CAP=64, CAP0=None, CAPE=None, XFIRST=0, pad=None, nodma=0, tab=None, nopub=0,
)

W0 = 0; KR = 98304; VR = 131072; LDS = 163840
XSLOT = [KR, KR + 8192, VR, KR + 16384, VR + 8192, KR + 24576, VR + 16384, VR + 24576]
WOSLOT = [0, 32768, 65536, VR, KR, 0, 32768, 65536]
WS_X = 0
WS_F = 16 << 20
WS_DBG = 17 << 20
WS_SIZE = 32 << 20
S_WAVE, S_BR, S_B, S_HP, S_D = 3, 4, 5, 6, 7
SRD_X, SRD_K, SRD_V, SRD_WQ, SRD_WO, SRD_WS, SRD_OUT, SRD_DBG = 8, 12, 16, 20, 24, 28, 32, 36
S_GRP, S_R1, S_R3, S_T0, S_T1, S_T2, S_T3 = 40, 41, 42, 43, 44, 45, 46
S_CX, S_CQ, S_CKV, S_CO, S_M2, S_M4, S_FIN, S_SC = 47, 48, 49, 50, 51, 52, 53, 54
S_CNT = 56
S_CLR = 100
S_KP, S_KQ, S_KE, S_KF = 96, 97, 98, 99
S_STAMP = 60
V_LANE = 1
A_WQ = 2
A_X = 10
A_K = 14
A_V = 22
A_WO = 26
V_PUB, V_FLG, V_XW, V_XR, V_L0, V_L1 = 32, 33, 34, 35, 36, 37
T0 = 38
FR = 48
XB = 80
PP = 80
QP = 92
ACC = 128
SS = 192
CT = 224
OWN = 192
OTH = 128
AC3A, AC3B = 224, 160
PK = 176
V_ONE, V_RDY = 240, 241
V_M1 = 244
H_X, H_Q, H_K, H_V, H_O = 2, 4, 8, 10, 12
H_G, H_F, H_OUT, H_T = 16, 17, 18, 19
H_OWN, H_PRM = 42, 43
H_ACC = 24
H_TMP = 32
H_BUF = 160
H_REG = 64
H_W = 40


class Gen:
    def __init__(self, **kw):
        self.c = dict(DEF); self.c.update(kw)
        for k in kw: assert k in DEF, k
        self.e = Em()
        self.XR, self.S3 = (VR, KR) if self.c["S3K"] else (KR, VR)
        self.WOSLOT = [0, 32768, 65536, self.S3, self.XR, 0, 32768, 65536]
        self.nst = {"c": 0, "h": 0}
        self.stamp_names = {"c": [], "h": []}

    def stamp(self, who, name):
        if not self.c["stamp"]: return
        if self.c["nst"] and who == "c" and name in ("setup", "preB1_0", "postB1_0", "preB1_8", "postBK_0", "preBK_1", "preBK_8"): return
        if name.startswith("n_") and not self.c["nst"]: return
        k = self.nst[who]; self.nst[who] += 1
        assert k < 19
        self.stamp_names[who].append(name)
        self.e.other(f"{'s_memrealtime' if self.c['stamp'] == 2 else 's_memtime'} s[{S_STAMP+2*k}:{S_STAMP+2*k+1}]")

    def write_stamps(self, who):
        if not self.c["stamp"]: return
        e = self.e
        if self.c["pad"]:
            T, w, nm = self.c["pad"]
            if w == who:
                k = self.stamp_names[who].index(nm)
                e.lgkm(0)
                e.s(f"s_add_u32 s{S_T0}, s{S_STAMP+2*k}, {T//10}")
                e.label(f"L_pad{who}")
                e.other("s_memrealtime s[98:99]"); e.lgkm(0)
                e.s(f"s_sub_u32 s{S_T1}, s98, s{S_T0}\ns_cmp_lt_i32 s{S_T1}, 0\ns_cbranch_scc1 L_pad{who}")
            return
        e.other("s_memrealtime s[98:99]")
        e.lgkm(0)
        e.v("v_mov_b32 v44, 0")
        for k in range(self.nst[who]): e.v(f"v_writelane_b32 v44, s{S_STAMP+2*k}, {k}")
        e.v("v_writelane_b32 v44, s98, 30"); e.v("v_writelane_b32 v44, s58, 31")
        e.v(f"v_lshlrev_b32 v45, 2, v{V_LANE}")
        e.s(f"s_lshl_b32 s{S_T0}, s2, 3\ns_add_u32 s{S_T0}, s{S_T0}, s{S_WAVE}\ns_lshl_b32 s{S_T0}, s{S_T0}, 8\ns_add_u32 s{S_T0}, s{S_T0}, {WS_DBG}")
        e.bstore("buffer_store_dword", 44, 1, 45, SRD_WS, f"s{S_T0}")
        if self.c["trace"] and who == "h":
            e.s(f"s_add_u32 s{S_T0}, s{S_T0}, 0x80000")
            e.bstore("buffer_store_dword", 46, 1, 45, SRD_WS, f"s{S_T0}")

    def plan(self):
        c = self.c
        bars = [f"B1_{k}" for k in range(16)] + [f"BK_{k}" for k in range(17 + c["B17"])] + ["BX"] + ["BY"] * c["BY"] + [f"B3_{k}" for k in range(2, c["NB3"] + 1)]
        bi = {n: i for i, n in enumerate(bars)}
        items = {}
        def add(name, lds, after, needed): items[name] = dict(name=name, lds=lds, after=after, need=needed)
        xfree = lambda cc: bi[f"B1_{2*cc+3}"] if cc <= 6 else bi["BK_0"]
        qfree = lambda kt: bi[f"B1_{kt+2}"] if kt <= 13 else bi["BK_0"]
        for cc in range(8): add(f"x{cc}", XSLOT[cc], -1, bi[f"B1_{2*cc}"])
        for kt in range(16): add(f"q{kt}", W0 + (kt % 6) * 16384, -1 if kt < 6 else qfree(kt - 6), bi[f"B1_{kt}"])
        for j in range(16):
            a = KR + (j % 4) * 8192
            add(f"k{j}", a, xfree(XSLOT.index(a)) if j < 4 else bi[f"BK_{max(j-3, 2)}"], bi[f"BK_{j}"])
            a = VR + (j % 4) * 8192
            add(f"v{j}", a, xfree(XSLOT.index(a)) if j < 4 else bi[f"BK_{j-1}"], bi[f"BK_{j+1}"])
        NREG = c["NREG"]
        for i in range(8):
            for hf in range(2):
                a = self.WOSLOT[i] + hf * 16384
                if i < 3:
                    last = max(kt for kt in range(16) if (kt % 6) * 16384 == a)
                    aft = qfree(last)
                else: aft = bi[c["S3AT"] if c["B17"] else "BX"] if i == 3 else (bi["BY"] if (i == 4 and c["BY"]) else bi[f"B3_{c['A3'][i-4]}"])
                if i == 3 and c["S3K"]:
                    assert c["B17"] and c["s3pos"][hf] >= (14, 16)[hf]
                    aft = bi[f"BK_{c['s3pos'][hf]}"]
                if i >= 8 - NREG:
                    add(f"o{i}{'ab'[hf]}", a, -1, aft)
                    items[f"o{i}{'ab'[hf]}"]["reg"] = H_REG + 32 * (i - (8 - NREG)) + 16 * hf
                else:
                    add(f"o{i}{'ab'[hf]}", a, aft, bi[f"BK_{16 + c['B17']}"] if i <= 1 else bi[f"B3_{min(i, c['NB3'])}"])
        order = []
        kvq = ["k0", "k1", "v0", "k2", "v1", "k3", "v2"]
        XF = c["XFIRST"]
        for kt in range(16):
            if kt == 0 and XF: order += ["x0", "x1"][:XF]
            if kt % 2 == 0 and f"x{kt//2}" not in order: order.append(f"x{kt//2}")
            order.append(f"q{kt}")
            if kt + 1 >= c["kvpre"] and kt < 15 and kvq and items[kvq[0]]["after"] <= items[f"q{kt}"]["after"]:
                order.append(kvq.pop(0))
        order += kvq
        wo = [f"o{i}{h}" for i in list(range(3)) + list(range(8 - NREG, 8)) for h in "ab"]
        wp = list(c["wopos"])
        order.append("v3")
        for n in range(0, 17 + c["B17"]):
            if 4 <= n + 1 <= 15: order.append(f"v{n+1}")
            if n == 2: order.append("k4")
            if 5 <= n + 3 <= 15: order.append(f"k{n+3}")
            while wp and wo and wp[0] <= n:
                nm = wo.pop(0); wp.pop(0)
                items[nm]["after"] = max(items[nm]["after"], bi[f"BK_{n}"])
                order.append(nm)
            if c["S3K"]:
                for hf in range(2):
                    if c["s3pos"][hf] == n: order.append("o3" + "ab"[hf])
        order += wo
        order += [f"o{i}{h}" for i in range(3, 8 - NREG) for h in "ab" if f"o{i}{h}" not in order]
        assert sorted(order) == sorted(items), (set(items) - set(order), len(order), len(items))
        cur = -1
        sched = {i: [] for i in range(-1, len(bars))}
        size = lambda n: 16 if n[0] in "qo" else 8
        issued = []
        nP1 = bi["BK_0"]
        for n in order:
            it = items[n]
            cur = max(cur, it["after"])
            while cur < nP1 and sum(size(m) for m in issued if items[m]["need"] > cur) + size(n) > (c["CAP0"] if (cur < 0 and c["CAP0"]) else (c["CAPE"][0] if (c["CAPE"] and cur < c["CAPE"][1]) else c["CAP"])):
                cur += 1
            assert cur < it["need"], (n, bars[cur], bars[it["need"]])
            sched[cur].append(it); issued.append(n)
        self.bars, self.bi, self.items, self.sched, self.order = bars, bi, items, sched, order

    def prologue(self):
        e, c = self.e, self.c
        e.s("s_cmp_ge_u32 s2, 256\ns_cbranch_scc1 L_end")
        if c["stamp"]: e.other("s_memrealtime s[58:59]")
        e.s(f"""
s_and_b32 s{S_T0}, s2, 7
s_lshr_b32 s{S_BR}, s{S_T0}, 2
s_mul_i32 s{S_T1}, s{S_BR}, 40
s_add_u32 s{S_T2}, s0, s{S_T1}
s_addc_u32 s{S_T3}, s1, 0""")
        assert S_T3 == S_T2 + 1
        e.s(f"s_mov_b32 s56, s{S_T2}\ns_mov_b32 s57, s{S_T3}")
        for srd, off in ((SRD_X, 0), (SRD_WQ, 24), (SRD_K, 8), (SRD_V, 16), (SRD_WO, 32)):
            e.other(f"s_load_dwordx2 s[{srd}:{srd+1}], s[56:57], {off}")
        for srd, off in ((SRD_OUT, 80), (SRD_DBG, 88), (SRD_WS, 96)):
            e.other(f"s_load_dwordx2 s[{srd}:{srd+1}], s[0:1], {off}")
        self.stamp("c", "start"); self.nst["h"] = self.nst["c"]; self.stamp_names["h"] = list(self.stamp_names["c"])
        e.v(f"v_lshrrev_b32 v2, 6, v0")
        e.v(f"v_and_b32 v{V_LANE}, 63, v0")
        e.v(f"v_readfirstlane_b32 s{S_WAVE}, v2")
        for srd, n in ((SRD_X, 512 << 10), (SRD_K, 8 << 20), (SRD_V, 8 << 20), (SRD_WQ, 4 << 20), (SRD_WO, 4 << 20),
                       (SRD_WS, WS_SIZE), (SRD_OUT, 1 << 20), (SRD_DBG, 256)):
            e.s(f"s_mov_b32 s{srd+2}, {n}\ns_mov_b32 s{srd+3}, 0x20000")
        e.s(f"""
s_and_b32 s{S_T0}, s{S_T0}, 3
s_lshr_b32 s{S_T1}, s2, 3
s_and_b32 s{S_B}, s{S_T1}, 7
s_lshr_b32 s{S_T1}, s{S_T1}, 3
s_lshl_b32 s{S_T0}, s{S_T0}, 2
s_add_u32 s{S_HP}, s{S_T0}, s{S_T1}
s_lshl_b32 s{S_GRP}, s{S_BR}, 3
s_add_u32 s{S_GRP}, s{S_GRP}, s{S_B}
s_lshr_b32 s{S_T0}, s{S_B}, {c['r1b'][0]}
s_mul_i32 s{S_T0}, s{S_T0}, {c['r1b'][1]}
s_mul_i32 s{S_T1}, s{S_T1}, {c['r1h']}
s_add_u32 s{S_R1}, s{S_T0}, s{S_T1}
s_and_b32 s{S_R1}, s{S_R1}, 15
s_lshr_b32 s{S_T0}, s{S_B}, {c['r3b'][0]}
s_mul_i32 s{S_T0}, s{S_T0}, {2*c['r3b'][1]}
s_add_u32 s{S_D}, s{S_HP}, s{S_T0}
s_and_b32 s{S_D}, s{S_D}, 15
s_lshr_b32 s{S_R3}, s{S_D}, 1
s_add_u32 s{S_R3}, s{S_R3}, 1
s_and_b32 s{S_R3}, s{S_R3}, 7
s_cmp_ge_u32 s{S_WAVE}, 4
s_cbranch_scc1 L_helper""")
        self.compute_setup()
        e.s("s_branch L_compute")

    def helper(self):
        e, c = self.e, self.c
        L = V_LANE
        e.label("L_helper"); e.hist = []
        HW = S_T3
        e.s(f"s_sub_u32 s{HW}, s{S_WAVE}, 4")
        if c["prio_h"]: e.other(f"s_setprio {c['prio_h']}")
        t, u = 20, 21
        e.v(f"v_lshrrev_b32 v{t}, 3, v{L}")
        e.s(f"s_lshl_b32 s{S_T0}, s{HW}, 4\ns_lshl_b32 s{S_T1}, s{S_B}, 6\ns_add_u32 s{S_T0}, s{S_T0}, s{S_T1}")
        e.v(f"v_add_lshl_u32 v{H_X}, v{t}, s{S_T0}, 10")
        e.v(f"v_lshrrev_b32 v{u}, 4, v{L}")
        e.v(f"v_and_b32 v22, 7, v{L}")
        e.v(f"v_xor_b32 v22, v22, v{u}")
        e.v(f"v_xor_b32 v23, 4, v22")
        e.v(f"v_lshl_add_u32 v{H_X+1}, v23, 4, v{H_X}")
        e.v(f"v_add_u32 v{H_X+1}, {8*1024-1024}, v{H_X+1}")
        e.v(f"v_lshl_add_u32 v{H_X}, v22, 4, v{H_X}")
        e.v(f"v_lshrrev_b32 v22, 5, v{L}")
        e.s(f"s_lshl_b32 s{S_T0}, s{HW}, 3\ns_lshl_b32 s{S_T1}, s{S_HP}, 9")
        e.v(f"v_add_lshl_u32 v23, v22, s{S_T0}, 13")
        e.v(f"v_add_u32 v23, s{S_T1}, v23")
        e.v(f"v_lshlrev_b32 v22, 2, v22")
        e.v(f"v_and_b32 v19, 31, v{L}")
        e.v(f"v_xor_b32 v22, v22, v19")
        e.v(f"v_lshl_add_u32 v{H_Q}, v22, 4, v23")
        e.v(f"v_xor_b32 v22, 8, v22")
        e.v(f"v_lshl_add_u32 v{H_Q+1}, v22, 4, v23")
        e.v(f"v_add_u32 v{H_Q+2}, {2*(16384-1024)}, v{H_Q}")
        e.v(f"v_add_u32 v{H_Q+3}, {3*(16384-1024)}, v{H_Q+1}")
        e.v(f"v_add_u32 v{H_Q+1}, {16384-1024}, v{H_Q+1}")
        e.s(f"""s_lshl_b32 s{S_CQ}, s{S_R1}, 18
s_lshl_b32 s{S_CX}, s{S_R1}, 6
s_lshl_b32 s{S_M2}, s{HW}, 11
s_lshl_b32 s{S_M4}, s{HW}, 12""")
        first = list(self.sched[-1])
        e.other("s_waitcnt lgkmcnt(0)")
        self.wsoff()
        self.hseq = 0
        nfirst = 0
        while nfirst < len(first) and first[nfirst]["name"][0] in "xq" and nfirst < 3:
            self.issue(first[nfirst]); nfirst += 1
        e.s(f"""s_lshr_b32 s{S_T0}, s{S_HP}, 1
s_lshl_b32 s{S_T1}, s{S_B}, 3
s_add_u32 s{S_T0}, s{S_T0}, s{S_T1}
s_lshl_b32 s{S_T0}, s{S_T0}, 17
s_lshl_b32 s{S_T1}, s{HW}, 11
s_add_u32 s{S_T0}, s{S_T0}, s{S_T1}
s_and_b32 s{S_T1}, s{HW}, 1
s_lshl_b32 s{S_T1}, s{S_T1}, 3""")
        e.v(f"v_lshlrev_b32 v23, 8, v{u}")
        e.v(f"v_add_u32 v23, s{S_T0}, v23")
        e.v(f"v_and_b32 v19, 15, v{L}")
        e.v(f"v_add_u32 v22, s{S_T1}, v{u}")
        e.v(f"v_xor_b32 v22, v22, v19")
        e.v(f"v_lshl_add_u32 v{H_K}, v22, 4, v23")
        e.v(f"v_xor_b32 v22, 4, v22")
        e.v(f"v_lshl_add_u32 v{H_K+1}, v22, 4, v23")
        e.v(f"v_lshlrev_b32 v22, 2, v{u}")
        e.v(f"v_xor_b32 v22, v22, v19")
        e.v(f"v_lshl_add_u32 v{H_V}, v22, 4, v23")
        e.s(f"""s_lshr_b32 s{S_T0}, s{S_HP}, 1
s_and_b32 s{S_T0}, s{S_T0}, 1
s_lshl_b32 s{S_T0}, s{S_T0}, 3
s_add_u32 s{S_T0}, s{S_T0}, s{S_B}
s_mul_i32 s{S_T0}, s{S_T0}, {c['kvrot']}
s_lshl_b32 s{S_KP}, s{S_T0}, 13""")
        if c["kvalt"]:
            d = c["kvalt"] & 3
            e.s(f"""s_and_b32 s{S_T0}, s{S_HP}, 1
s_lshl_b32 s{S_T0}, s{S_T0}, {12 + d}
s_and_b32 s{S_T1}, s{S_B}, {0 if c['kvalt'] & 4 else 1}
s_cmp_eq_u32 s{S_T1}, 0
s_cselect_b32 s{S_T1}, s{S_T0}, 0
s_cselect_b32 s{S_T0}, 0, s{S_T0}
s_add_u32 s{S_KE}, s{S_KP}, s{S_T1}
s_sub_u32 s{S_KF}, s{S_KP}, s{S_T1}
s_add_u32 s{S_KQ}, s{S_KF}, s{S_T0}
s_sub_u32 s{S_KP}, s{S_KE}, s{S_T0}""")
        e.s(f"s_lshl_b32 s{S_T0}, s{HW}, 5\ns_lshl_b32 s{S_T1}, s{S_HP}, 8\ns_add_u32 s{S_T0}, s{S_T0}, s{S_T1}")
        e.v(f"v_add_lshl_u32 v23, v{t}, s{S_T0}, 10")
        e.v(f"v_and_b32 v22, 1, v{u}")
        e.v(f"v_lshlrev_b32 v22, 2, v22")
        e.v(f"v_and_b32 v19, 7, v{L}")
        e.v(f"v_xor_b32 v22, v22, v19")
        e.v(f"v_lshl_add_u32 v{H_O}, v22, 4, v23")
        for k in range(1, 4): e.v(f"v_add_u32 v{H_O+k}, {k*(8192-1024)}, v{H_O}")
        e.v(f"v_lshl_add_u32 v{H_W}, v{L}, 4, s{S_M4}")
        e.v(f"v_add_u32 v{H_W+1}, 0x10000, v{H_W}")
        e.s(f"""s_lshl_b32 s{S_T0}, s{S_GRP}, 4
s_add_u32 s{S_T0}, s{S_T0}, s{S_D}
s_lshl_b32 s{S_T1}, s{S_T0}, 7
s_add_u32 s{S_T1}, s{S_T1}, {WS_F}
s_lshl_b32 s{S_T0}, s{S_T0}, 16
s_lshl_b32 s{S_T2}, s{HW}, 7""")
        e.v(f"v_and_b32 v22, 7, v{L}")
        e.v(f"v_bfe_u32 v23, v{L}, 3, 1")
        e.v(f"v_lshl_add_u32 v22, v23, 5, v22")
        e.v(f"v_lshl_add_u32 v22, v22, 4, s{S_T2}")
        e.v(f"v_lshrrev_b32 v23, 4, v{L}")
        e.v(f"v_lshl_add_u32 v{H_G}, v23, 10, v22")
        e.v(f"v_add_u32 v{H_G}, s{S_T0}, v{H_G}")
        e.v(f"v_lshl_add_u32 v{H_OWN}, v23, 11, v22")
        e.v(f"v_add_u32 v{H_OWN}, {self.S3}, v{H_OWN}")
        e.v(f"v_and_b32 v22, 31, v{L}")
        e.v(f"v_lshl_add_u32 v{H_F}, v22, 2, s{S_T1}")
        e.s(f"""s_lshl_b32 s{S_T0}, s{S_B}, 1
s_and_b32 s{S_T1}, s{S_D}, 1
s_add_u32 s{S_T0}, s{S_T0}, s{S_T1}
s_lshl_b32 s{S_T0}, s{S_T0}, 2
s_add_u32 s{S_T0}, s{S_T0}, s{HW}
s_lshl_b32 s{S_T0}, s{S_T0}, 14
s_lshl_b32 s{S_T1}, s{S_BR}, 10
s_add_u32 s{S_T0}, s{S_T0}, s{S_T1}
s_lshr_b32 s{S_T1}, s{S_D}, 1
s_lshl_b32 s{S_T1}, s{S_T1}, 7
s_add_u32 s{S_T0}, s{S_T0}, s{S_T1}""")
        e.v(f"v_lshl_add_u32 v{H_OUT}, v{t}, 11, s{S_T0}")
        e.v(f"v_and_b32 v22, 7, v{L}")
        e.v(f"v_lshl_add_u32 v{H_OUT}, v22, 4, v{H_OUT}")
        e.v(f"v_bfe_u32 v22, v{L}, 2, 1")
        e.v(f"v_lshl_add_u32 v{H_PRM}, v22, 5, v{t}")
        e.v(f"v_and_b32 v22, 1, v{L}")
        e.v(f"v_lshl_add_u32 v{H_PRM}, v22, 4, v{H_PRM}")
        e.v(f"v_bfe_u32 v22, v{L}, 1, 1")
        e.v(f"v_lshl_add_u32 v{H_PRM}, v22, 3, v{H_PRM}")
        e.v(f"v_lshlrev_b32 v{H_PRM}, 2, v{H_PRM}")
        e.v(f"v_and_b32 v{H_T}, 3, v{L}")
        e.v(f"v_lshlrev_b32 v{H_T}, 13, v{H_T}")
        e.v(f"v_add_u32 v{H_T}, {self.XR}, v{H_T}")
        for it in first[nfirst:]: self.issue(it)
        self.stamp("h", "issued0")
        waited = -1; self.prepolled = False
        if c["trace"]: e.v("v_mov_b32 v46, 0")
        for n, bn in enumerate(self.bars):
            lastneed = max([it["last"] for it in self.items.values() if it["need"] <= n and "last" in it] + [-1])
            assert all("last" in it for it in self.items.values() if it["need"] <= n)
            if lastneed > waited and not c["nodma"]:
                e.vmcnt(self.hseq - 1 - lastneed); waited = lastneed
            if e.pend: e.lgkm(0)
            if bn in ("B1_0", "B1_8", "BK_0", "BK_8", "BK_16", "B3_4", "B3_6"): self.stamp("h", "pre" + bn)
            if not (c["nobar"] and bn.startswith("BK_") and 1 <= int(bn[3:]) <= 15): e.barrier()
            if c["trace"]:
                e.other("s_memrealtime s[94:95]"); e.other("s_waitcnt lgkmcnt(0)")
                e.v(f"v_writelane_b32 v46, s94, {n}")
            if bn == "BX":
                e.ds32(22, H_T)
                e.v("v_cmp_eq_u32 vcc, -1, v22")
                e.s(f"s_cbranch_vccnz L_hslow")
                e.label("L_hgo")
            for it in self.sched[n]: self.issue(it)
            if bn == f"B3_{c['PREPOLL']}" and not c["nodma"]:
                e.bload("buffer_load_dword", 22, 1, H_F, SRD_WS, "0", flags=c["fpoll"])
                self.hseq += 1; self.prepolled = True
            for it in self.items.values():
                if "reg" in it and it["need"] == n:
                    for j in range(4):
                        a = it["lds"] + 1024 * j
                        e.ds_write("ds_write_b128", H_W + (a >> 16), it["reg"] + 4 * j, 4, a & 0xffff)
            if bn == "B1_9":
                e.s("s_branch L_h2"); e.raw(".p2align 12\nL_pg1:\n;@PAGED\n;@MARK"); e.label("L_h2")
        OWNA = H_OWN
        e.s(f"""s_and_b32 s{S_CX}, s{S_D}, 1
s_xor_b32 s{S_CX}, s{S_CX}, 1
s_lshl_b32 s{S_CQ}, s{S_CX}, 1
s_add_u32 s{S_CQ}, s{S_CQ}, 28
s_lshl_b32 s{S_CQ}, 3, s{S_CQ}
s_lshl_b32 s{S_CX}, s{S_CX}, 12
s_add_u32 s{S_CX}, s{S_CX}, {14*4096}""")
        first_acc = [True]
        if c['SENT'] == 0:
            for j in range(8): e.v(f'v_mov_b32 v{H_ACC+j}, 0')
            first_acc[0] = False
        def accum(k):
            dst = H_ACC if first_acc[0] else H_TMP
            for j in range(4):
                e.v(f"v_lshlrev_b32 v{dst+2*j}, 16, v{H_BUF+4*k+j}")
                e.v(f"v_and_b32 v{dst+2*j+1}, 0xffff0000, v{H_BUF+4*k+j}")
            if not first_acc[0]:
                for j in range(4):
                    e.v(f"v_pk_add_f32 v[{H_ACC+2*j}:{H_ACC+2*j+1}], v[{H_ACC+2*j}:{H_ACC+2*j+1}], v[{H_TMP+2*j}:{H_TMP+2*j+1}]")
            first_acc[0] = False
        prev = []
        e.s(f"s_mov_b32 s{S_CNT}, 0")
        def be():
            e.barrier()
            e.ds128(H_BUF + 60, OWNA, 0); e.ds128(H_BUF + 64, OWNA, 1024)
        if c["GLATE"] and not c["GEARLY"]: be()
        if not self.prepolled:
            e.bload("buffer_load_dword", 22, 1, H_F, SRD_WS, "0", flags=c["fpoll"])
        e.vmcnt(0)
        e.v("v_cmp_eq_u32 vcc, 1, v22")
        SENT = c["SENT"]
        rounds = [tuple(i for i in st if i < SENT) for st in c["rounds"]]
        rounds = [st for st in rounds if st] or [()]
        for r, steps in enumerate(rounds):
            fsteps = tuple(steps) + (tuple(range(SENT, 8)) if r == 0 else ())
            mask = sum(15 << (4 * i) for i in fsteps if i < 7)
            e.s(f"s_mov_b32 s{S_CKV}, {mask:#x}")
            if 7 in fsteps: e.s(f"s_or_b32 s{S_CKV}, s{S_CKV}, s{S_CQ}")
            if c["GLATE"] and c["GEARLY"] and steps and steps[0] == c["GEARLY"]: be()
            e.label(f"L_poll{r}")
            e.s(f"s_and_b32 s{S_T0}, vcc_lo, s{S_CKV}\ns_cmp_eq_u32 s{S_T0}, s{S_CKV}\ns_cbranch_scc1 L_got{r}")
            if c["PSLEEP"]: e.other(f"s_sleep {c['PSLEEP']}")
            e.bload("buffer_load_dword", 22, 1, H_F, SRD_WS, "0", flags=c["fpoll"])
            e.s(f"s_add_u32 s{S_CNT}, s{S_CNT}, 1")
            e.vmcnt(0)
            e.v("v_cmp_eq_u32 vcc, 1, v22")
            e.s(f"s_cmp_lt_u32 s{S_CNT}, 0x40000\ns_cbranch_scc1 L_poll{r}")
            e.label(f"L_got{r}"); e.hist = []
            if 0 in steps or 3 in steps or 5 in steps or 7 in steps: self.stamp("h", f"got{r}")
            for i in steps:
                for p in range(1 if i == 7 else 2):
                    k = 2 * i + p
                    if i == 7: so = f"s{S_CX}"
                    elif k == 0: so = "0"
                    else:
                        e.s(f"s_mov_b32 s{S_T0}, {k*4096}"); so = f"s{S_T0}"
                    e.bload("buffer_load_dwordx4", H_BUF + 4 * k, 4, H_G, SRD_WS, so, flags=c["fgat"])
                    prev.append(k)
        def own():
            if c["GLATE"]: return
            e.barrier()
            e.ds128(H_BUF + 60, OWNA, 0); e.ds128(H_BUF + 64, OWNA, 1024)
        def ownadd():
            for j in range(4):
                e.v(f"v_pk_add_f32 v[{H_ACC+2*j}:{H_ACC+2*j+1}], v[{H_ACC+2*j}:{H_ACC+2*j+1}], v[{H_BUF+60+2*j}:{H_BUF+61+2*j}]")
        if SENT > 7:
            nearly = len(prev) - 3
            for n, k in enumerate(prev[:nearly]):
                e.vmcnt(len(prev) - 1 - n); accum(k)
            prev = prev[nearly:]
            own(); ownadd()
            for n, k in enumerate(prev):
                e.vmcnt(len(prev) - 1 - n); accum(k)
        else:
            own()
            self.stamp("h", "BE")
            for n, k in enumerate(prev):
                e.vmcnt(len(prev) - 1 - n); accum(k)
            ownadd()
            ks = [2 * i + p for i in range(SENT, 8) for p in range(1 if i == 7 else 2)]
            e.s(f"s_mov_b32 s{S_CNT}, 0")
            for k in ks:
                e.label(f"L_si{k}"); e.hist = []
                if k == 14: so = f"s{S_CX}"
                else:
                    e.s(f"s_mov_b32 s{S_T0}, {k*4096}"); so = f"s{S_T0}"
                e.bload("buffer_load_dwordx4", H_BUF + 4 * k, 4, H_G, SRD_WS, so, flags=c["fgat"])
            e.s(f"s_add_u32 s{S_CNT}, s{S_CNT}, 1\ns_cmp_ge_u32 s{S_CNT}, 0x40000\ns_cbranch_scc1 L_sdone")
            e.vmcnt(0)
            for k in ks:
                b = H_BUF + 4 * k
                e.v(f"v_max3_u32 v22, v{b}, v{b+1}, v{b+2}")
                e.v(f"v_max_u32 v22, v22, v{b+3}")
                e.v("v_cmp_eq_u32 vcc, -1, v22")
                e.s(f"s_cbranch_vccz L_sok{k}")
                if c["RSLEEP"]: e.other(f"s_sleep {c['RSLEEP']}")
                e.s(f"s_branch L_si{k}")
                e.label(f"L_sok{k}")
            e.label("L_sdone"); e.hist = []
            e.vmcnt(0)
            self.stamp("h", "sent")
            for k in ks: accum(k)
        for j in range(4): e.v(f"v_cvt_pk_bf16_f32 v{H_TMP+j}, v{H_ACC+2*j}, v{H_ACC+2*j+1}")
        for j in range(4):
            e.emit(Ins(f"ds_bpermute_b32 v{H_TMP+4+j}, v{H_PRM}, v{H_TMP+j}", "ds", rd=R(H_PRM) | R(H_TMP + j), wr=R(H_TMP + 4 + j)))
            e.pend.append(R(H_TMP + 4 + j))
        e.bstore("buffer_store_dwordx4", H_TMP + 4, 4, H_OUT, SRD_OUT, "0", flags=c["fout"])
        self.stamp("h", "stored")
        if c["stamp"]:
            e.vmcnt(0); self.stamp("h", "end")
        self.write_stamps("h")
        e.other("s_endpgm")
        e.label("L_hslow"); e.hist = []
        e.barrier()
        e.barrier()
        e.s("s_branch L_hgo")

    def wsoff(self):
        if self.c["wsoff"]:
            self.e.s(f"s_add_u32 s{SRD_WS}, s{SRD_WS}, {self.c['wsoff'] << 20}\ns_addc_u32 s{SRD_WS+1}, s{SRD_WS+1}, 0")

    def issue(self, it):
        e, c = self.e, self.c
        n = it["name"]; k = n[0]
        if c["nodma"]:
            cnt = 0
        elif k == "x":
            e.s(f"s_add_u32 m0, s{S_M2}, {it['lds']}")
            e.dma(H_X, SRD_X, f"s{S_CX}", 0, c["fx"]); e.dma(H_X + 1, SRD_X, f"s{S_CX}", 1024, c["fx"])
            if n != "x7": e.s(f"s_add_u32 s{S_CX}, s{S_CX}, 128\ns_and_b32 s{S_CX}, s{S_CX}, 0x3ff")
            cnt = 2
        elif k == "q":
            e.s(f"s_add_u32 m0, s{S_M4}, {it['lds']}")
            for j in range(4): e.dma(H_Q + j, SRD_WQ, f"s{S_CQ}", 1024 * j, c["fq"])
            if n != "q15": e.s(f"s_add_u32 s{S_CQ}, s{S_CQ}, 0x40000\ns_and_b32 s{S_CQ}, s{S_CQ}, 0x3fffff")
            cnt = 4
        elif k in "kv":
            j = int(n[1:])
            e.s(f"s_add_u32 m0, s{S_M2}, {it['lds']}")
            sreg = S_KP
            if c["kvalt"]:
                d = c["kvalt"] & 3
                sreg = S_KE if j < d else (S_KF if j >= 16 - d else (S_KP if j % (2 * d) < d else S_KQ))
            e.s(f"s_add_u32 s{S_CKV}, s{sreg}, {j*8192}\ns_and_b32 s{S_CKV}, s{S_CKV}, 0x1ffff")
            if k == "k":
                e.dma(H_K, SRD_K, f"s{S_CKV}", 0, c["fk"]); e.dma(H_K + 1, SRD_K, f"s{S_CKV}", 1024, c["fk"])
            else:
                e.dma(H_V, SRD_V, f"s{S_CKV}", 0, c["fv"]); e.dma(H_V, SRD_V, f"s{S_CKV}", 1024, c["fv"])
            cnt = 2
        else:
            if "reg" not in it: e.s(f"s_add_u32 m0, s{S_M4}, {it['lds']}")
            if n[2] == "a":
                e.s(f"s_add_u32 s{S_CO}, s{S_R3}, {n[1]}\ns_and_b32 s{S_CO}, s{S_CO}, 7\ns_lshl_b32 s{S_CO}, s{S_CO}, 7")
            else: e.s(f"s_add_u32 s{S_CO}, s{S_CO}, 0x20000")
            for j in range(4):
                if "reg" in it: e.bload("buffer_load_dwordx4", it["reg"] + 4 * j, 4, H_O + j, SRD_WO, f"s{S_CO}", 1024 * j, c["fo"])
                else:
                    if c["PACE3"] is not None and int(n[1]) >= 3: e.vmcnt(c["PACE3"])
                    e.dma(H_O + j, SRD_WO, f"s{S_CO}", 1024 * j, c["fo"])
            cnt = 4
        self.hseq += cnt
        it["last"] = self.hseq - 1

    def wave0_only(self, fn, tag, sreg=S_WAVE):
        e = self.e
        e.s(f"s_cmp_lg_u32 s{sreg}, 0\ns_cbranch_scc1 L_w0_{tag}")
        h0 = len(e.out); mark = list(e.hist)
        fn()
        blk = [i for i in e.hist if i not in mark]
        for i in blk: i.states = 0
        e.label(f"L_w0_{tag}")

    def compute_setup(self):
        e, c = self.e, self.c
        L = V_LANE
        if c["prio_c"]: e.other(f"s_setprio {c['prio_c']}")
        if c["l2pf"]:
            e.other("s_getpc_b64 s[92:93]")
            e.s(f"s_and_b32 s92, s92, 0xfffff000\ns_mov_b32 s94, L_end-L_pg1+4096\ns_mov_b32 s95, 0x20000\ns_lshr_b32 s{S_T0}, s2, 3\ns_lshl_b32 s{S_T0}, s{S_T0}, 10")
            e.v(f"v_lshlrev_b32 v48, 7, v{L}")
            e.v(f"v_lshrrev_b32 v49, 3, v{L}")
            e.v(f"v_lshl_or_b32 v48, v49, 28, v48")
            self.wave0_only(lambda: e.bload("buffer_load_dword", 242, 1, 48, 92, f"s{S_T0}"), "pf")
        MB, HH = S_T0, S_T1
        e.s(f"s_and_b32 s{MB}, s{S_WAVE}, 1\ns_lshr_b32 s{HH}, s{S_WAVE}, 1")
        h, rr, g, c0, c1, l32, a, b = 48, 49, 50, 51, 52, 53, 54, 55
        e.v(f"v_lshrrev_b32 v{h}, 5, v{L}")
        e.v(f"v_bfe_u32 v{rr}, v{L}, 2, 2")
        e.v(f"v_bfe_u32 v{g}, v{L}, 4, 1")
        e.v(f"v_and_b32 v{c0}, 1, v{L}")
        e.v(f"v_bfe_u32 v{c1}, v{L}, 1, 1")
        e.v(f"v_and_b32 v{l32}, 31, v{L}")
        e.v(f"v_lshl_add_u32 v{a}, v{h}, 3, v{rr}")
        e.v(f"v_lshlrev_b32 v{a}, 9, v{a}")
        e.s(f"s_lshl_b32 s{S_T2}, s{HH}, 8")
        e.v(f"v_lshl_add_u32 v{a}, v{g}, 5, v{a}")
        e.v(f"v_lshl_add_u32 v{a}, v{c0}, 4, v{a}")
        e.v(f"v_lshl_add_u32 v{a}, v{c1}, 3, v{a}")
        e.v(f"v_add_u32 v{a}, s{S_T2}, v{a}")
        e.v(f"v_lshl_add_u32 v{A_WQ}, v{rr}, 6, v{a}")
        for t in range(1, 4): e.v(f"v_xor_b32 v{A_WQ+t}, {t<<6}, v{A_WQ}")
        for t in range(4): e.v(f"v_add_u32 v{A_WQ+4+t}, 0x10000, v{A_WQ+t}")
        e.s(f"s_lshl_b32 s{S_T2}, s{MB}, 12\ns_add_u32 s{S_T2}, s{S_T2}, {KR}")
        e.v(f"v_lshl_add_u32 v{a}, v{l32}, 7, s{S_T2}")
        e.v(f"v_bfe_u32 v{b}, v{L}, 1, 3")
        e.v(f"v_xor_b32 v{b}, v{b}, v{h}")
        e.v(f"v_lshl_add_u32 v{A_X}, v{b}, 4, v{a}")
        for s in range(1, 4): e.v(f"v_xor_b32 v{A_X+s}, {s<<5}, v{A_X}")
        e.v(f"v_lshlrev_b32 v{a}, 8, v{l32}")
        e.v(f"v_add_u32 v{a}, {KR}, v{a}")
        e.v(f"v_and_b32 v{b}, 15, v{L}")
        e.v(f"v_xor_b32 v{b}, v{b}, v{h}")
        e.v(f"v_lshl_add_u32 v{A_K}, v{b}, 4, v{a}")
        for s in range(1, 8): e.v(f"v_xor_b32 v{A_K+s}, {s<<5}, v{A_K}")
        e.v(f"v_lshl_add_u32 v{a}, v{h}, 2, v{rr}")
        e.v(f"v_lshlrev_b32 v{b}, 8, v{a}")
        e.v(f"v_add_u32 v{b}, {VR}, v{b}")
        e.v(f"v_lshl_add_u32 v{b}, v{g}, 5, v{b}")
        e.v(f"v_lshl_add_u32 v{b}, v{c1}, 4, v{b}")
        e.v(f"v_lshl_add_u32 v{b}, v{c0}, 3, v{b}")
        e.v(f"v_lshl_add_u32 v{A_V}, v{rr}, 6, v{b}")
        for t in range(1, 4): e.v(f"v_xor_b32 v{A_V+t}, {t<<6}, v{A_V}")
        e.v(f"v_lshlrev_b32 v{a}, 7, v{a}")
        e.v(f"v_lshl_add_u32 v{a}, v{c0}, 5, v{a}")
        e.v(f"v_lshl_add_u32 v{a}, v{g}, 4, v{a}")
        e.v(f"v_lshl_add_u32 v{a}, v{c1}, 3, v{a}")
        e.v(f"v_lshrrev_b32 v{b}, 1, v{rr}")
        e.v(f"v_xor_b32 v{b}, s{HH}, v{b}")
        e.v(f"v_lshl_add_u32 v{a}, v{b}, 6, v{a}")
        e.s(f"s_lshl_b32 s{S_T2}, s{HH}, 14")
        e.v(f"v_add_u32 v{A_WO}, s{S_T2}, v{a}")
        e.v(f"v_xor_b32 v{A_WO+1}, 0x4000, v{A_WO}")
        for w in (1, 2):
            e.v(f"v_add_u32 v{A_WO+2*w}, {w*0x10000}, v{A_WO}")
            e.v(f"v_add_u32 v{A_WO+2*w+1}, {w*0x10000}, v{A_WO+1}")
        e.s(f"s_lshl_b32 s{S_T2}, s{S_WAVE}, 13\ns_add_u32 s{S_T2}, s{S_T2}, {self.XR}")
        e.v(f"v_lshl_add_u32 v{V_XW}, v{L}, 4, s{S_T2}")
        e.v(f"v_xor_b32 v{V_XR}, 0x4000, v{V_XW}")
        e.s(f"""s_lshl_b32 s{S_T2}, s{S_GRP}, 20
s_lshl_b32 s{S_T3}, s{MB}, 16
s_add_u32 s{S_T2}, s{S_T2}, s{S_T3}
s_and_b32 s{S_T3}, s{S_D}, 1
s_lshl_b32 s{S_T3}, s{S_T3}, 12
s_add_u32 s{S_T2}, s{S_T2}, s{S_T3}
s_lshl_b32 s{S_T3}, s{HH}, 11
s_add_u32 s{S_T2}, s{S_T2}, s{S_T3}""")
        e.v(f"v_lshl_add_u32 v{V_PUB}, v{L}, 4, s{S_T2}")
        e.s(f"""s_lshl_b32 s{S_T2}, s{S_GRP}, 4
s_add_u32 s{S_T2}, s{S_T2}, s{MB}
s_lshl_b32 s{S_T2}, s{S_T2}, 5
s_and_b32 s{S_T3}, s{S_D}, 1
s_lshl_b32 s{S_T3}, s{S_T3}, 1
s_add_u32 s{S_T2}, s{S_T2}, s{S_T3}
s_add_u32 s{S_T2}, s{S_T2}, s{HH}
s_lshl_b32 s{S_T2}, s{S_T2}, 2
s_add_u32 s{S_T2}, s{S_T2}, {WS_F}""")
        e.v(f"v_min_u32 v{a}, 1, v{L}")
        e.v(f"v_lshlrev_b32 v{a}, 31, v{a}")
        e.v(f"v_add_u32 v{V_FLG}, s{S_T2}, v{a}")
        e.s(f"s_lshl_b32 s{S_T2}, s{S_GRP}, 4")
        e.v(f"v_add_u32 v{V_RDY}, s{S_T2}, v{a}")
        e.v(f"v_mov_b32 v{V_ONE}, 1")
        for r in range(4): e.v(f"v_mov_b32 v{V_M1+r}, -1")
        e.v(f"v_mov_b32 v{V_L0}, 0"); e.v(f"v_mov_b32 v{V_L1}, 0")
        for r in range(4 if c["CZ"] else 16): e.v(f"v_mov_b32 v{CT+r}, 0")
        sc = f2u(math.log2(math.e) / math.sqrt(128.0))
        e.s(f"s_mov_b32 s{S_SC}, {sc:#x}\ns_mov_b32 s{S_SC+1}, {sc:#x}\ns_mov_b32 s{S_FIN}, 0")
        e.s(f"""s_lshl_b32 s{S_T2}, s{S_GRP}, 11
s_add_u32 s{S_T2}, s{S_T2}, {WS_F}
s_or_b32 s{S_CLR}, s{S_WAVE}, s{S_HP}""")
        e.v(f"v_lshl_add_u32 v{T0}, v{L}, 4, s{S_T2}")
        e.other("s_waitcnt lgkmcnt(0)")
        self.wsoff()
        def clr():
            e.bstore("buffer_store_dwordx4", CT, 4, T0, SRD_WS, "0", flags="sc1")
            e.bstore("buffer_store_dwordx4", CT, 4, T0, SRD_WS, "0", 1024, flags="sc1")
        self.wave0_only(clr, "clr", S_CLR)
        if c["tlbpf"]:
            def tl():
                e.s(f"""s_lshr_b32 s{S_T2}, s{S_HP}, 1
s_lshl_b32 s{S_T3}, s{S_B}, 3
s_add_u32 s{S_T2}, s{S_T2}, s{S_T3}
s_lshl_b32 s{S_T2}, s{S_T2}, 17
s_lshl_b32 s{S_T3}, s{S_HP}, 18""")
                e.v(f"v_min_u32 v{T0+1}, 1, v{L}")
                e.v(f"v_lshlrev_b32 v{T0+1}, 31, v{T0+1}")
                e.bload("buffer_load_dword", 243, 1, T0 + 1, SRD_K, f"s{S_T2}")
                e.bload("buffer_load_dword", 243, 1, T0 + 1, SRD_V, f"s{S_T2}")
                e.bload("buffer_load_dword", 243, 1, T0 + 1, SRD_WO, f"s{S_T3}")
                e.s(f"s_lshl_b32 s{S_T2}, s{S_GRP}, 20\ns_lshl_b32 s{S_T3}, s{S_B}, 17")
                e.bload("buffer_load_dword", 243, 1, T0 + 1, SRD_WS, f"s{S_T2}")
                e.bload("buffer_load_dword", 243, 1, T0 + 1, SRD_OUT, f"s{S_T3}")
                e.s(f"s_mov_b32 s{S_T2}, {WS_F + 0x10000}")
                e.bload("buffer_load_dword", 243, 1, T0 + 1, SRD_WS, f"s{S_T2}")
            e.s(f"s_xor_b32 s{S_CNT}, s{S_WAVE}, 1")
            self.wave0_only(tl, "tlb", S_CNT)

    def dump(self, base, n, tag):
        e = self.e
        e.nop(12)
        e.s(f"s_lshl_b32 s{S_T0}, s2, 2\ns_add_u32 s{S_T0}, s{S_T0}, s{S_WAVE}\ns_mul_i32 s{S_T0}, s{S_T0}, {n*256}\ns_add_u32 s{S_T0}, s{S_T0}, {18<<20}")
        e.v(f"v_lshlrev_b32 v{T0+1}, 2, v{V_LANE}")
        for r in range(n):
            if r and r % 16 == 0: e.s(f"s_add_u32 s{S_T0}, s{S_T0}, 4096")
            e.bstore("buffer_store_dword", base + r, 1, T0 + 1, SRD_WS, f"s{S_T0}", (r % 16) * 256)
        e.vmcnt(0)

    def run_mfmas(self, M, fill, W, pre=None, ph=0):
        e = self.e
        for g, (d, a, b, cc) in enumerate(M):
            for f in (pre or {}).get(g, []): f()
            if W > 1 and g % W == 0:
                regs = R(b, 4)
                for k in range(g, min(g + W, len(M))): regs = regs | R(M[k][1], 4)
                e.wait_regs(regs)
            if any(ph == p and a0 <= g < a1 and g % m == m - 1 for p, a0, a1, m in self.c["skip"]) and cc is not None: e.wait_regs(R(a, 4) | R(b, 4)); e.nop(6)
            else: e.mfma(d, a, b, cc)
            for f in fill.get(g, []): f()

    def place(self, reads, bar, n, LEAD):
        e = self.e
        fill = {}; head = []
        for g in range(n):
            ops = []
            if g in bar:
                def fb(nm=bar[g]):
                    if nm in ("B1_0", "B1_8", "BK_1", "BK_8", "BK_16", "B3_2", "B3_4", "B3_6"): self.stamp("c", "pre" + nm)
                    if not (self.c["nobar"] and nm.startswith("BK_") and 1 <= int(nm[3:]) <= 15): e.barrier()
                    if nm in ("B1_0", "BK_0"): self.stamp("c", "post" + nm)
                ops.append(fb)
            ops += reads.get(g, [])
            if g < LEAD: head += ops
            else: fill.setdefault(g - LEAD, []).extend(ops)
        return fill, head

    def compute(self):
        e, c = self.e, self.c
        NF = c["NF"]
        e.raw(".p2align 12\n;@PAGED")
        e.label("L_compute"); e.hist = []
        self.stamp("c", "setup")
        for n in range(c["warm"]):
            e.mfma(SS, A_WQ, A_K, None if n == 0 else SS)
            if c["warmd"]: e.nop(c["warmd"])
        fr = lambda g: FR + 4 * (g % NF)
        def spread(fill, ops, g0, per):
            for n, f in enumerate(ops): fill.setdefault(g0 + n // per, []).append(f)
        M = []; reads = {}; bar = {}
        for kt in range(16):
            slot = self.items[f"q{kt}"]["lds"]
            win, so = (0, slot) if slot < 65536 else (4, slot - 65536)
            seq1 = [(s2, t) for s2 in range(2) for t in range(4)]
            if kt == 15 and c["QT"]: seq1 = [(s2, t) for t in range(4) for s2 in range(2)]
            for s2, t in seq1:
                st = kt * 2 + s2
                xb = XB + 4 * (st % 3)
                g = len(M)
                M.append((ACC + 16 * t, fr(g), xb, None if st == 0 else ACC + 16 * t))
                rl = []
                if t == 0:
                    xo = self.items[f"x{kt//2}"]["lds"] - KR
                    rl.append(lambda xb=xb, s=st % 4, xo=xo: e.ds128(xb, A_X + s, xo))
                o = so + s2 * 8192
                rl.append(lambda d=fr(g), t=t, o=o, win=win: e.dstr(d, A_WQ + win + t, o))
                rl.append(lambda d=fr(g), t=t, o=o, win=win: e.dstr(d + 2, A_WQ + win + t, o + 2048))
                reads[g] = rl
            bar[kt * 8] = f"B1_{kt}"
        fill, head = self.place(reads, bar, len(M), c["L1"])
        if c["TPOS"] < 0: e.raw(";@TOUCH2")
        else: fill.setdefault(8 * c["TPOS"], []).append(lambda: e.raw(";@TOUCH2"))
        def arrive():
            e.vmcnt(0)
            e.bstore("buffer_store_dword", V_ONE, 1, V_RDY, SRD_DBG, "0", flags="sc1")
        fill.setdefault(41, []).append(lambda: self.wave0_only(arrive, "arr", S_CLR))
        def qscale(t, pk):
            ops = []
            for k in range(8):
                r = ACC + 16 * t + 2 * k
                if pk: ops.append(lambda r=r: e.v(f"v_pk_mul_f32 v[{r}:{r+1}], v[{r}:{r+1}], s[{S_SC}:{S_SC+1}]"))
                else: ops += [lambda r=r: e.v(f"v_mul_f32 v{r}, s{S_SC}, v{r}"), lambda r=r: e.v(f"v_mul_f32 v{r+1}, s{S_SC}, v{r+1}")]
            for k in range(8):
                r = ACC + 16 * t + 2 * k
                ops.append(lambda r=r, k=k: e.v(f"v_cvt_pk_bf16_f32 v{QP+8*t+k}, v{r}, v{r+1}"))
            return ops
        if c["QT"] and c["dump"] != "q":
            q0 = qscale(0, False)
            spread(fill, q0[:5], 124, 5); spread(fill, q0[5:11], 125, 6); spread(fill, q0[11:17], 126, 6); spread(fill, q0[17:], 127, 7)
        for f in head: f()
        self.run_mfmas(M, fill, c["W1"], ph=1)
        self.stamp("c", "P1end")
        M = []; reads = {}; bar = {}
        def addQK(j):
            bar[len(M)] = f"BK_{j}"
            so = self.items[f"k{j}"]["lds"] - KR
            for s in range(8):
                g = len(M); S = SS + 16 * (j % 2)
                M.append((S, fr(g), QP + 4 * s, (None if c['CZ'] else CT) if s == 0 else S))
                reads[g] = [lambda d=fr(g), s=s, so=so: e.ds128(d, A_K + s, so)]
        def addPV(j):
            so = self.items[f"v{j}"]["lds"] - VR
            for u in range(2):
                for t in range(4):
                    g = len(M)
                    M.append((ACC + 16 * t, fr(g), PP + 4 * u, None if (j == 0 and u == 0) else ACC + 16 * t))
                    o = so + u * 4096
                    reads[g] = [lambda d=fr(g), t=t, o=o: e.dstr(d, A_V + t, o),
                                lambda d=fr(g), t=t, o=o: e.dstr(d + 2, A_V + t, o + 2048)]
        addQK(0)
        for j in range(15): addQK(j + 1); addPV(j)
        bar[len(M)] = "BK_16"
        addPV(15)
        fill, head = self.place(reads, bar, len(M), c["L2"])
        def ex(j, r): return lambda: e.v(f"v_exp_f32 v{SS+16*(j%2)+r}, v{SS+16*(j%2)+r}")
        def cv(j, k): return lambda: e.v(f"v_cvt_pk_bf16_f32 v{PP+k}, v{SS+16*(j%2)+2*k}, v{SS+16*(j%2)+2*k+1}")
        def ad(j, r): return lambda: e.v(f"v_add_f32 v{V_L0+(r%2)}, v{V_L0+(r%2)}, v{SS+16*(j%2)+r}")
        def put(j, g, spec):
            front = []
            for tok in spec.split():
                first = tok[0] == "<"
                if first: tok = tok[1:]
                f = {"e": ex, "c": cv, "a": ad}[tok[0]](j, int(tok[1:]))
                if first: front.append(f)
                else: fill.setdefault(g, []).append(f)
            fill[g] = front + fill.get(g, [])
        TAB = c["tab"] or {-5: "e0", -4: "e1 e2", -3: "e3 e4 c0", -2: "e5 e6 c1", -1: "e7 c2 a0", 0: "e8 e9 c3", 1: "e10 c4",
                           2: "e11 a1 a2", 3: "e12 c5", 4: "e13 a3 a4", 5: "e14 c6 a5", 6: "e15 a6 a7", 7: "c7 a8",
                           8: "a9 a10 a11", 9: "a12 a13", 10: "a14 a15"}
        TAB0 = {1: "e0", 2: "e1 e2 e3", 3: "e4 e5 c0", 4: "e6 e7 c1", 5: "e8 c2 c3", 6: "e9 e10 c4", 7: "e11 e12", 8: "e13 e14 c5",
                9: "e15 c6 a0", 10: "c7 a1 a2 a3 a4", 11: "a5 a6 a7", 12: "a8 a9", 13: "a10 a11", 14: "a12 a13", 15: "a14 a15"}
        neg = " ".join(v for k, v in TAB.items() if k < 0).split()
        rest = [t for t in " ".join(v for k, v in TAB.items() if k >= 0).split()]
        for j in range(15):
            for k, sp in (TAB0 if j == 0 else TAB).items(): put(j, 8 + 16 * j + k, sp)
        g0 = 8 + 16 * 15
        for k, sp in TAB.items():
            if k < 0: put(15, g0 + k, sp)
        assert "c3" in rest and "e7" in neg and "e8" in rest
        put(15, g0 - 1, "c3")
        adds = [t for t in rest if t[0] == "a"]
        for k, sp in enumerate(["e8 e9 " + adds[0], "e10 e11 c4 " + adds[1], "e12 e13 c5 " + adds[2], "<e14 <e15 <c6 <c7 " + adds[3],
                                " ".join(adds[4:10]), " ".join(adds[10:])]):
            put(15, g0 + k, sp)
        l, t1, t2, RC = V_L0, T0, T0 + 1, T0 + 3
        def lchain():
            e.v(f"v_add_f32 v{l}, v{V_L0}, v{V_L1}")
            e.v(f"v_mov_b32 v{t1}, v{l}")
            e.s(f"s_mov_b32 s{S_T0}, {f2u(2.0**-24):#x}\ns_mov_b32 s{S_T1}, {f2u(2.0**24):#x}")
            e.v(f"v_permlane32_swap_b32 v{l}, v{t1}")
            e.v(f"v_add_f32 v{l}, v{l}, v{t1}")
            e.v(f"v_rcp_f32 v{RC}, v{l}")
            e.v(f"v_cmp_nle_f32 vcc, s{S_T0}, v{l}")
            e.v(f"v_cmp_nge_f32 s[56:57], s{S_T1}, v{l}")
        self.lchain = lchain
        if c["LCH"]: fill.setdefault(g0 + 6, []).append(lchain)
        def rdyload(): e.bload("buffer_load_dword", T0 + 2, 1, V_RDY, SRD_DBG, "0", flags="sc1")
        def rdy():
            e.label("L_rdy"); e.vmcnt(0)
            e.v(f"v_readfirstlane_b32 s{S_T0}, v{T0+2}")
            e.s(f"s_cmp_eq_u32 s{S_T0}, 1\ns_cbranch_scc1 L_rdyok")
            e.bload("buffer_load_dword", T0 + 2, 1, V_RDY, SRD_DBG, "0", flags="sc1")
            e.s(f"s_add_u32 s{S_CNT}, s{S_CNT}, 1\ns_cmp_lt_u32 s{S_CNT}, 0x40000\ns_cbranch_scc1 L_rdy")
            e.label("L_rdyok")
        SENT = c["SENT"]
        J0 = 8 + 16 * c["CLRJ"]; J1 = 8 + 16 * c["CLRF"]
        fill.setdefault(8 + 10, []).append(lambda: self.wave0_only(rdyload, "rl"))
        def rdychk():
            e.s(f"s_mov_b32 s{S_CNT}, 0"); self.wave0_only(rdy, "rdy")
        gb = J1 - 16 + 16 - c["L2"]
        fill[gb] = [rdychk] + fill.get(gb, [])
        def so_pub(i):
            e.s(f"s_add_u32 s{S_T0}, s{S_R3}, {i}\ns_and_b32 s{S_T0}, s{S_T0}, 7\ns_lshl_b32 s{S_T1}, s{S_T0}, 17")
            if i: e.s(f"s_add_u32 s{S_T1}, s{S_T1}, {i*8192}")
        def so_flag(i):
            e.s(f"s_add_u32 s{S_T2}, s{S_R3}, {i}\ns_and_b32 s{S_T2}, s{S_T2}, 7\ns_lshl_b32 s{S_T2}, s{S_T2}, 8")
        for n, i in enumerate(range(SENT, 8)):
            if not c["noclear"]:
                fill.setdefault(J0 + 16 * (n // 2) + 9 + 2 * (n % 2), []).append(lambda i=i: so_pub(i))
                for q in range(2):
                    fill.setdefault(J0 + 16 * (n // 2) + 10 + 2 * (n % 2) + 0 * q, []).append(
                        lambda q=q: e.bstore("buffer_store_dwordx4", V_M1, 4, V_PUB, SRD_WS, f"s{S_T1}", 1024 * q, flags=c["fpub"]))
            def fl(i=i, n=n):
                so_flag(i)
                if n == 0: e.vmcnt(0)
                e.bstore("buffer_store_dword", V_ONE, 1, V_FLG, SRD_WS, f"s{S_T2}", 16 * i, flags=c["fflag"])
            fill.setdefault(J1 + 16 * (n // 2) + 9 + (n % 2), []).append(fl)
        if c["dump"] == "q":
            for f in qscale(0, True): f()
            for f in head: f()
            for f in qscale(1, True) + qscale(2, True) + qscale(3, True): f()
            self.dump(QP, 32, "q")
        elif c["QT"]:
            for f in head: f()
            for f in qscale(1, True): f()
            if c["QT"] == 2:
                for f in qscale(2, True): f()
                spread(fill, qscale(3, False), 0, 5)
            else:
                spread(fill, qscale(2, False), 0, 7)
                spread(fill, qscale(3, False)[:12], 3, 4); spread(fill, qscale(3, False)[12:], 4, 6)
        else:
            for f in qscale(0, True): f()
            for f in head: f()
            for f in qscale(1, True): f()
            spread(fill, qscale(2, False), 0, 7)
            spread(fill, qscale(3, False)[:12], 3, 4); spread(fill, qscale(3, False)[12:], 4, 6)
        self.stamp("c", "P2start")
        self.run_mfmas(M, fill, c["W2"], ph=2)
        self.stamp("c", "P2end")
        AC = lambda i: (AC3A, AC3B)[i % 2]
        M = []; reads = {}; bar = {}; done = {}
        seq = [(0, 0), (1, 0), (0, 1), (1, 1)] + [(i, hs) for i in range(2, 8) for hs in range(2)]
        for i, hs in seq:
            slot = self.WOSLOT[i]; win = slot >> 16; so = slot & 0xffff
            if hs == 0 and 2 <= i <= c["NB3"]: bar[len(M)] = f"B3_{i}"
            for k in range(8):
                g = len(M)
                M.append((AC(i), fr(g), (OWN if hs == 0 else OTH) + 4 * k, None if (hs == 0 and k == 0) else AC(i)))
                o = so + k * 2048
                reads[g] = [lambda d=fr(g), o=o, a=A_WO + 2 * win + hs: e.dstr(d, a, o),
                            lambda d=fr(g), o=o, a=A_WO + 2 * win + hs: e.dstr(d + 2, a, o + 1024)]
            if hs == 1: done[i] = len(M) - 1
        L3 = c["L3"]
        fill, head = self.place(reads, bar, len(M), L3)
        e.lgkm(0)
        if c["B17"]: e.barrier()
        e.label("L_norm")
        self.stamp("c", "n_17")
        if not c["LCH"]: lchain()
        for f in head[:8]: f()
        for gg in (0, 3, 7, 15): fill.setdefault(gg, []).insert(0, lambda gg=gg: self.stamp("c", f"n_m{gg}"))
        def onorm(t, pk):
            ops = []
            for k in range(8):
                r = ACC + 16 * t + 2 * k
                if pk: ops.append(lambda r=r: e.v(f"v_pk_mul_f32 v[{r}:{r+1}], v[{r}:{r+1}], v[{RC-1}:{RC}] op_sel:[0,1] op_sel_hi:[1,1]"))
                else: ops += [lambda r=r: e.v(f"v_mul_f32 v{r}, v{RC}, v{r}"), lambda r=r: e.v(f"v_mul_f32 v{r+1}, v{RC}, v{r+1}")]
            for k in range(8):
                r = ACC + 16 * t + 2 * k
                ops.append(lambda r=r, k=k: e.v(f"v_cvt_pk_bf16_f32 v{OWN+8*t+k}, v{r}, v{r+1}"))
            return ops
        wr = lambda k: (lambda: e.ds_write("ds_write_b128", V_XW, OWN + 4 * k, 4, 1024 * k))
        for f in onorm(0, True): f()
        e.s(f"s_or_b64 vcc, vcc, s[56:57]\ns_cmp_lg_u32 s{S_FIN}, 0\ns_cbranch_scc1 L_novote\ns_cbranch_vccz L_novote")
        mark = list(e.hist)
        e.v(f"v_mov_b32 v{OWN}, -1")
        for i in e.hist:
            if i not in mark: i.states = 0
        e.label("L_novote")
        for f in head[8:]: f()
        if c["dump"] == "o":
            wr(0)(); wr(1)()
            for t in (1, 2, 3):
                for f in onorm(t, True): f()
            self.dump(OWN, 32, "o")
            for k in range(2, 8): wr(k)()
        else:
            if c["NORMV"] == 0:
                wr(0)(); wr(1)()
                for f in onorm(1, True): f()
                for t in (2, 3):
                    ops = onorm(t, False)
                    spread(fill, [wr(2 * t - 2)] + ops[:12], 2 * t - 4, 13); spread(fill, [wr(2 * t - 1)] + ops[12:], 2 * t - 3, 13)
                fill.setdefault(4, []).append(wr(6)); fill.setdefault(5, []).append(wr(7))
            else:
                for t in (1, 2, 3):
                    ops = onorm(t, False)
                    spread(fill, [wr(2 * t - 2)] + ops[:12], 2 * t - 2, 13); spread(fill, [wr(2 * t - 1)] + ops[12:], 2 * t - 1, 13)
                fill.setdefault(6, []).append(wr(6)); fill.setdefault(7, []).append(wr(7))
        def bx():
            e.v(f"v_and_b32 v{t1}, 3, v{V_LANE}")
            e.v(f"v_lshlrev_b32 v{t1}, 13, v{t1}")
            e.v(f"v_add_u32 v{t1}, {self.XR}, v{t1}")
            nw = max(n for n, p in enumerate(e.pend) if not p) if any(not p for p in e.pend) else -1
            if nw >= 0: e.lgkm(len(e.pend) - 1 - nw)
            self.stamp("c", "preBX")
            e.barrier()
            self.stamp("c", "postBX")
            e.ds32(t2, t1)
        GX = c["GX"]
        fill[GX] = [bx] + fill.get(GX, [])
        for k in range(8):
            fill.setdefault(GX + k // 2 if c["BY"] else min(GX + k, 11 + k), []).append(lambda k=k: e.ds128(OTH + 4 * k, V_XR, 1024 * k))
        if c["BY"]:
            def by():
                e.wait_regs(R(OTH, 32)); e.barrier()
            fill[GX + 6] = [by] + fill.get(GX + 6, [])
        def vote():
            e.v(f"v_cmp_eq_u32 vcc, -1, v{t2}")
            e.s(f"s_cmp_lg_u32 s{S_FIN}, 0\ns_cbranch_scc1 L_voted\ns_cbranch_vccnz L_slow")
            e.label("L_voted")
        fill[GX + 3] = [vote] + fill.get(GX + 3, [])
        FL = c["FLAGLAG"]
        vseq = []
        def pub_cvt(i, k): return lambda: e.v(f"v_cvt_pk_bf16_f32 v{PK+8*(i%2)+k}, v{AC(i)+2*k}, v{AC(i)+2*k+1}")
        def pub_min(i, k): return lambda: e.v(f"v_min_u32 v{PK+8*(i%2)+k}, -2, v{PK+8*(i%2)+k}")
        def pub_so(i): return lambda: so_pub(i)
        def pub_st(i, q):
            def f():
                if c["nopub"]:
                    vseq.append(("S", i)); return
                e.bstore("buffer_store_dwordx4", PK + 8 * (i % 2) + 4 * q, 4, V_PUB, SRD_WS, f"s{S_T1}", 1024 * q, flags=c["fpub"])
                vseq.append(("S", i))
            return f
        def pub_flag(i):
            def f():
                so_flag(i)
                last = max(n for n, x in enumerate(vseq) if x == ("S", i))
                e.vmcnt(len(vseq) - 1 - last)
                e.bstore("buffer_store_dword", V_ONE, 1, V_FLG, SRD_WS, f"s{S_T2}", 16 * i, flags=c["fflag"])
                vseq.append(("F", i))
            return f
        late = []
        for i in range(7):
            g = done[i] + 1 + (min(c["PUBG"], 3) if i == 0 else c["PUBG"])
            fill.setdefault(g - 1, []).append(pub_so(i))
            for k in range(8):
                fill.setdefault(g + k // 2, []).append(pub_cvt(i, k))
                if i >= SENT: fill.setdefault(g + k // 2 + 1, []).insert(0, pub_min(i, k))
            fill.setdefault(g + 2, []).append(pub_st(i, 0))
            fill.setdefault(g + 4, []).append(pub_st(i, 1))
            if i >= SENT: continue
            gf = g + 7 + 16 * FL
            if gf < len(M) and i < c["FLMAX"]: fill.setdefault(gf, []).append(pub_flag(i))
            else: late.append(i)
        self.run_mfmas(M, fill, c["W3"], ph=3)
        self.stamp("c", "P3end")
        e.s(f"s_and_b32 s{S_T0}, s{S_D}, 1\ns_and_b32 s{S_T1}, s{S_WAVE}, 1\ns_cmp_eq_u32 s{S_T0}, s{S_T1}\ns_cbranch_scc1 L_own")
        h0 = list(e.hist); v0 = list(vseq)
        pub_so(7)()
        for k in range(8): pub_cvt(7, k)()
        if SENT <= 7:
            for k in range(8): pub_min(7, k)()
        pub_st(7, 0)(); pub_st(7, 1)()
        if c["GLATE"]: e.barrier()
        for i in late + ([7] if SENT > 7 else []): pub_flag(i)()
        e.s("s_branch L_fin")
        e.label("L_own"); e.hist = h0; vseq[:] = v0
        e.s(f"s_lshr_b32 s{S_T0}, s{S_WAVE}, 1\ns_lshl_b32 s{S_T0}, s{S_T0}, 12\ns_add_u32 s{S_T0}, s{S_T0}, {self.S3}")
        e.v(f"v_lshl_add_u32 v{T0}, v{V_LANE}, 4, s{S_T0}")
        for p in range(4): e.ds_write("ds_write_b128", T0, AC(7) + 4 * p, 4, 1024 * p)
        if c["GLATE"]: e.lgkm(0); e.barrier()
        for i in late: pub_flag(i)()
        e.lgkm(0)
        e.label("L_fin")
        if not c["GLATE"]: e.barrier()
        self.stamp("c", "flagged")
        self.write_stamps("c")
        e.other("s_endpgm")
        self.slow()

    def slow(self):
        e = self.e
        L = V_LANE
        e.raw(";@UNPAGED")
        e.label("L_slow"); e.hist = []; e.pend = []
        e.other("s_waitcnt vmcnt(0) lgkmcnt(0)"); e.nop(16)
        e.barrier()
        KA, VA, MX, t1 = T0, T0 + 1, T0 + 6, T0 + 7
        e.s(f"""s_mov_b32 s{S_FIN}, 1
s_lshr_b32 s{S_T0}, s{S_HP}, 1
s_lshl_b32 s{S_T1}, s{S_B}, 3
s_add_u32 s{S_T0}, s{S_T0}, s{S_T1}
s_lshl_b32 s{S_T0}, s{S_T0}, 17""")
        e.v(f"v_and_b32 v{t1}, 31, v{L}")
        e.v(f"v_lshrrev_b32 v{MX}, 5, v{L}")
        e.v(f"v_lshlrev_b32 v{KA}, 8, v{t1}")
        e.v(f"v_lshl_add_u32 v{KA}, v{MX}, 4, v{KA}")
        e.v(f"v_add_u32 v{KA}, s{S_T0}, v{KA}")
        e.v(f"v_lshlrev_b32 v{VA}, 10, v{MX}")
        e.v(f"v_lshl_add_u32 v{VA}, v{t1}, 1, v{VA}")
        e.v(f"v_add_u32 v{VA}, s{S_T0}, v{VA}")
        e.v(f"v_mov_b32 v{MX}, 0xff800000")
        def qk(cinit):
            for s in range(8): e.bload("buffer_load_dwordx4", FR + 4 * s, 4, KA, SRD_K, f"s{S_T1}", 32 * s)
            e.vmcnt(0)
            for s in range(8): e.mfma(SS, FR + 4 * s, QP + 4 * s, cinit if s == 0 else SS)
        e.s(f"s_mov_b32 s{S_T1}, 0")
        e.label("L_s1"); e.nop(12)
        qk(None)
        for r in range(0, 16, 2): e.v(f"v_max3_f32 v{MX}, v{MX}, v{SS+r}, v{SS+r+1}")
        e.s(f"s_add_u32 s{S_T1}, s{S_T1}, 8192\ns_cmp_lt_u32 s{S_T1}, 0x20000\ns_cbranch_scc1 L_s1")
        e.v(f"v_mov_b32 v{t1}, v{MX}")
        e.v(f"v_permlane32_swap_b32 v{MX}, v{t1}")
        e.v(f"v_max_f32 v{MX}, v{MX}, v{t1}")
        for r in range(16): e.v(f"v_sub_f32 v{CT+r}, 0, v{MX}")
        for r in range(64): e.v(f"v_mov_b32 v{ACC+r}, 0")
        e.v(f"v_mov_b32 v{V_L0}, 0"); e.v(f"v_mov_b32 v{V_L1}, 0")
        e.s(f"s_mov_b32 s{S_T1}, 0")
        e.label("L_s2"); e.nop(12)
        qk(CT)
        for r in range(16): e.v(f"v_exp_f32 v{SS+r}, v{SS+r}")
        for r in range(16): e.v(f"v_add_f32 v{V_L0}, v{V_L0}, v{SS+r}")
        for k in range(8): e.v(f"v_cvt_pk_bf16_f32 v{PP+k}, v{SS+2*k}, v{SS+2*k+1}")
        for u in range(2):
            e.s(f"s_add_u32 s{S_T2}, s{S_T1}, {u*4096}")
            for t in range(4):
                for j in range(8):
                    row = 8 * (j // 4) + j % 4
                    e.bload("buffer_load_ushort", SS + 16 + j, 1, VA, SRD_V, f"s{S_T2}", row * 256 + t * 64)
                e.vmcnt(0)
                for j in range(4): e.v(f"v_lshl_or_b32 v{FR+4*t+j}, v{SS+16+2*j+1}, 16, v{SS+16+2*j}")
            for t in range(4): e.mfma(ACC + 16 * t, FR + 4 * t, PP + 4 * u, ACC + 16 * t)
            e.nop(8)
        e.s(f"s_add_u32 s{S_T1}, s{S_T1}, 8192\ns_cmp_lt_u32 s{S_T1}, 0x20000\ns_cbranch_scc1 L_s2")
        e.nop(16)
        if self.c["LCH"]: self.lchain()
        e.nop(2)
        e.s("s_branch L_norm")

    def build(self):
        e = self.e
        self.plan()
        e.raw(f"""; Fused GQA block (two branches), gfx950.  Generated by the author's own generator script.
; @launch grid=(256,1,1) block=(512,1,1) lds={LDS}
.amdgcn_target "amdgcn-amd-amdhsa--gfx950"
.text
.globl {KN}
.p2align 8
.type {KN},@function
{KN}:""")
        self.prologue()
        self.helper()
        self.compute()
        e.label("L_end"); e.other("s_endpgm")
        e.raw(f""".section .rodata,"a"
.p2align 6
.amdhsa_kernel {KN}
  .amdhsa_next_free_vgpr 248
  .amdhsa_next_free_sgpr 102
  .amdhsa_accum_offset 248
  .amdhsa_group_segment_fixed_size 0
  .amdhsa_kernarg_size 104
  .amdhsa_user_sgpr_count 2
  .amdhsa_user_sgpr_kernarg_segment_ptr 1
  .amdhsa_system_sgpr_workgroup_id_x 1
.end_amdhsa_kernel""")
        assert e.maxv < 248
        return self.paginate(e.out)

    def paginate(self, lines):
        import subprocess, re, tempfile, os
        isins = lambda l: l.startswith("    ") and not l.strip().startswith((";", "."))
        with tempfile.TemporaryDirectory() as d:
            open(d + "/a.s", "w").write("\n".join(lines) + "\n")
            subprocess.run(["clang", "-x", "assembler", "-target", "amdgcn-amd-amdhsa", "-mcpu=gfx950", "-c",
                            "-o", d + "/a.o", d + "/a.s".replace("a.s", "a.s")], check=True)
            dis = subprocess.run(["llvm-objdump", "-d", "--mcpu=gfx950", d + "/a.o"], capture_output=True, text=True).stdout
        enc = [(int(m.group(1), 16), len(m.group(2).split()) * 4, m.group(0)) for m in re.finditer(r"// ([0-9A-F]{12}): ((?:[0-9A-F]{8} ?)+)", dis)]
        sizes = []; j = 0; addr = 0
        for l in lines:
            if l.startswith(".p2align 12"):
                addr = (addr + 4095) // 4096 * 4096
                while enc[j][0] < addr: j += 1
            if isins(l):
                assert enc[j][0] == addr, (l, hex(addr), enc[j])
                sizes.append(enc[j][1]); addr += enc[j][1]; j += 1
        n2 = 0
        while True:
            out, nm = self._marks(lines, sizes, isins, n2)
            if nm == n2: break
            n2 = nm
        return self._touches(out, nm)

    def _marks(self, lines, sizes, isins, n2):
        out = []; paged = False; off = 0; nm = 0; k = 0; self.page0 = None; tot = 0
        for l in lines:
            if l == ";@TOUCH2" and n2: off += 8 + 8 * n2
            if l == ";@PAGED":
                paged = True; off = 0
                if self.page0 is None: self.page0 = tot
                continue
            if l == ";@UNPAGED": paged = False; continue
            if l == ";@MARK":
                if self.c["touch"]:
                    nm += 1; out += [f"L_mk{nm}:", f"    s_cbranch_execz L_rt{nm}"]; off += 4
                continue
            if isins(l):
                sz = sizes[k]; k += 1; tot += sz
                if paged and self.c["touch"]:
                    if off % 4096 and off // 4096 != (off + sz - 1) // 4096:
                        out.append("    s_nop 0"); off += 4
                    if off and off % 4096 == 0:
                        nm += 1; out += [f"L_mk{nm}:", f"    s_cbranch_execz L_rt{nm}"]; off += 4
                off += sz
            out.append(l)
        return out, nm

    def _touches(self, out, nm):
        res = []
        for l in out:
            if l in (";@TOUCH1", ";@TOUCH2"):
                ks = list(range(1, nm + 1))
                if not ks: continue
                res.append("    s_mov_b64 exec, 0")
                for n, kk in enumerate(ks):
                    res += [f"    s_cmp_eq_u32 s{S_WAVE}, {n % 4}", f"    s_cbranch_scc1 L_mk{kk}", f"L_rt{kk}:"]
                res.append("    s_mov_b64 exec, -1")
            else: res.append(l)
        assert self.page0 + 80 < 4096 - 768, self.page0
        self.npages = nm
        return "\n".join(res) + "\n"

if __name__ == "__main__":
    kw = eval("dict(%s)" % (sys.argv[2] if len(sys.argv) > 2 else ""))
    g = Gen(**kw)
    t = g.build()
    open(sys.argv[1], "w").write(t)
    print("page0", g.page0, "marks", g.npages, "nops", g.e.nnop, "waits", g.e.nwait, "lines", len(g.e.out))
    for n in range(-1, len(g.bars)):
        print(g.bars[n] if n >= 0 else "start", [i["name"] for i in g.sched[n]])
```

```python
import sys, math, struct
from emit import *

NAME = "concat_heads__gqa_block_cached__gqa_block_cached__near_ridge"
KN = NAME + "_kernel"

def f2u(f): return struct.unpack("<I", struct.pack("<f", f))[0]

DEF = dict(
    NF=8, L1=5, W1=2, L2=7, W2=4, L3=7, W3=4, GX=9,
    r1b=(2, 8), r1h=4,
    r3b=(1, 2),
    fx="", fq="", fk="", fv="", fo="",
    kvpre=16,
    NREG=0, PACE3=None, PUBG=6, PREPOLL=9, wopos=(7, 9, 11, 13, 14, 15),
    prio_c=0, prio_h=0,
    stamp=0, dump=None, FLAGLAG=1, touch=1, NB3=6, rounds=tuple((i,) for i in range(8)), l2pf=1, TPOS=1, PSLEEP=0, fpoll='sc1', fgat='sc1', fpub='sc1', fflag='sc1', tlbpf=1, kvalt=0, kvrot=1, trace=0, KA=2, QT=1, nobar=0, S3K=1, s3pos=(16, 16), CZ=1, nst=0, S3AT='BK_17', LCH=1, NORMV=1, GEARLY=2, FLMAX=3, BY=1, GLATE=1, A3=(2, 2, 3, 4), skip=(), warm=0, warmd=0, SENT=8, CLRJ=2, CLRF=5, noclear=0, B17=1, RSLEEP=4, wsoff=0, fout='sc1', CAP=64, CAP0=None, CAPE=None, CAPS=None, XFIRST=0, pad=None, nodma=0, tab=None, nopub=0,
)

W0 = 0; KR = 98304; VR = 131072; LDS = 163840
XSLOT = [KR, KR + 8192, VR, KR + 16384, VR + 8192, KR + 24576, VR + 16384, VR + 24576]
WOSLOT = [0, 32768, 65536, VR, KR, 0, 32768, 65536]
WS_X = 0
WS_F = 16 << 20
WS_DBG = 17 << 20
WS_SIZE = 32 << 20
S_WAVE, S_BR, S_B, S_HP, S_D = 3, 4, 5, 6, 7
SRD_X, SRD_K, SRD_V, SRD_WQ, SRD_WO, SRD_WS, SRD_OUT, SRD_DBG = 8, 12, 16, 20, 24, 28, 32, 36
S_GRP, S_R1, S_R3, S_T0, S_T1, S_T2, S_T3 = 40, 41, 42, 43, 44, 45, 46
S_CX, S_CQ, S_CKV, S_CO, S_M2, S_M4, S_FIN, S_SC = 47, 48, 49, 50, 51, 52, 53, 54
S_CNT = 56
S_CLR = 100
S_KP, S_KQ, S_KE, S_KF = 96, 97, 98, 99
S_STAMP = 60
V_LANE = 1
A_WQ = 2
A_X = 10
A_K = 14
A_V = 22
A_WO = 26
V_PUB, V_FLG, V_XW, V_XR, V_L0, V_L1 = 32, 33, 34, 35, 36, 37
T0 = 38
FR = 48
XB = 80
PP = 80
QP = 92
ACC = 128
SS = 192
CT = 224
OWN = 192
OTH = 128
AC3A, AC3B = 224, 160
PK = 176
V_ONE, V_RDY = 240, 241
V_M1 = 244
H_X, H_Q, H_K, H_V, H_O = 2, 4, 8, 10, 12
H_G, H_F, H_OUT, H_T = 16, 17, 18, 19
H_OWN, H_PRM = 42, 43
H_ACC = 24
H_TMP = 32
H_BUF = 160
H_REG = 64
H_W = 40


class Gen:
    def __init__(self, **kw):
        self.c = dict(DEF); self.c.update(kw)
        for k in kw: assert k in DEF, k
        self.e = Em()
        self.XR, self.S3 = (VR, KR) if self.c["S3K"] else (KR, VR)
        self.WOSLOT = [0, 32768, 65536, self.S3, self.XR, 0, 32768, 65536]
        self.nst = {"c": 0, "h": 0}
        self.stamp_names = {"c": [], "h": []}

    def stamp(self, who, name):
        if not self.c["stamp"]: return
        if self.c["nst"] and who == "c" and name in ("setup", "preB1_0", "postB1_0", "preB1_8", "postBK_0", "preBK_1", "preBK_8"): return
        if name.startswith("n_") and not self.c["nst"]: return
        k = self.nst[who]; self.nst[who] += 1
        assert k < 19
        self.stamp_names[who].append(name)
        self.e.other(f"{'s_memrealtime' if self.c['stamp'] == 2 else 's_memtime'} s[{S_STAMP+2*k}:{S_STAMP+2*k+1}]")

    def write_stamps(self, who):
        if not self.c["stamp"]: return
        e = self.e
        if self.c["pad"]:
            T, w, nm = self.c["pad"]
            if w == who:
                k = self.stamp_names[who].index(nm)
                e.lgkm(0)
                e.s(f"s_add_u32 s{S_T0}, s{S_STAMP+2*k}, {T//10}")
                e.label(f"L_pad{who}")
                e.other("s_memrealtime s[98:99]"); e.lgkm(0)
                e.s(f"s_sub_u32 s{S_T1}, s98, s{S_T0}\ns_cmp_lt_i32 s{S_T1}, 0\ns_cbranch_scc1 L_pad{who}")
            return
        e.other("s_memrealtime s[98:99]")
        e.lgkm(0)
        e.v("v_mov_b32 v44, 0")
        for k in range(self.nst[who]): e.v(f"v_writelane_b32 v44, s{S_STAMP+2*k}, {k}")
        e.v("v_writelane_b32 v44, s98, 30"); e.v("v_writelane_b32 v44, s58, 31")
        e.v(f"v_lshlrev_b32 v45, 2, v{V_LANE}")
        e.s(f"s_lshl_b32 s{S_T0}, s2, 3\ns_add_u32 s{S_T0}, s{S_T0}, s{S_WAVE}\ns_lshl_b32 s{S_T0}, s{S_T0}, 8\ns_add_u32 s{S_T0}, s{S_T0}, {WS_DBG}")
        e.bstore("buffer_store_dword", 44, 1, 45, SRD_WS, f"s{S_T0}")
        if self.c["trace"] and who == "h":
            e.s(f"s_add_u32 s{S_T0}, s{S_T0}, 0x80000")
            e.bstore("buffer_store_dword", 46, 1, 45, SRD_WS, f"s{S_T0}")

    def plan(self):
        c = self.c
        bars = [f"B1_{k}" for k in range(16)] + [f"BK_{k}" for k in range(17 + c["B17"])] + ["BX"] + ["BY"] * c["BY"] + [f"B3_{k}" for k in range(2, c["NB3"] + 1)]
        bi = {n: i for i, n in enumerate(bars)}
        items = {}
        def add(name, lds, after, needed): items[name] = dict(name=name, lds=lds, after=after, need=needed)
        xfree = lambda cc: bi[f"B1_{2*cc+3}"] if cc <= 6 else bi["BK_0"]
        qfree = lambda kt: bi[f"B1_{kt+2}"] if kt <= 13 else bi["BK_0"]
        for cc in range(8): add(f"x{cc}", XSLOT[cc], -1, bi[f"B1_{2*cc}"])
        for kt in range(16): add(f"q{kt}", W0 + (kt % 6) * 16384, -1 if kt < 6 else qfree(kt - 6), bi[f"B1_{kt}"])
        for j in range(16):
            a = KR + (j % 4) * 8192
            add(f"k{j}", a, xfree(XSLOT.index(a)) if j < 4 else bi[f"BK_{max(j-3, 2)}"], bi[f"BK_{j}"])
            a = VR + (j % 4) * 8192
            add(f"v{j}", a, xfree(XSLOT.index(a)) if j < 4 else bi[f"BK_{j-1}"], bi[f"BK_{j+1}"])
        NREG = c["NREG"]
        for i in range(8):
            for hf in range(2):
                a = self.WOSLOT[i] + hf * 16384
                if i < 3:
                    last = max(kt for kt in range(16) if (kt % 6) * 16384 == a)
                    aft = qfree(last)
                else: aft = bi[c["S3AT"] if c["B17"] else "BX"] if i == 3 else (bi["BY"] if (i == 4 and c["BY"]) else bi[f"B3_{c['A3'][i-4]}"])
                if i == 3 and c["S3K"]:
                    assert c["B17"] and c["s3pos"][hf] >= (14, 16)[hf]
                    aft = bi[f"BK_{c['s3pos'][hf]}"]
                if i >= 8 - NREG:
                    add(f"o{i}{'ab'[hf]}", a, -1, aft)
                    items[f"o{i}{'ab'[hf]}"]["reg"] = H_REG + 32 * (i - (8 - NREG)) + 16 * hf
                else:
                    add(f"o{i}{'ab'[hf]}", a, aft, bi[f"BK_{16 + c['B17']}"] if i <= 1 else bi[f"B3_{min(i, c['NB3'])}"])
        order = []
        kvq = ["k0", "k1", "v0", "k2", "v1", "k3", "v2"]
        XF = c["XFIRST"]
        for kt in range(16):
            if kt == 0 and XF: order += ["x0", "x1"][:XF]
            if kt % 2 == 0 and f"x{kt//2}" not in order: order.append(f"x{kt//2}")
            order.append(f"q{kt}")
            if kt + 1 >= c["kvpre"] and kt < 15 and kvq and items[kvq[0]]["after"] <= items[f"q{kt}"]["after"]:
                order.append(kvq.pop(0))
        order += kvq
        wo = [f"o{i}{h}" for i in list(range(3)) + list(range(8 - NREG, 8)) for h in "ab"]
        wp = list(c["wopos"])
        order.append("v3")
        for n in range(0, 17 + c["B17"]):
            if 4 <= n + 1 <= 15: order.append(f"v{n+1}")
            if n == 2: order.append("k4")
            if 5 <= n + 3 <= 15: order.append(f"k{n+3}")
            while wp and wo and wp[0] <= n:
                nm = wo.pop(0); wp.pop(0)
                items[nm]["after"] = max(items[nm]["after"], bi[f"BK_{n}"])
                order.append(nm)
            if c["S3K"]:
                for hf in range(2):
                    if c["s3pos"][hf] == n: order.append("o3" + "ab"[hf])
        order += wo
        order += [f"o{i}{h}" for i in range(3, 8 - NREG) for h in "ab" if f"o{i}{h}" not in order]
        assert sorted(order) == sorted(items), (set(items) - set(order), len(order), len(items))
        cur = -1
        sched = {i: [] for i in range(-1, len(bars))}
        size = lambda n: 16 if n[0] in "qo" else 8
        issued = []
        nP1 = bi["BK_0"]
        for n in order:
            it = items[n]
            cur = max(cur, it["after"])
            while cur < nP1 and sum(size(m) for m in issued if items[m]["need"] > cur) + size(n) > (c["CAPS"][cur + 1] if (c["CAPS"] and cur + 1 < len(c["CAPS"])) else c["CAP0"] if (cur < 0 and c["CAP0"]) else (c["CAPE"][0] if (c["CAPE"] and cur < c["CAPE"][1]) else c["CAP"])):
                cur += 1
            assert cur < it["need"], (n, bars[cur], bars[it["need"]])
            sched[cur].append(it); issued.append(n)
        self.bars, self.bi, self.items, self.sched, self.order = bars, bi, items, sched, order

    def prologue(self):
        e, c = self.e, self.c
        KA = c["KA"]
        e.s("s_cmp_ge_u32 s2, 256\ns_cbranch_scc1 L_end")
        if KA >= 2:
            e.v(f"v_lshrrev_b32 v2, 6, v0")
        e.s(f"""
s_and_b32 s{S_T0}, s2, 7
s_lshr_b32 s{S_BR}, s{S_T0}, 2
s_mul_i32 s{S_T1}, s{S_BR}, 40
s_add_u32 s56, s0, s{S_T1}
s_addc_u32 s57, s1, 0""")
        if KA == 0:
            for srd, off in ((SRD_X, 0), (SRD_WQ, 24), (SRD_K, 8), (SRD_V, 16), (SRD_WO, 32)):
                e.other(f"s_load_dwordx2 s[{srd}:{srd+1}], s[56:57], {off}")
            for srd, off in ((SRD_OUT, 80), (SRD_DBG, 88), (SRD_WS, 96)):
                e.other(f"s_load_dwordx2 s[{srd}:{srd+1}], s[0:1], {off}")
        elif KA == 1:
            for srd, off in ((SRD_X, 0), (SRD_WQ, 24)):
                e.other(f"s_load_dwordx2 s[{srd}:{srd+1}], s[56:57], {off}")
        else:
            e.v(f"v_readfirstlane_b32 s{S_WAVE}, v2")
            e.s(f"s_cmp_ge_u32 s{S_WAVE}, 4\ns_cbranch_scc1 L_helper")
        self.decode("c")
        if KA < 2: e.s(f"s_cmp_ge_u32 s{S_WAVE}, 4\ns_cbranch_scc1 L_helper")
        self.compute_setup()
        e.s("s_branch L_compute")

    def decode(self, who):
        e, c = self.e, self.c
        KA = c["KA"]
        if c["stamp"]: e.other("s_memrealtime s[58:59]")
        self.stamp(who, "start")
        if KA < 2: self.nst["h"] = self.nst["c"]; self.stamp_names["h"] = list(self.stamp_names["c"])
        if KA < 2: e.v(f"v_lshrrev_b32 v2, 6, v0")
        e.v(f"v_and_b32 v{V_LANE}, 63, v0")
        if KA < 2: e.v(f"v_readfirstlane_b32 s{S_WAVE}, v2")
        for srd, n in ((SRD_X, 512 << 10), (SRD_K, 8 << 20), (SRD_V, 8 << 20), (SRD_WQ, 4 << 20), (SRD_WO, 4 << 20),
                       (SRD_WS, WS_SIZE), (SRD_OUT, 1 << 20), (SRD_DBG, 256)):
            e.s(f"s_mov_b32 s{srd+2}, {n}\ns_mov_b32 s{srd+3}, 0x20000")
        e.s(f"""
s_and_b32 s{S_T0}, s{S_T0}, 3
s_lshr_b32 s{S_T1}, s2, 3
s_and_b32 s{S_B}, s{S_T1}, 7
s_lshr_b32 s{S_T1}, s{S_T1}, 3
s_lshl_b32 s{S_T0}, s{S_T0}, 2
s_add_u32 s{S_HP}, s{S_T0}, s{S_T1}
s_lshl_b32 s{S_GRP}, s{S_BR}, 3
s_add_u32 s{S_GRP}, s{S_GRP}, s{S_B}
s_lshr_b32 s{S_T0}, s{S_B}, {c['r1b'][0]}
s_mul_i32 s{S_T0}, s{S_T0}, {c['r1b'][1]}
s_mul_i32 s{S_T1}, s{S_T1}, {c['r1h']}
s_add_u32 s{S_R1}, s{S_T0}, s{S_T1}
s_and_b32 s{S_R1}, s{S_R1}, 15
s_lshr_b32 s{S_T0}, s{S_B}, {c['r3b'][0]}
s_mul_i32 s{S_T0}, s{S_T0}, {2*c['r3b'][1]}
s_add_u32 s{S_D}, s{S_HP}, s{S_T0}
s_and_b32 s{S_D}, s{S_D}, 15
s_lshr_b32 s{S_R3}, s{S_D}, 1
s_add_u32 s{S_R3}, s{S_R3}, 1
s_and_b32 s{S_R3}, s{S_R3}, 7""")

    def helper(self):
        e, c = self.e, self.c
        L = V_LANE
        e.label("L_helper"); e.hist = []
        if c["KA"] >= 2:
            e.other("s_load_dwordx8 s[80:87], s[56:57], 0")
            self.decode("h")
        HW = S_T3
        e.s(f"s_sub_u32 s{HW}, s{S_WAVE}, 4")
        if c["prio_h"]: e.other(f"s_setprio {c['prio_h']}")
        t, u = 20, 21
        e.v(f"v_lshrrev_b32 v{t}, 3, v{L}")
        e.s(f"s_lshl_b32 s{S_T0}, s{HW}, 4\ns_lshl_b32 s{S_T1}, s{S_B}, 6\ns_add_u32 s{S_T0}, s{S_T0}, s{S_T1}")
        e.v(f"v_add_lshl_u32 v{H_X}, v{t}, s{S_T0}, 10")
        e.v(f"v_lshrrev_b32 v{u}, 4, v{L}")
        e.v(f"v_and_b32 v22, 7, v{L}")
        e.v(f"v_xor_b32 v22, v22, v{u}")
        e.v(f"v_xor_b32 v23, 4, v22")
        e.v(f"v_lshl_add_u32 v{H_X+1}, v23, 4, v{H_X}")
        e.v(f"v_add_u32 v{H_X+1}, {8*1024-1024}, v{H_X+1}")
        e.v(f"v_lshl_add_u32 v{H_X}, v22, 4, v{H_X}")
        e.v(f"v_lshrrev_b32 v22, 5, v{L}")
        e.s(f"s_lshl_b32 s{S_T0}, s{HW}, 3\ns_lshl_b32 s{S_T1}, s{S_HP}, 9")
        e.v(f"v_add_lshl_u32 v23, v22, s{S_T0}, 13")
        e.v(f"v_add_u32 v23, s{S_T1}, v23")
        e.v(f"v_lshlrev_b32 v22, 2, v22")
        e.v(f"v_and_b32 v19, 31, v{L}")
        e.v(f"v_xor_b32 v22, v22, v19")
        e.v(f"v_lshl_add_u32 v{H_Q}, v22, 4, v23")
        e.v(f"v_xor_b32 v22, 8, v22")
        e.v(f"v_lshl_add_u32 v{H_Q+1}, v22, 4, v23")
        e.v(f"v_add_u32 v{H_Q+2}, {2*(16384-1024)}, v{H_Q}")
        e.v(f"v_add_u32 v{H_Q+3}, {3*(16384-1024)}, v{H_Q+1}")
        e.v(f"v_add_u32 v{H_Q+1}, {16384-1024}, v{H_Q+1}")
        e.s(f"""s_lshl_b32 s{S_CQ}, s{S_R1}, 18
s_lshl_b32 s{S_CX}, s{S_R1}, 6
s_lshl_b32 s{S_M2}, s{HW}, 11
s_lshl_b32 s{S_M4}, s{HW}, 12""")
        first = list(self.sched[-1])
        e.other("s_waitcnt lgkmcnt(0)")
        if c["KA"] >= 2:
            e.s(f"s_mov_b64 s[{SRD_X}:{SRD_X+1}], s[80:81]\ns_mov_b64 s[{SRD_WQ}:{SRD_WQ+1}], s[86:87]\ns_mov_b64 s[{SRD_K}:{SRD_K+1}], s[82:83]\ns_mov_b64 s[{SRD_V}:{SRD_V+1}], s[84:85]")
        self.stamp("h", "karg")
        if not c["KA"]: self.wsoff()
        self.hseq = 0
        nfirst = 0
        while nfirst < len(first) and first[nfirst]["name"][0] in "xq" and nfirst < 3:
            self.issue(first[nfirst]); nfirst += 1
        self.stamp("h", "iss3")
        self.karg2("h")
        e.s(f"""s_lshr_b32 s{S_T0}, s{S_HP}, 1
s_lshl_b32 s{S_T1}, s{S_B}, 3
s_add_u32 s{S_T0}, s{S_T0}, s{S_T1}
s_lshl_b32 s{S_T0}, s{S_T0}, 17
s_lshl_b32 s{S_T1}, s{HW}, 11
s_add_u32 s{S_T0}, s{S_T0}, s{S_T1}
s_and_b32 s{S_T1}, s{HW}, 1
s_lshl_b32 s{S_T1}, s{S_T1}, 3""")
        e.v(f"v_lshlrev_b32 v23, 8, v{u}")
        e.v(f"v_add_u32 v23, s{S_T0}, v23")
        e.v(f"v_and_b32 v19, 15, v{L}")
        e.v(f"v_add_u32 v22, s{S_T1}, v{u}")
        e.v(f"v_xor_b32 v22, v22, v19")
        e.v(f"v_lshl_add_u32 v{H_K}, v22, 4, v23")
        e.v(f"v_xor_b32 v22, 4, v22")
        e.v(f"v_lshl_add_u32 v{H_K+1}, v22, 4, v23")
        e.v(f"v_lshlrev_b32 v22, 2, v{u}")
        e.v(f"v_xor_b32 v22, v22, v19")
        e.v(f"v_lshl_add_u32 v{H_V}, v22, 4, v23")
        e.s(f"""s_lshr_b32 s{S_T0}, s{S_HP}, 1
s_and_b32 s{S_T0}, s{S_T0}, 1
s_lshl_b32 s{S_T0}, s{S_T0}, 3
s_add_u32 s{S_T0}, s{S_T0}, s{S_B}
s_mul_i32 s{S_T0}, s{S_T0}, {c['kvrot']}
s_lshl_b32 s{S_KP}, s{S_T0}, 13""")
        if c["kvalt"]:
            d = c["kvalt"] & 3
            e.s(f"""s_and_b32 s{S_T0}, s{S_HP}, 1
s_lshl_b32 s{S_T0}, s{S_T0}, {12 + d}
s_and_b32 s{S_T1}, s{S_B}, {0 if c['kvalt'] & 4 else 1}
s_cmp_eq_u32 s{S_T1}, 0
s_cselect_b32 s{S_T1}, s{S_T0}, 0
s_cselect_b32 s{S_T0}, 0, s{S_T0}
s_add_u32 s{S_KE}, s{S_KP}, s{S_T1}
s_sub_u32 s{S_KF}, s{S_KP}, s{S_T1}
s_add_u32 s{S_KQ}, s{S_KF}, s{S_T0}
s_sub_u32 s{S_KP}, s{S_KE}, s{S_T0}""")
        e.s(f"s_lshl_b32 s{S_T0}, s{HW}, 5\ns_lshl_b32 s{S_T1}, s{S_HP}, 8\ns_add_u32 s{S_T0}, s{S_T0}, s{S_T1}")
        e.v(f"v_add_lshl_u32 v23, v{t}, s{S_T0}, 10")
        e.v(f"v_and_b32 v22, 1, v{u}")
        e.v(f"v_lshlrev_b32 v22, 2, v22")
        e.v(f"v_and_b32 v19, 7, v{L}")
        e.v(f"v_xor_b32 v22, v22, v19")
        e.v(f"v_lshl_add_u32 v{H_O}, v22, 4, v23")
        for k in range(1, 4): e.v(f"v_add_u32 v{H_O+k}, {k*(8192-1024)}, v{H_O}")
        e.v(f"v_lshl_add_u32 v{H_W}, v{L}, 4, s{S_M4}")
        e.v(f"v_add_u32 v{H_W+1}, 0x10000, v{H_W}")
        e.s(f"""s_lshl_b32 s{S_T0}, s{S_GRP}, 4
s_add_u32 s{S_T0}, s{S_T0}, s{S_D}
s_lshl_b32 s{S_T1}, s{S_T0}, 7
s_add_u32 s{S_T1}, s{S_T1}, {WS_F}
s_lshl_b32 s{S_T0}, s{S_T0}, 16
s_lshl_b32 s{S_T2}, s{HW}, 7""")
        e.v(f"v_and_b32 v22, 7, v{L}")
        e.v(f"v_bfe_u32 v23, v{L}, 3, 1")
        e.v(f"v_lshl_add_u32 v22, v23, 5, v22")
        e.v(f"v_lshl_add_u32 v22, v22, 4, s{S_T2}")
        e.v(f"v_lshrrev_b32 v23, 4, v{L}")
        e.v(f"v_lshl_add_u32 v{H_G}, v23, 10, v22")
        e.v(f"v_add_u32 v{H_G}, s{S_T0}, v{H_G}")
        e.v(f"v_lshl_add_u32 v{H_OWN}, v23, 11, v22")
        e.v(f"v_add_u32 v{H_OWN}, {self.S3}, v{H_OWN}")
        e.v(f"v_and_b32 v22, 31, v{L}")
        e.v(f"v_lshl_add_u32 v{H_F}, v22, 2, s{S_T1}")
        e.s(f"""s_lshl_b32 s{S_T0}, s{S_B}, 1
s_and_b32 s{S_T1}, s{S_D}, 1
s_add_u32 s{S_T0}, s{S_T0}, s{S_T1}
s_lshl_b32 s{S_T0}, s{S_T0}, 2
s_add_u32 s{S_T0}, s{S_T0}, s{HW}
s_lshl_b32 s{S_T0}, s{S_T0}, 14
s_lshl_b32 s{S_T1}, s{S_BR}, 10
s_add_u32 s{S_T0}, s{S_T0}, s{S_T1}
s_lshr_b32 s{S_T1}, s{S_D}, 1
s_lshl_b32 s{S_T1}, s{S_T1}, 7
s_add_u32 s{S_T0}, s{S_T0}, s{S_T1}""")
        e.v(f"v_lshl_add_u32 v{H_OUT}, v{t}, 11, s{S_T0}")
        e.v(f"v_and_b32 v22, 7, v{L}")
        e.v(f"v_lshl_add_u32 v{H_OUT}, v22, 4, v{H_OUT}")
        e.v(f"v_bfe_u32 v22, v{L}, 2, 1")
        e.v(f"v_lshl_add_u32 v{H_PRM}, v22, 5, v{t}")
        e.v(f"v_and_b32 v22, 1, v{L}")
        e.v(f"v_lshl_add_u32 v{H_PRM}, v22, 4, v{H_PRM}")
        e.v(f"v_bfe_u32 v22, v{L}, 1, 1")
        e.v(f"v_lshl_add_u32 v{H_PRM}, v22, 3, v{H_PRM}")
        e.v(f"v_lshlrev_b32 v{H_PRM}, 2, v{H_PRM}")
        e.v(f"v_and_b32 v{H_T}, 3, v{L}")
        e.v(f"v_lshlrev_b32 v{H_T}, 13, v{H_T}")
        e.v(f"v_add_u32 v{H_T}, {self.XR}, v{H_T}")
        for it in first[nfirst:]: self.issue(it)
        if c["KA"]: e.other("s_waitcnt lgkmcnt(0)"); self.wsoff()
        self.stamp("h", "issued0")
        waited = -1; self.prepolled = False
        if c["trace"]: e.v("v_mov_b32 v46, 0")
        for n, bn in enumerate(self.bars):
            lastneed = max([it["last"] for it in self.items.values() if it["need"] <= n and "last" in it] + [-1])
            assert all("last" in it for it in self.items.values() if it["need"] <= n)
            if lastneed > waited and not c["nodma"]:
                e.vmcnt(self.hseq - 1 - lastneed); waited = lastneed
            if e.pend: e.lgkm(0)
            if bn in ("B1_0", "B1_8", "BK_0", "BK_8", "BK_16", "B3_4", "B3_6"): self.stamp("h", "pre" + bn)
            if not (c["nobar"] and bn.startswith("BK_") and 1 <= int(bn[3:]) <= 15): e.barrier()
            if c["trace"]:
                e.other("s_memrealtime s[94:95]"); e.other("s_waitcnt lgkmcnt(0)")
                e.v(f"v_writelane_b32 v46, s94, {n}")
            if bn == "BX":
                e.ds32(22, H_T)
                e.v("v_cmp_eq_u32 vcc, -1, v22")
                e.s(f"s_cbranch_vccnz L_hslow")
                e.label("L_hgo")
            for it in self.sched[n]: self.issue(it)
            if bn == f"B3_{c['PREPOLL']}" and not c["nodma"]:
                e.bload("buffer_load_dword", 22, 1, H_F, SRD_WS, "0", flags=c["fpoll"])
                self.hseq += 1; self.prepolled = True
            for it in self.items.values():
                if "reg" in it and it["need"] == n:
                    for j in range(4):
                        a = it["lds"] + 1024 * j
                        e.ds_write("ds_write_b128", H_W + (a >> 16), it["reg"] + 4 * j, 4, a & 0xffff)
            if bn == "B1_6":
                e.s("s_branch L_h2"); e.raw(".p2align 12\nL_pg1:\n;@PAGED\n;@MARK"); e.label("L_h2")
        OWNA = H_OWN
        e.s(f"""s_and_b32 s{S_CX}, s{S_D}, 1
s_xor_b32 s{S_CX}, s{S_CX}, 1
s_lshl_b32 s{S_CQ}, s{S_CX}, 1
s_add_u32 s{S_CQ}, s{S_CQ}, 28
s_lshl_b32 s{S_CQ}, 3, s{S_CQ}
s_lshl_b32 s{S_CX}, s{S_CX}, 12
s_add_u32 s{S_CX}, s{S_CX}, {14*4096}""")
        first_acc = [True]
        if c['SENT'] == 0:
            for j in range(8): e.v(f'v_mov_b32 v{H_ACC+j}, 0')
            first_acc[0] = False
        def accum(k):
            dst = H_ACC if first_acc[0] else H_TMP
            for j in range(4):
                e.v(f"v_lshlrev_b32 v{dst+2*j}, 16, v{H_BUF+4*k+j}")
                e.v(f"v_and_b32 v{dst+2*j+1}, 0xffff0000, v{H_BUF+4*k+j}")
            if not first_acc[0]:
                for j in range(4):
                    e.v(f"v_pk_add_f32 v[{H_ACC+2*j}:{H_ACC+2*j+1}], v[{H_ACC+2*j}:{H_ACC+2*j+1}], v[{H_TMP+2*j}:{H_TMP+2*j+1}]")
            first_acc[0] = False
        prev = []
        e.s(f"s_mov_b32 s{S_CNT}, 0")
        def be():
            e.barrier()
            e.ds128(H_BUF + 60, OWNA, 0); e.ds128(H_BUF + 64, OWNA, 1024)
        if c["GLATE"] and not c["GEARLY"]: be()
        if not self.prepolled:
            e.bload("buffer_load_dword", 22, 1, H_F, SRD_WS, "0", flags=c["fpoll"])
        e.vmcnt(0)
        e.v("v_cmp_eq_u32 vcc, 1, v22")
        SENT = c["SENT"]
        rounds = [tuple(i for i in st if i < SENT) for st in c["rounds"]]
        rounds = [st for st in rounds if st] or [()]
        for r, steps in enumerate(rounds):
            fsteps = tuple(steps) + (tuple(range(SENT, 8)) if r == 0 else ())
            mask = sum(15 << (4 * i) for i in fsteps if i < 7)
            e.s(f"s_mov_b32 s{S_CKV}, {mask:#x}")
            if 7 in fsteps: e.s(f"s_or_b32 s{S_CKV}, s{S_CKV}, s{S_CQ}")
            if c["GLATE"] and c["GEARLY"] and steps and steps[0] == c["GEARLY"]: be()
            e.label(f"L_poll{r}")
            e.s(f"s_and_b32 s{S_T0}, vcc_lo, s{S_CKV}\ns_cmp_eq_u32 s{S_T0}, s{S_CKV}\ns_cbranch_scc1 L_got{r}")
            if c["PSLEEP"]: e.other(f"s_sleep {c['PSLEEP']}")
            e.bload("buffer_load_dword", 22, 1, H_F, SRD_WS, "0", flags=c["fpoll"])
            e.s(f"s_add_u32 s{S_CNT}, s{S_CNT}, 1")
            e.vmcnt(0)
            e.v("v_cmp_eq_u32 vcc, 1, v22")
            e.s(f"s_cmp_lt_u32 s{S_CNT}, 0x40000\ns_cbranch_scc1 L_poll{r}")
            e.label(f"L_got{r}"); e.hist = []
            if 0 in steps or 3 in steps or 5 in steps or 7 in steps: self.stamp("h", f"got{r}")
            for i in steps:
                for p in range(1 if i == 7 else 2):
                    k = 2 * i + p
                    if i == 7: so = f"s{S_CX}"
                    elif k == 0: so = "0"
                    else:
                        e.s(f"s_mov_b32 s{S_T0}, {k*4096}"); so = f"s{S_T0}"
                    e.bload("buffer_load_dwordx4", H_BUF + 4 * k, 4, H_G, SRD_WS, so, flags=c["fgat"])
                    prev.append(k)
        def own():
            if c["GLATE"]: return
            e.barrier()
            e.ds128(H_BUF + 60, OWNA, 0); e.ds128(H_BUF + 64, OWNA, 1024)
        def ownadd():
            for j in range(4):
                e.v(f"v_pk_add_f32 v[{H_ACC+2*j}:{H_ACC+2*j+1}], v[{H_ACC+2*j}:{H_ACC+2*j+1}], v[{H_BUF+60+2*j}:{H_BUF+61+2*j}]")
        if SENT > 7:
            nearly = len(prev) - 3
            for n, k in enumerate(prev[:nearly]):
                e.vmcnt(len(prev) - 1 - n); accum(k)
            prev = prev[nearly:]
            own(); ownadd()
            for n, k in enumerate(prev):
                e.vmcnt(len(prev) - 1 - n); accum(k)
        else:
            own()
            self.stamp("h", "BE")
            for n, k in enumerate(prev):
                e.vmcnt(len(prev) - 1 - n); accum(k)
            ownadd()
            ks = [2 * i + p for i in range(SENT, 8) for p in range(1 if i == 7 else 2)]
            e.s(f"s_mov_b32 s{S_CNT}, 0")
            for k in ks:
                e.label(f"L_si{k}"); e.hist = []
                if k == 14: so = f"s{S_CX}"
                else:
                    e.s(f"s_mov_b32 s{S_T0}, {k*4096}"); so = f"s{S_T0}"
                e.bload("buffer_load_dwordx4", H_BUF + 4 * k, 4, H_G, SRD_WS, so, flags=c["fgat"])
            e.s(f"s_add_u32 s{S_CNT}, s{S_CNT}, 1\ns_cmp_ge_u32 s{S_CNT}, 0x40000\ns_cbranch_scc1 L_sdone")
            e.vmcnt(0)
            for k in ks:
                b = H_BUF + 4 * k
                e.v(f"v_max3_u32 v22, v{b}, v{b+1}, v{b+2}")
                e.v(f"v_max_u32 v22, v22, v{b+3}")
                e.v("v_cmp_eq_u32 vcc, -1, v22")
                e.s(f"s_cbranch_vccz L_sok{k}")
                if c["RSLEEP"]: e.other(f"s_sleep {c['RSLEEP']}")
                e.s(f"s_branch L_si{k}")
                e.label(f"L_sok{k}")
            e.label("L_sdone"); e.hist = []
            e.vmcnt(0)
            self.stamp("h", "sent")
            for k in ks: accum(k)
        for j in range(4): e.v(f"v_cvt_pk_bf16_f32 v{H_TMP+j}, v{H_ACC+2*j}, v{H_ACC+2*j+1}")
        for j in range(4):
            e.emit(Ins(f"ds_bpermute_b32 v{H_TMP+4+j}, v{H_PRM}, v{H_TMP+j}", "ds", rd=R(H_PRM) | R(H_TMP + j), wr=R(H_TMP + 4 + j)))
            e.pend.append(R(H_TMP + 4 + j))
        e.bstore("buffer_store_dwordx4", H_TMP + 4, 4, H_OUT, SRD_OUT, "0", flags=c["fout"])
        self.stamp("h", "stored")
        if c["stamp"]:
            e.vmcnt(0); self.stamp("h", "end")
        self.write_stamps("h")
        e.other("s_endpgm")
        e.label("L_hslow"); e.hist = []
        e.barrier()
        e.barrier()
        e.s("s_branch L_hgo")

    def karg2(self, who):
        e = self.e
        if self.c["KA"]:
            for srd, off in (((SRD_K, 8), (SRD_V, 16), (SRD_WO, 32)) if (self.c["KA"] == 1 or who == "c") else ((SRD_WO, 32),)):
                e.other(f"s_load_dwordx2 s[{srd}:{srd+1}], s[56:57], {off}")
            for srd, off in ((SRD_OUT, 80), (SRD_DBG, 88), (SRD_WS, 96)):
                if who == "c" or srd != SRD_DBG: e.other(f"s_load_dwordx2 s[{srd}:{srd+1}], s[0:1], {off}")

    def wsoff(self):
        if self.c["wsoff"]:
            self.e.s(f"s_add_u32 s{SRD_WS}, s{SRD_WS}, {self.c['wsoff'] << 20}\ns_addc_u32 s{SRD_WS+1}, s{SRD_WS+1}, 0")

    def issue(self, it):
        e, c = self.e, self.c
        n = it["name"]; k = n[0]
        if c["nodma"]:
            cnt = 0
        elif k == "x":
            e.s(f"s_add_u32 m0, s{S_M2}, {it['lds']}")
            e.dma(H_X, SRD_X, f"s{S_CX}", 0, c["fx"]); e.dma(H_X + 1, SRD_X, f"s{S_CX}", 1024, c["fx"])
            if n != "x7": e.s(f"s_add_u32 s{S_CX}, s{S_CX}, 128\ns_and_b32 s{S_CX}, s{S_CX}, 0x3ff")
            cnt = 2
        elif k == "q":
            e.s(f"s_add_u32 m0, s{S_M4}, {it['lds']}")
            for j in range(4): e.dma(H_Q + j, SRD_WQ, f"s{S_CQ}", 1024 * j, c["fq"])
            if n != "q15": e.s(f"s_add_u32 s{S_CQ}, s{S_CQ}, 0x40000\ns_and_b32 s{S_CQ}, s{S_CQ}, 0x3fffff")
            cnt = 4
        elif k in "kv":
            j = int(n[1:])
            e.s(f"s_add_u32 m0, s{S_M2}, {it['lds']}")
            sreg = S_KP
            if c["kvalt"]:
                d = c["kvalt"] & 3
                sreg = S_KE if j < d else (S_KF if j >= 16 - d else (S_KP if j % (2 * d) < d else S_KQ))
            e.s(f"s_add_u32 s{S_CKV}, s{sreg}, {j*8192}\ns_and_b32 s{S_CKV}, s{S_CKV}, 0x1ffff")
            if k == "k":
                e.dma(H_K, SRD_K, f"s{S_CKV}", 0, c["fk"]); e.dma(H_K + 1, SRD_K, f"s{S_CKV}", 1024, c["fk"])
            else:
                e.dma(H_V, SRD_V, f"s{S_CKV}", 0, c["fv"]); e.dma(H_V, SRD_V, f"s{S_CKV}", 1024, c["fv"])
            cnt = 2
        else:
            if "reg" not in it: e.s(f"s_add_u32 m0, s{S_M4}, {it['lds']}")
            if n[2] == "a":
                e.s(f"s_add_u32 s{S_CO}, s{S_R3}, {n[1]}\ns_and_b32 s{S_CO}, s{S_CO}, 7\ns_lshl_b32 s{S_CO}, s{S_CO}, 7")
            else: e.s(f"s_add_u32 s{S_CO}, s{S_CO}, 0x20000")
            for j in range(4):
                if "reg" in it: e.bload("buffer_load_dwordx4", it["reg"] + 4 * j, 4, H_O + j, SRD_WO, f"s{S_CO}", 1024 * j, c["fo"])
                else:
                    if c["PACE3"] is not None and int(n[1]) >= 3: e.vmcnt(c["PACE3"])
                    e.dma(H_O + j, SRD_WO, f"s{S_CO}", 1024 * j, c["fo"])
            cnt = 4
        self.hseq += cnt
        it["last"] = self.hseq - 1

    def wave0_only(self, fn, tag, sreg=S_WAVE):
        e = self.e
        e.s(f"s_cmp_lg_u32 s{sreg}, 0\ns_cbranch_scc1 L_w0_{tag}")
        h0 = len(e.out); mark = list(e.hist)
        fn()
        blk = [i for i in e.hist if i not in mark]
        for i in blk: i.states = 0
        e.label(f"L_w0_{tag}")

    def compute_setup(self):
        e, c = self.e, self.c
        L = V_LANE
        if c["prio_c"]: e.other(f"s_setprio {c['prio_c']}")
        if c["KA"] == 1: self.karg2("c")
        if c["l2pf"]:
            e.other("s_getpc_b64 s[92:93]")
            e.s(f"s_and_b32 s92, s92, 0xfffff000\ns_mov_b32 s94, L_end-L_pg1+4096\ns_mov_b32 s95, 0x20000\ns_lshr_b32 s{S_T0}, s2, 3\ns_lshl_b32 s{S_T0}, s{S_T0}, 10")
            e.v(f"v_lshlrev_b32 v48, 7, v{L}")
            e.v(f"v_lshrrev_b32 v49, 3, v{L}")
            e.v(f"v_lshl_or_b32 v48, v49, 28, v48")
            self.wave0_only(lambda: e.bload("buffer_load_dword", 242, 1, 48, 92, f"s{S_T0}"), "pf")
        MB, HH = S_T0, S_T1
        e.s(f"s_and_b32 s{MB}, s{S_WAVE}, 1\ns_lshr_b32 s{HH}, s{S_WAVE}, 1")
        h, rr, g, c0, c1, l32, a, b = 48, 49, 50, 51, 52, 53, 54, 55
        e.v(f"v_lshrrev_b32 v{h}, 5, v{L}")
        e.v(f"v_bfe_u32 v{rr}, v{L}, 2, 2")
        e.v(f"v_bfe_u32 v{g}, v{L}, 4, 1")
        e.v(f"v_and_b32 v{c0}, 1, v{L}")
        e.v(f"v_bfe_u32 v{c1}, v{L}, 1, 1")
        e.v(f"v_and_b32 v{l32}, 31, v{L}")
        e.v(f"v_lshl_add_u32 v{a}, v{h}, 3, v{rr}")
        e.v(f"v_lshlrev_b32 v{a}, 9, v{a}")
        e.s(f"s_lshl_b32 s{S_T2}, s{HH}, 8")
        e.v(f"v_lshl_add_u32 v{a}, v{g}, 5, v{a}")
        e.v(f"v_lshl_add_u32 v{a}, v{c0}, 4, v{a}")
        e.v(f"v_lshl_add_u32 v{a}, v{c1}, 3, v{a}")
        e.v(f"v_add_u32 v{a}, s{S_T2}, v{a}")
        e.v(f"v_lshl_add_u32 v{A_WQ}, v{rr}, 6, v{a}")
        for t in range(1, 4): e.v(f"v_xor_b32 v{A_WQ+t}, {t<<6}, v{A_WQ}")
        for t in range(4): e.v(f"v_add_u32 v{A_WQ+4+t}, 0x10000, v{A_WQ+t}")
        e.s(f"s_lshl_b32 s{S_T2}, s{MB}, 12\ns_add_u32 s{S_T2}, s{S_T2}, {KR}")
        e.v(f"v_lshl_add_u32 v{a}, v{l32}, 7, s{S_T2}")
        e.v(f"v_bfe_u32 v{b}, v{L}, 1, 3")
        e.v(f"v_xor_b32 v{b}, v{b}, v{h}")
        e.v(f"v_lshl_add_u32 v{A_X}, v{b}, 4, v{a}")
        for s in range(1, 4): e.v(f"v_xor_b32 v{A_X+s}, {s<<5}, v{A_X}")
        e.v(f"v_lshlrev_b32 v{a}, 8, v{l32}")
        e.v(f"v_add_u32 v{a}, {KR}, v{a}")
        e.v(f"v_and_b32 v{b}, 15, v{L}")
        e.v(f"v_xor_b32 v{b}, v{b}, v{h}")
        e.v(f"v_lshl_add_u32 v{A_K}, v{b}, 4, v{a}")
        for s in range(1, 8): e.v(f"v_xor_b32 v{A_K+s}, {s<<5}, v{A_K}")
        e.v(f"v_lshl_add_u32 v{a}, v{h}, 2, v{rr}")
        e.v(f"v_lshlrev_b32 v{b}, 8, v{a}")
        e.v(f"v_add_u32 v{b}, {VR}, v{b}")
        e.v(f"v_lshl_add_u32 v{b}, v{g}, 5, v{b}")
        e.v(f"v_lshl_add_u32 v{b}, v{c1}, 4, v{b}")
        e.v(f"v_lshl_add_u32 v{b}, v{c0}, 3, v{b}")
        e.v(f"v_lshl_add_u32 v{A_V}, v{rr}, 6, v{b}")
        for t in range(1, 4): e.v(f"v_xor_b32 v{A_V+t}, {t<<6}, v{A_V}")
        e.v(f"v_lshlrev_b32 v{a}, 7, v{a}")
        e.v(f"v_lshl_add_u32 v{a}, v{c0}, 5, v{a}")
        e.v(f"v_lshl_add_u32 v{a}, v{g}, 4, v{a}")
        e.v(f"v_lshl_add_u32 v{a}, v{c1}, 3, v{a}")
        e.v(f"v_lshrrev_b32 v{b}, 1, v{rr}")
        e.v(f"v_xor_b32 v{b}, s{HH}, v{b}")
        e.v(f"v_lshl_add_u32 v{a}, v{b}, 6, v{a}")
        e.s(f"s_lshl_b32 s{S_T2}, s{HH}, 14")
        e.v(f"v_add_u32 v{A_WO}, s{S_T2}, v{a}")
        e.v(f"v_xor_b32 v{A_WO+1}, 0x4000, v{A_WO}")
        for w in (1, 2):
            e.v(f"v_add_u32 v{A_WO+2*w}, {w*0x10000}, v{A_WO}")
            e.v(f"v_add_u32 v{A_WO+2*w+1}, {w*0x10000}, v{A_WO+1}")
        if c["KA"] >= 2: self.karg2("c")
        e.s(f"s_lshl_b32 s{S_T2}, s{S_WAVE}, 13\ns_add_u32 s{S_T2}, s{S_T2}, {self.XR}")
        e.v(f"v_lshl_add_u32 v{V_XW}, v{L}, 4, s{S_T2}")
        e.v(f"v_xor_b32 v{V_XR}, 0x4000, v{V_XW}")
        e.s(f"""s_lshl_b32 s{S_T2}, s{S_GRP}, 20
s_lshl_b32 s{S_T3}, s{MB}, 16
s_add_u32 s{S_T2}, s{S_T2}, s{S_T3}
s_and_b32 s{S_T3}, s{S_D}, 1
s_lshl_b32 s{S_T3}, s{S_T3}, 12
s_add_u32 s{S_T2}, s{S_T2}, s{S_T3}
s_lshl_b32 s{S_T3}, s{HH}, 11
s_add_u32 s{S_T2}, s{S_T2}, s{S_T3}""")
        e.v(f"v_lshl_add_u32 v{V_PUB}, v{L}, 4, s{S_T2}")
        e.s(f"""s_lshl_b32 s{S_T2}, s{S_GRP}, 4
s_add_u32 s{S_T2}, s{S_T2}, s{MB}
s_lshl_b32 s{S_T2}, s{S_T2}, 5
s_and_b32 s{S_T3}, s{S_D}, 1
s_lshl_b32 s{S_T3}, s{S_T3}, 1
s_add_u32 s{S_T2}, s{S_T2}, s{S_T3}
s_add_u32 s{S_T2}, s{S_T2}, s{HH}
s_lshl_b32 s{S_T2}, s{S_T2}, 2
s_add_u32 s{S_T2}, s{S_T2}, {WS_F}""")
        e.v(f"v_min_u32 v{a}, 1, v{L}")
        e.v(f"v_lshlrev_b32 v{a}, 31, v{a}")
        e.v(f"v_add_u32 v{V_FLG}, s{S_T2}, v{a}")
        e.s(f"s_lshl_b32 s{S_T2}, s{S_GRP}, 4")
        e.v(f"v_add_u32 v{V_RDY}, s{S_T2}, v{a}")
        e.v(f"v_mov_b32 v{V_ONE}, 1")
        for r in range(4): e.v(f"v_mov_b32 v{V_M1+r}, -1")
        e.v(f"v_mov_b32 v{V_L0}, 0"); e.v(f"v_mov_b32 v{V_L1}, 0")
        for r in range(4 if c["CZ"] else 16): e.v(f"v_mov_b32 v{CT+r}, 0")
        sc = f2u(math.log2(math.e) / math.sqrt(128.0))
        e.s(f"s_mov_b32 s{S_SC}, {sc:#x}\ns_mov_b32 s{S_SC+1}, {sc:#x}\ns_mov_b32 s{S_FIN}, 0")
        e.s(f"""s_lshl_b32 s{S_T2}, s{S_GRP}, 11
s_add_u32 s{S_T2}, s{S_T2}, {WS_F}
s_or_b32 s{S_CLR}, s{S_WAVE}, s{S_HP}""")
        e.v(f"v_lshl_add_u32 v{T0}, v{L}, 4, s{S_T2}")
        e.other("s_waitcnt lgkmcnt(0)")
        self.wsoff()
        def clr():
            e.bstore("buffer_store_dwordx4", CT, 4, T0, SRD_WS, "0", flags="sc1")
            e.bstore("buffer_store_dwordx4", CT, 4, T0, SRD_WS, "0", 1024, flags="sc1")
        self.wave0_only(clr, "clr", S_CLR)
        if c["tlbpf"]:
            def tl():
                e.s(f"""s_lshr_b32 s{S_T2}, s{S_HP}, 1
s_lshl_b32 s{S_T3}, s{S_B}, 3
s_add_u32 s{S_T2}, s{S_T2}, s{S_T3}
s_lshl_b32 s{S_T2}, s{S_T2}, 17
s_lshl_b32 s{S_T3}, s{S_HP}, 18""")
                e.v(f"v_min_u32 v{T0+1}, 1, v{L}")
                e.v(f"v_lshlrev_b32 v{T0+1}, 31, v{T0+1}")
                e.bload("buffer_load_dword", 243, 1, T0 + 1, SRD_K, f"s{S_T2}")
                e.bload("buffer_load_dword", 243, 1, T0 + 1, SRD_V, f"s{S_T2}")
                e.bload("buffer_load_dword", 243, 1, T0 + 1, SRD_WO, f"s{S_T3}")
                e.s(f"s_lshl_b32 s{S_T2}, s{S_GRP}, 20\ns_lshl_b32 s{S_T3}, s{S_B}, 17")
                e.bload("buffer_load_dword", 243, 1, T0 + 1, SRD_WS, f"s{S_T2}")
                e.bload("buffer_load_dword", 243, 1, T0 + 1, SRD_OUT, f"s{S_T3}")
                e.s(f"s_mov_b32 s{S_T2}, {WS_F + 0x10000}")
                e.bload("buffer_load_dword", 243, 1, T0 + 1, SRD_WS, f"s{S_T2}")
            e.s(f"s_xor_b32 s{S_CNT}, s{S_WAVE}, 1")
            self.wave0_only(tl, "tlb", S_CNT)

    def dump(self, base, n, tag):
        e = self.e
        e.nop(12)
        e.s(f"s_lshl_b32 s{S_T0}, s2, 2\ns_add_u32 s{S_T0}, s{S_T0}, s{S_WAVE}\ns_mul_i32 s{S_T0}, s{S_T0}, {n*256}\ns_add_u32 s{S_T0}, s{S_T0}, {18<<20}")
        e.v(f"v_lshlrev_b32 v{T0+1}, 2, v{V_LANE}")
        for r in range(n):
            if r and r % 16 == 0: e.s(f"s_add_u32 s{S_T0}, s{S_T0}, 4096")
            e.bstore("buffer_store_dword", base + r, 1, T0 + 1, SRD_WS, f"s{S_T0}", (r % 16) * 256)
        e.vmcnt(0)

    def run_mfmas(self, M, fill, W, pre=None, ph=0):
        e = self.e
        for g, (d, a, b, cc) in enumerate(M):
            for f in (pre or {}).get(g, []): f()
            if W > 1 and g % W == 0:
                regs = R(b, 4)
                for k in range(g, min(g + W, len(M))): regs = regs | R(M[k][1], 4)
                e.wait_regs(regs)
            if any(ph == p and a0 <= g < a1 and g % m == m - 1 for p, a0, a1, m in self.c["skip"]) and cc is not None: e.wait_regs(R(a, 4) | R(b, 4)); e.nop(6)
            else: e.mfma(d, a, b, cc)
            for f in fill.get(g, []): f()

    def place(self, reads, bar, n, LEAD):
        e = self.e
        fill = {}; head = []
        for g in range(n):
            ops = []
            if g in bar:
                def fb(nm=bar[g]):
                    if nm in ("B1_0", "B1_8", "BK_1", "BK_8", "BK_16", "B3_2", "B3_4", "B3_6"): self.stamp("c", "pre" + nm)
                    if not (self.c["nobar"] and nm.startswith("BK_") and 1 <= int(nm[3:]) <= 15): e.barrier()
                    if nm in ("B1_0", "BK_0"): self.stamp("c", "post" + nm)
                ops.append(fb)
            ops += reads.get(g, [])
            if g < LEAD: head += ops
            else: fill.setdefault(g - LEAD, []).extend(ops)
        return fill, head

    def compute(self):
        e, c = self.e, self.c
        NF = c["NF"]
        e.raw(".p2align 12\n;@PAGED")
        e.label("L_compute"); e.hist = []
        self.stamp("c", "setup")
        for n in range(c["warm"]):
            e.mfma(SS, A_WQ, A_K, None if n == 0 else SS)
            if c["warmd"]: e.nop(c["warmd"])
        fr = lambda g: FR + 4 * (g % NF)
        def spread(fill, ops, g0, per):
            for n, f in enumerate(ops): fill.setdefault(g0 + n // per, []).append(f)
        M = []; reads = {}; bar = {}
        for kt in range(16):
            slot = self.items[f"q{kt}"]["lds"]
            win, so = (0, slot) if slot < 65536 else (4, slot - 65536)
            seq1 = [(s2, t) for s2 in range(2) for t in range(4)]
            if kt == 15 and c["QT"]: seq1 = [(s2, t) for t in range(4) for s2 in range(2)]
            for s2, t in seq1:
                st = kt * 2 + s2
                xb = XB + 4 * (st % 3)
                g = len(M)
                M.append((ACC + 16 * t, fr(g), xb, None if st == 0 else ACC + 16 * t))
                rl = []
                if t == 0:
                    xo = self.items[f"x{kt//2}"]["lds"] - KR
                    rl.append(lambda xb=xb, s=st % 4, xo=xo: e.ds128(xb, A_X + s, xo))
                o = so + s2 * 8192
                rl.append(lambda d=fr(g), t=t, o=o, win=win: e.dstr(d, A_WQ + win + t, o))
                rl.append(lambda d=fr(g), t=t, o=o, win=win: e.dstr(d + 2, A_WQ + win + t, o + 2048))
                reads[g] = rl
            bar[kt * 8] = f"B1_{kt}"
        fill, head = self.place(reads, bar, len(M), c["L1"])
        if c["TPOS"] < 0: e.raw(";@TOUCH2")
        else: fill.setdefault(8 * c["TPOS"], []).append(lambda: e.raw(";@TOUCH2"))
        def arrive():
            e.vmcnt(0)
            e.bstore("buffer_store_dword", V_ONE, 1, V_RDY, SRD_DBG, "0", flags="sc1")
        fill.setdefault(41, []).append(lambda: self.wave0_only(arrive, "arr", S_CLR))
        def qscale(t, pk):
            ops = []
            for k in range(8):
                r = ACC + 16 * t + 2 * k
                if pk: ops.append(lambda r=r: e.v(f"v_pk_mul_f32 v[{r}:{r+1}], v[{r}:{r+1}], s[{S_SC}:{S_SC+1}]"))
                else: ops += [lambda r=r: e.v(f"v_mul_f32 v{r}, s{S_SC}, v{r}"), lambda r=r: e.v(f"v_mul_f32 v{r+1}, s{S_SC}, v{r+1}")]
            for k in range(8):
                r = ACC + 16 * t + 2 * k
                ops.append(lambda r=r, k=k: e.v(f"v_cvt_pk_bf16_f32 v{QP+8*t+k}, v{r}, v{r+1}"))
            return ops
        if c["QT"] and c["dump"] != "q":
            q0 = qscale(0, False)
            spread(fill, q0[:5], 124, 5); spread(fill, q0[5:11], 125, 6); spread(fill, q0[11:17], 126, 6); spread(fill, q0[17:], 127, 7)
        for f in head: f()
        self.run_mfmas(M, fill, c["W1"], ph=1)
        self.stamp("c", "P1end")
        M = []; reads = {}; bar = {}
        def addQK(j):
            bar[len(M)] = f"BK_{j}"
            so = self.items[f"k{j}"]["lds"] - KR
            for s in range(8):
                g = len(M); S = SS + 16 * (j % 2)
                M.append((S, fr(g), QP + 4 * s, (None if c['CZ'] else CT) if s == 0 else S))
                reads[g] = [lambda d=fr(g), s=s, so=so: e.ds128(d, A_K + s, so)]
        def addPV(j):
            so = self.items[f"v{j}"]["lds"] - VR
            for u in range(2):
                for t in range(4):
                    g = len(M)
                    M.append((ACC + 16 * t, fr(g), PP + 4 * u, None if (j == 0 and u == 0) else ACC + 16 * t))
                    o = so + u * 4096
                    reads[g] = [lambda d=fr(g), t=t, o=o: e.dstr(d, A_V + t, o),
                                lambda d=fr(g), t=t, o=o: e.dstr(d + 2, A_V + t, o + 2048)]
        addQK(0)
        for j in range(15): addQK(j + 1); addPV(j)
        bar[len(M)] = "BK_16"
        addPV(15)
        fill, head = self.place(reads, bar, len(M), c["L2"])
        def ex(j, r): return lambda: e.v(f"v_exp_f32 v{SS+16*(j%2)+r}, v{SS+16*(j%2)+r}")
        def cv(j, k): return lambda: e.v(f"v_cvt_pk_bf16_f32 v{PP+k}, v{SS+16*(j%2)+2*k}, v{SS+16*(j%2)+2*k+1}")
        def ad(j, r): return lambda: e.v(f"v_add_f32 v{V_L0+(r%2)}, v{V_L0+(r%2)}, v{SS+16*(j%2)+r}")
        def put(j, g, spec):
            front = []
            for tok in spec.split():
                first = tok[0] == "<"
                if first: tok = tok[1:]
                f = {"e": ex, "c": cv, "a": ad}[tok[0]](j, int(tok[1:]))
                if first: front.append(f)
                else: fill.setdefault(g, []).append(f)
            fill[g] = front + fill.get(g, [])
        TAB = c["tab"] or {-5: "e0", -4: "e1 e2", -3: "e3 e4 c0", -2: "e5 e6 c1", -1: "e7 c2 a0", 0: "e8 e9 c3", 1: "e10 c4",
                           2: "e11 a1 a2", 3: "e12 c5", 4: "e13 a3 a4", 5: "e14 c6 a5", 6: "e15 a6 a7", 7: "c7 a8",
                           8: "a9 a10 a11", 9: "a12 a13", 10: "a14 a15"}
        TAB0 = {1: "e0", 2: "e1 e2 e3", 3: "e4 e5 c0", 4: "e6 e7 c1", 5: "e8 c2 c3", 6: "e9 e10 c4", 7: "e11 e12", 8: "e13 e14 c5",
                9: "e15 c6 a0", 10: "c7 a1 a2 a3 a4", 11: "a5 a6 a7", 12: "a8 a9", 13: "a10 a11", 14: "a12 a13", 15: "a14 a15"}
        neg = " ".join(v for k, v in TAB.items() if k < 0).split()
        rest = [t for t in " ".join(v for k, v in TAB.items() if k >= 0).split()]
        for j in range(15):
            for k, sp in (TAB0 if j == 0 else TAB).items(): put(j, 8 + 16 * j + k, sp)
        g0 = 8 + 16 * 15
        for k, sp in TAB.items():
            if k < 0: put(15, g0 + k, sp)
        assert "c3" in rest and "e7" in neg and "e8" in rest
        put(15, g0 - 1, "c3")
        adds = [t for t in rest if t[0] == "a"]
        for k, sp in enumerate(["e8 e9 " + adds[0], "e10 e11 c4 " + adds[1], "e12 e13 c5 " + adds[2], "<e14 <e15 <c6 <c7 " + adds[3],
                                " ".join(adds[4:10]), " ".join(adds[10:])]):
            put(15, g0 + k, sp)
        l, t1, t2, RC = V_L0, T0, T0 + 1, T0 + 3
        def lchain():
            e.v(f"v_add_f32 v{l}, v{V_L0}, v{V_L1}")
            e.v(f"v_mov_b32 v{t1}, v{l}")
            e.s(f"s_mov_b32 s{S_T0}, {f2u(2.0**-24):#x}\ns_mov_b32 s{S_T1}, {f2u(2.0**24):#x}")
            e.v(f"v_permlane32_swap_b32 v{l}, v{t1}")
            e.v(f"v_add_f32 v{l}, v{l}, v{t1}")
            e.v(f"v_rcp_f32 v{RC}, v{l}")
            e.v(f"v_cmp_nle_f32 vcc, s{S_T0}, v{l}")
            e.v(f"v_cmp_nge_f32 s[56:57], s{S_T1}, v{l}")
        self.lchain = lchain
        if c["LCH"]: fill.setdefault(g0 + 6, []).append(lchain)
        def rdyload(): e.bload("buffer_load_dword", T0 + 2, 1, V_RDY, SRD_DBG, "0", flags="sc1")
        def rdy():
            e.label("L_rdy"); e.vmcnt(0)
            e.v(f"v_readfirstlane_b32 s{S_T0}, v{T0+2}")
            e.s(f"s_cmp_eq_u32 s{S_T0}, 1\ns_cbranch_scc1 L_rdyok")
            e.bload("buffer_load_dword", T0 + 2, 1, V_RDY, SRD_DBG, "0", flags="sc1")
            e.s(f"s_add_u32 s{S_CNT}, s{S_CNT}, 1\ns_cmp_lt_u32 s{S_CNT}, 0x40000\ns_cbranch_scc1 L_rdy")
            e.label("L_rdyok")
        SENT = c["SENT"]
        J0 = 8 + 16 * c["CLRJ"]; J1 = 8 + 16 * c["CLRF"]
        fill.setdefault(8 + 10, []).append(lambda: self.wave0_only(rdyload, "rl"))
        def rdychk():
            e.s(f"s_mov_b32 s{S_CNT}, 0"); self.wave0_only(rdy, "rdy")
        gb = J1 - 16 + 16 - c["L2"]
        fill[gb] = [rdychk] + fill.get(gb, [])
        def so_pub(i):
            e.s(f"s_add_u32 s{S_T0}, s{S_R3}, {i}\ns_and_b32 s{S_T0}, s{S_T0}, 7\ns_lshl_b32 s{S_T1}, s{S_T0}, 17")
            if i: e.s(f"s_add_u32 s{S_T1}, s{S_T1}, {i*8192}")
        def so_flag(i):
            e.s(f"s_add_u32 s{S_T2}, s{S_R3}, {i}\ns_and_b32 s{S_T2}, s{S_T2}, 7\ns_lshl_b32 s{S_T2}, s{S_T2}, 8")
        for n, i in enumerate(range(SENT, 8)):
            if not c["noclear"]:
                fill.setdefault(J0 + 16 * (n // 2) + 9 + 2 * (n % 2), []).append(lambda i=i: so_pub(i))
                for q in range(2):
                    fill.setdefault(J0 + 16 * (n // 2) + 10 + 2 * (n % 2) + 0 * q, []).append(
                        lambda q=q: e.bstore("buffer_store_dwordx4", V_M1, 4, V_PUB, SRD_WS, f"s{S_T1}", 1024 * q, flags=c["fpub"]))
            def fl(i=i, n=n):
                so_flag(i)
                if n == 0: e.vmcnt(0)
                e.bstore("buffer_store_dword", V_ONE, 1, V_FLG, SRD_WS, f"s{S_T2}", 16 * i, flags=c["fflag"])
            fill.setdefault(J1 + 16 * (n // 2) + 9 + (n % 2), []).append(fl)
        if c["dump"] == "q":
            for f in qscale(0, True): f()
            for f in head: f()
            for f in qscale(1, True) + qscale(2, True) + qscale(3, True): f()
            self.dump(QP, 32, "q")
        elif c["QT"]:
            for f in head: f()
            for f in qscale(1, True): f()
            if c["QT"] == 2:
                for f in qscale(2, True): f()
                spread(fill, qscale(3, False), 0, 5)
            else:
                spread(fill, qscale(2, False), 0, 7)
                spread(fill, qscale(3, False)[:12], 3, 4); spread(fill, qscale(3, False)[12:], 4, 6)
        else:
            for f in qscale(0, True): f()
            for f in head: f()
            for f in qscale(1, True): f()
            spread(fill, qscale(2, False), 0, 7)
            spread(fill, qscale(3, False)[:12], 3, 4); spread(fill, qscale(3, False)[12:], 4, 6)
        self.stamp("c", "P2start")
        self.run_mfmas(M, fill, c["W2"], ph=2)
        self.stamp("c", "P2end")
        AC = lambda i: (AC3A, AC3B)[i % 2]
        M = []; reads = {}; bar = {}; done = {}
        seq = [(0, 0), (1, 0), (0, 1), (1, 1)] + [(i, hs) for i in range(2, 8) for hs in range(2)]
        for i, hs in seq:
            slot = self.WOSLOT[i]; win = slot >> 16; so = slot & 0xffff
            if hs == 0 and 2 <= i <= c["NB3"]: bar[len(M)] = f"B3_{i}"
            for k in range(8):
                g = len(M)
                M.append((AC(i), fr(g), (OWN if hs == 0 else OTH) + 4 * k, None if (hs == 0 and k == 0) else AC(i)))
                o = so + k * 2048
                reads[g] = [lambda d=fr(g), o=o, a=A_WO + 2 * win + hs: e.dstr(d, a, o),
                            lambda d=fr(g), o=o, a=A_WO + 2 * win + hs: e.dstr(d + 2, a, o + 1024)]
            if hs == 1: done[i] = len(M) - 1
        L3 = c["L3"]
        fill, head = self.place(reads, bar, len(M), L3)
        e.lgkm(0)
        if c["B17"]: e.barrier()
        e.label("L_norm")
        self.stamp("c", "n_17")
        if not c["LCH"]: lchain()
        for f in head[:8]: f()
        for gg in (0, 3, 7, 15): fill.setdefault(gg, []).insert(0, lambda gg=gg: self.stamp("c", f"n_m{gg}"))
        def onorm(t, pk):
            ops = []
            for k in range(8):
                r = ACC + 16 * t + 2 * k
                if pk: ops.append(lambda r=r: e.v(f"v_pk_mul_f32 v[{r}:{r+1}], v[{r}:{r+1}], v[{RC-1}:{RC}] op_sel:[0,1] op_sel_hi:[1,1]"))
                else: ops += [lambda r=r: e.v(f"v_mul_f32 v{r}, v{RC}, v{r}"), lambda r=r: e.v(f"v_mul_f32 v{r+1}, v{RC}, v{r+1}")]
            for k in range(8):
                r = ACC + 16 * t + 2 * k
                ops.append(lambda r=r, k=k: e.v(f"v_cvt_pk_bf16_f32 v{OWN+8*t+k}, v{r}, v{r+1}"))
            return ops
        wr = lambda k: (lambda: e.ds_write("ds_write_b128", V_XW, OWN + 4 * k, 4, 1024 * k))
        for f in onorm(0, True): f()
        e.s(f"s_or_b64 vcc, vcc, s[56:57]\ns_cmp_lg_u32 s{S_FIN}, 0\ns_cbranch_scc1 L_novote\ns_cbranch_vccz L_novote")
        mark = list(e.hist)
        e.v(f"v_mov_b32 v{OWN}, -1")
        for i in e.hist:
            if i not in mark: i.states = 0
        e.label("L_novote")
        for f in head[8:]: f()
        if c["dump"] == "o":
            wr(0)(); wr(1)()
            for t in (1, 2, 3):
                for f in onorm(t, True): f()
            self.dump(OWN, 32, "o")
            for k in range(2, 8): wr(k)()
        else:
            if c["NORMV"] == 0:
                wr(0)(); wr(1)()
                for f in onorm(1, True): f()
                for t in (2, 3):
                    ops = onorm(t, False)
                    spread(fill, [wr(2 * t - 2)] + ops[:12], 2 * t - 4, 13); spread(fill, [wr(2 * t - 1)] + ops[12:], 2 * t - 3, 13)
                fill.setdefault(4, []).append(wr(6)); fill.setdefault(5, []).append(wr(7))
            else:
                for t in (1, 2, 3):
                    ops = onorm(t, False)
                    spread(fill, [wr(2 * t - 2)] + ops[:12], 2 * t - 2, 13); spread(fill, [wr(2 * t - 1)] + ops[12:], 2 * t - 1, 13)
                fill.setdefault(6, []).append(wr(6)); fill.setdefault(7, []).append(wr(7))
        def bx():
            e.v(f"v_and_b32 v{t1}, 3, v{V_LANE}")
            e.v(f"v_lshlrev_b32 v{t1}, 13, v{t1}")
            e.v(f"v_add_u32 v{t1}, {self.XR}, v{t1}")
            nw = max(n for n, p in enumerate(e.pend) if not p) if any(not p for p in e.pend) else -1
            if nw >= 0: e.lgkm(len(e.pend) - 1 - nw)
            self.stamp("c", "preBX")
            e.barrier()
            self.stamp("c", "postBX")
            e.ds32(t2, t1)
        GX = c["GX"]
        fill[GX] = [bx] + fill.get(GX, [])
        for k in range(8):
            fill.setdefault(GX + k // 2 if c["BY"] else min(GX + k, 11 + k), []).append(lambda k=k: e.ds128(OTH + 4 * k, V_XR, 1024 * k))
        if c["BY"]:
            def by():
                e.wait_regs(R(OTH, 32)); e.barrier()
            fill[GX + 6] = [by] + fill.get(GX + 6, [])
        def vote():
            e.v(f"v_cmp_eq_u32 vcc, -1, v{t2}")
            e.s(f"s_cmp_lg_u32 s{S_FIN}, 0\ns_cbranch_scc1 L_voted\ns_cbranch_vccnz L_slow")
            e.label("L_voted")
        fill[GX + 3] = [vote] + fill.get(GX + 3, [])
        FL = c["FLAGLAG"]
        vseq = []
        def pub_cvt(i, k): return lambda: e.v(f"v_cvt_pk_bf16_f32 v{PK+8*(i%2)+k}, v{AC(i)+2*k}, v{AC(i)+2*k+1}")
        def pub_min(i, k): return lambda: e.v(f"v_min_u32 v{PK+8*(i%2)+k}, -2, v{PK+8*(i%2)+k}")
        def pub_so(i): return lambda: so_pub(i)
        def pub_st(i, q):
            def f():
                if c["nopub"]:
                    vseq.append(("S", i)); return
                e.bstore("buffer_store_dwordx4", PK + 8 * (i % 2) + 4 * q, 4, V_PUB, SRD_WS, f"s{S_T1}", 1024 * q, flags=c["fpub"])
                vseq.append(("S", i))
            return f
        def pub_flag(i):
            def f():
                so_flag(i)
                last = max(n for n, x in enumerate(vseq) if x == ("S", i))
                e.vmcnt(len(vseq) - 1 - last)
                e.bstore("buffer_store_dword", V_ONE, 1, V_FLG, SRD_WS, f"s{S_T2}", 16 * i, flags=c["fflag"])
                vseq.append(("F", i))
            return f
        late = []
        for i in range(7):
            g = done[i] + 1 + (min(c["PUBG"], 3) if i == 0 else c["PUBG"])
            fill.setdefault(g - 1, []).append(pub_so(i))
            for k in range(8):
                fill.setdefault(g + k // 2, []).append(pub_cvt(i, k))
                if i >= SENT: fill.setdefault(g + k // 2 + 1, []).insert(0, pub_min(i, k))
            fill.setdefault(g + 2, []).append(pub_st(i, 0))
            fill.setdefault(g + 4, []).append(pub_st(i, 1))
            if i >= SENT: continue
            gf = g + 7 + 16 * FL
            if gf < len(M) and i < c["FLMAX"]: fill.setdefault(gf, []).append(pub_flag(i))
            else: late.append(i)
        self.run_mfmas(M, fill, c["W3"], ph=3)
        self.stamp("c", "P3end")
        e.s(f"s_and_b32 s{S_T0}, s{S_D}, 1\ns_and_b32 s{S_T1}, s{S_WAVE}, 1\ns_cmp_eq_u32 s{S_T0}, s{S_T1}\ns_cbranch_scc1 L_own")
        h0 = list(e.hist); v0 = list(vseq)
        pub_so(7)()
        for k in range(8): pub_cvt(7, k)()
        if SENT <= 7:
            for k in range(8): pub_min(7, k)()
        pub_st(7, 0)(); pub_st(7, 1)()
        if c["GLATE"]: e.barrier()
        for i in late + ([7] if SENT > 7 else []): pub_flag(i)()
        e.s("s_branch L_fin")
        e.label("L_own"); e.hist = h0; vseq[:] = v0
        e.s(f"s_lshr_b32 s{S_T0}, s{S_WAVE}, 1\ns_lshl_b32 s{S_T0}, s{S_T0}, 12\ns_add_u32 s{S_T0}, s{S_T0}, {self.S3}")
        e.v(f"v_lshl_add_u32 v{T0}, v{V_LANE}, 4, s{S_T0}")
        for p in range(4): e.ds_write("ds_write_b128", T0, AC(7) + 4 * p, 4, 1024 * p)
        if c["GLATE"]: e.lgkm(0); e.barrier()
        for i in late: pub_flag(i)()
        e.lgkm(0)
        e.label("L_fin")
        if not c["GLATE"]: e.barrier()
        self.stamp("c", "flagged")
        self.write_stamps("c")
        e.other("s_endpgm")
        self.slow()

    def slow(self):
        e = self.e
        L = V_LANE
        e.raw(";@UNPAGED")
        e.label("L_slow"); e.hist = []; e.pend = []
        e.other("s_waitcnt vmcnt(0) lgkmcnt(0)"); e.nop(16)
        e.barrier()
        KA, VA, MX, t1 = T0, T0 + 1, T0 + 6, T0 + 7
        e.s(f"""s_mov_b32 s{S_FIN}, 1
s_lshr_b32 s{S_T0}, s{S_HP}, 1
s_lshl_b32 s{S_T1}, s{S_B}, 3
s_add_u32 s{S_T0}, s{S_T0}, s{S_T1}
s_lshl_b32 s{S_T0}, s{S_T0}, 17""")
        e.v(f"v_and_b32 v{t1}, 31, v{L}")
        e.v(f"v_lshrrev_b32 v{MX}, 5, v{L}")
        e.v(f"v_lshlrev_b32 v{KA}, 8, v{t1}")
        e.v(f"v_lshl_add_u32 v{KA}, v{MX}, 4, v{KA}")
        e.v(f"v_add_u32 v{KA}, s{S_T0}, v{KA}")
        e.v(f"v_lshlrev_b32 v{VA}, 10, v{MX}")
        e.v(f"v_lshl_add_u32 v{VA}, v{t1}, 1, v{VA}")
        e.v(f"v_add_u32 v{VA}, s{S_T0}, v{VA}")
        e.v(f"v_mov_b32 v{MX}, 0xff800000")
        def qk(cinit):
            for s in range(8): e.bload("buffer_load_dwordx4", FR + 4 * s, 4, KA, SRD_K, f"s{S_T1}", 32 * s)
            e.vmcnt(0)
            for s in range(8): e.mfma(SS, FR + 4 * s, QP + 4 * s, cinit if s == 0 else SS)
        e.s(f"s_mov_b32 s{S_T1}, 0")
        e.label("L_s1"); e.nop(12)
        qk(None)
        for r in range(0, 16, 2): e.v(f"v_max3_f32 v{MX}, v{MX}, v{SS+r}, v{SS+r+1}")
        e.s(f"s_add_u32 s{S_T1}, s{S_T1}, 8192\ns_cmp_lt_u32 s{S_T1}, 0x20000\ns_cbranch_scc1 L_s1")
        e.v(f"v_mov_b32 v{t1}, v{MX}")
        e.v(f"v_permlane32_swap_b32 v{MX}, v{t1}")
        e.v(f"v_max_f32 v{MX}, v{MX}, v{t1}")
        for r in range(16): e.v(f"v_sub_f32 v{CT+r}, 0, v{MX}")
        for r in range(64): e.v(f"v_mov_b32 v{ACC+r}, 0")
        e.v(f"v_mov_b32 v{V_L0}, 0"); e.v(f"v_mov_b32 v{V_L1}, 0")
        e.s(f"s_mov_b32 s{S_T1}, 0")
        e.label("L_s2"); e.nop(12)
        qk(CT)
        for r in range(16): e.v(f"v_exp_f32 v{SS+r}, v{SS+r}")
        for r in range(16): e.v(f"v_add_f32 v{V_L0}, v{V_L0}, v{SS+r}")
        for k in range(8): e.v(f"v_cvt_pk_bf16_f32 v{PP+k}, v{SS+2*k}, v{SS+2*k+1}")
        for u in range(2):
            e.s(f"s_add_u32 s{S_T2}, s{S_T1}, {u*4096}")
            for t in range(4):
                for j in range(8):
                    row = 8 * (j // 4) + j % 4
                    e.bload("buffer_load_ushort", SS + 16 + j, 1, VA, SRD_V, f"s{S_T2}", row * 256 + t * 64)
                e.vmcnt(0)
                for j in range(4): e.v(f"v_lshl_or_b32 v{FR+4*t+j}, v{SS+16+2*j+1}, 16, v{SS+16+2*j}")
            for t in range(4): e.mfma(ACC + 16 * t, FR + 4 * t, PP + 4 * u, ACC + 16 * t)
            e.nop(8)
        e.s(f"s_add_u32 s{S_T1}, s{S_T1}, 8192\ns_cmp_lt_u32 s{S_T1}, 0x20000\ns_cbranch_scc1 L_s2")
        e.nop(16)
        if self.c["LCH"]: self.lchain()
        e.nop(2)
        e.s("s_branch L_norm")

    def build(self):
        e = self.e
        self.plan()
        e.raw(f"""; Fused GQA block (two branches), gfx950.  Generated by the author's own generator script.
; @launch grid=(256,1,1) block=(512,1,1) lds={LDS}
.amdgcn_target "amdgcn-amd-amdhsa--gfx950"
.text
.globl {KN}
.p2align 8
.type {KN},@function
{KN}:""")
        self.prologue()
        self.helper()
        self.compute()
        e.label("L_end"); e.other("s_endpgm")
        e.raw(f""".section .rodata,"a"
.p2align 6
.amdhsa_kernel {KN}
  .amdhsa_next_free_vgpr 248
  .amdhsa_next_free_sgpr 102
  .amdhsa_accum_offset 248
  .amdhsa_group_segment_fixed_size 0
  .amdhsa_kernarg_size 104
  .amdhsa_user_sgpr_count 2
  .amdhsa_user_sgpr_kernarg_segment_ptr 1
  .amdhsa_system_sgpr_workgroup_id_x 1
.end_amdhsa_kernel""")
        assert e.maxv < 248
        return self.paginate(e.out)

    def paginate(self, lines):
        import subprocess, re, tempfile, os
        isins = lambda l: l.startswith("    ") and not l.strip().startswith((";", "."))
        with tempfile.TemporaryDirectory() as d:
            open(d + "/a.s", "w").write("\n".join(lines) + "\n")
            subprocess.run(["clang", "-x", "assembler", "-target", "amdgcn-amd-amdhsa", "-mcpu=gfx950", "-c",
                            "-o", d + "/a.o", d + "/a.s".replace("a.s", "a.s")], check=True)
            dis = subprocess.run(["llvm-objdump", "-d", "--mcpu=gfx950", d + "/a.o"], capture_output=True, text=True).stdout
        enc = [(int(m.group(1), 16), len(m.group(2).split()) * 4, m.group(0)) for m in re.finditer(r"// ([0-9A-F]{12}): ((?:[0-9A-F]{8} ?)+)", dis)]
        sizes = []; j = 0; addr = 0
        for l in lines:
            if l.startswith(".p2align 12"):
                addr = (addr + 4095) // 4096 * 4096
                while enc[j][0] < addr: j += 1
            if isins(l):
                assert enc[j][0] == addr, (l, hex(addr), enc[j])
                sizes.append(enc[j][1]); addr += enc[j][1]; j += 1
        n2 = 0
        while True:
            out, nm = self._marks(lines, sizes, isins, n2)
            if nm == n2: break
            n2 = nm
        return self._touches(out, nm)

    def _marks(self, lines, sizes, isins, n2):
        out = []; paged = False; off = 0; nm = 0; k = 0; self.page0 = None; tot = 0
        for l in lines:
            if l == ";@TOUCH2" and n2: off += 8 + 8 * n2
            if l == ";@PAGED":
                paged = True; off = 0
                if self.page0 is None: self.page0 = tot
                continue
            if l == ";@UNPAGED": paged = False; continue
            if l == ";@MARK":
                if self.c["touch"]:
                    nm += 1; out += [f"L_mk{nm}:", f"    s_cbranch_execz L_rt{nm}"]; off += 4
                continue
            if isins(l):
                sz = sizes[k]; k += 1; tot += sz
                if paged and self.c["touch"]:
                    if off % 4096 and off // 4096 != (off + sz - 1) // 4096:
                        out.append("    s_nop 0"); off += 4
                    if off and off % 4096 == 0:
                        nm += 1; out += [f"L_mk{nm}:", f"    s_cbranch_execz L_rt{nm}"]; off += 4
                off += sz
            out.append(l)
        return out, nm

    def _touches(self, out, nm):
        res = []
        for l in out:
            if l in (";@TOUCH1", ";@TOUCH2"):
                ks = list(range(1, nm + 1))
                if not ks: continue
                res.append("    s_mov_b64 exec, 0")
                for n, kk in enumerate(ks):
                    res += [f"    s_cmp_eq_u32 s{S_WAVE}, {n % 4}", f"    s_cbranch_scc1 L_mk{kk}", f"L_rt{kk}:"]
                res.append("    s_mov_b64 exec, -1")
            else: res.append(l)
        assert self.page0 + 80 < 4096 - 768, self.page0
        self.npages = nm
        return "\n".join(res) + "\n"

if __name__ == "__main__":
    kw = eval("dict(%s)" % (sys.argv[2] if len(sys.argv) > 2 else ""))
    g = Gen(**kw)
    t = g.build()
    open(sys.argv[1], "w").write(t)
    print("page0", g.page0, "marks", g.npages, "nops", g.e.nnop, "waits", g.e.nwait, "lines", len(g.e.out))
    for n in range(-1, len(g.bars)):
        print(g.bars[n] if n >= 0 else "start", [i["name"] for i in g.sched[n]])
```

```python
import re

def R(a, n=1):
    return frozenset(range(a, a + n))

def vr(a, n=1):
    return f"v{a}" if n == 1 else f"v[{a}:{a+n-1}]"

def sr(a, n=1):
    return f"s{a}" if n == 1 else f"s[{a}:{a+n-1}]"

TRANS = ("v_exp_f32", "v_log_f32", "v_rcp_f32", "v_rsq_f32", "v_sqrt_f32")
E = frozenset()

class Ins:
    __slots__ = ("txt", "kind", "rd", "wr", "a", "b", "c", "swr", "srd", "perm", "rlane", "wide", "m0w", "dma", "states")
    def __init__(self, txt, kind, rd=E, wr=E, a=E, b=E, c=E, swr=E, srd=E, perm=False, rlane=False,
                 wide=E, m0w=False, dma=False, states=1):
        self.txt, self.kind, self.rd, self.wr, self.a, self.b, self.c = txt, kind, rd, wr, a, b, c
        self.swr, self.srd, self.perm, self.rlane, self.wide, self.m0w, self.dma, self.states = swr, srd, perm, rlane, wide, m0w, dma, states

def need(o, n):
    k = 0
    if o.kind == "mfma":
        D = o.wr
        if n.kind == "mfma":
            if n.c & D and n.c != D: k = max(k, 10)
            if (n.a | n.b) & D: k = max(k, 12)
            if n.wr & D and n.c != D: k = max(k, 10)
        else:
            if (n.rd | n.wr) & D: k = max(k, 12)
            if n.kind in ("valu", "trans") and n.wr & o.c: k = max(k, 7)
    if o.kind in ("valu", "trans"):
        if n.kind == "mfma" and (n.a | n.b | n.c) & o.wr: k = max(k, 2)
        if o.kind == "trans" and n.kind != "trans" and n.rd & o.wr: k = max(k, 1)
        if n.perm and n.rd & o.wr: k = max(k, 2)
        if n.rlane and n.rd & o.wr: k = max(k, 1)
        if o.swr & n.srd:
            k = max(k, 5 if n.kind == "vmem" else (2 if n.kind in ("valu", "trans") else 1))
    if o.wide and n.wr & o.wide:
        k = max(k, 2)
    if o.m0w and n.dma: k = max(k, 1)
    return k

_vre = re.compile(r"(?<![\w])v(\d+)\b|(?<![\w])v\[(\d+):(\d+)\]")
_sre = re.compile(r"(?<![\w])s(\d+)\b|(?<![\w])s\[(\d+):(\d+)\]")
def _regs(rx, s):
    out = set()
    for m in rx.finditer(s):
        if m.group(1) is not None: out.add(int(m.group(1)))
        else: out.update(range(int(m.group(2)), int(m.group(3)) + 1))
    return frozenset(out)
def _sregs(s):
    r = set(_regs(_sre, s))
    if re.search(r"\bvcc\b", s): r |= {106, 107}
    return frozenset(r)

class Em:
    def __init__(self):
        self.out = []
        self.hist = []
        self.pend = []
        self.ptag = []
        self.tag = None
        self.live = None
        self.nnop = 0
        self.nwait = 0
        self.maxv = 0
    def raw(self, txt):
        for l in txt.strip("\n").split("\n"): self.out.append(l)
    def label(self, name, reset=True):
        self.out.append(name + ":")
    def comment(self, t): self.out.append("; " + t)
    def _push(self, i):
        self.out.append("    " + i.txt)
        self.hist.append(i)
        if len(self.hist) > 24: self.hist.pop(0)
    def wait_regs(self, regs):
        idx = -1
        for j, p in enumerate(self.pend):
            if p & regs: idx = j
        if idx >= 0:
            n = len(self.pend) - 1 - idx
            n = min(n, 15)
            self._push(Ins(f"s_waitcnt lgkmcnt({n})", "other"))
            self.nwait += 1
            self.pend = self.pend[len(self.pend) - n:] if n else []
            self._sync()
    def _sync(self):
        self.ptag = self.ptag[len(self.ptag) - len(self.pend):] if self.pend else []
    def push_pend(self, regs):
        self._sync(); self.pend.append(regs); self.ptag.append(self.tag)
        if self.tag is not None and self.live is not None: assert self.tag in self.live, ("read of a tile that is not live", self.tag)
        self.tag = None
    def emit(self, i):
        allv = i.rd | i.wr | i.a | i.b | i.c
        if allv: self.maxv = max(self.maxv, max(allv))
        self.wait_regs(allv)
        dist = 0; pad = 0
        for o in reversed(self.hist):
            k = need(o, i)
            if k - dist > pad: pad = k - dist
            dist += o.states
            if dist >= 20: break
        while pad > 0:
            p = min(pad, 16)
            self._push(Ins(f"s_nop {p-1}", "other", states=p)); self.nnop += p
            pad -= p
        self._push(i)
    def nop(self, n):
        while n > 0:
            p = min(n, 16)
            self._push(Ins(f"s_nop {p-1}", "other", states=p)); n -= p
    def mfma(self, d, a, b, c):
        cs = vr(c, 16) if c is not None else "0"
        self.emit(Ins(f"v_mfma_f32_32x32x16_bf16 {vr(d,16)}, {vr(a,4)}, {vr(b,4)}, {cs}", "mfma",
                      wr=R(d, 16), a=R(a, 4), b=R(b, 4), c=(R(c, 16) if c is not None else E)))
    def v(self, txt):
        op, rest = txt.split(None, 1)
        ops = [x.strip() for x in rest.split(",")]
        dst = ops[0]; srcs = ",".join(ops[1:])
        wr = _regs(_vre, dst); swr = _sregs(dst)
        rd = _regs(_vre, srcs); srd = _sregs(srcs)
        perm = op.startswith("v_permlane")
        if perm: rd = rd | wr; wr = rd
        if op.startswith(("v_fmac", "v_dot2c", "v_writelane")): rd = rd | wr
        rl = op.startswith(("v_readfirstlane", "v_readlane"))
        kind = "trans" if op.replace("_e32", "").replace("_e64", "") in TRANS else "valu"
        self.emit(Ins(txt, kind, rd=rd, wr=wr, swr=swr, srd=srd, perm=perm, rlane=rl))
    def s(self, txt):
        for l in txt.strip("\n").split("\n"):
            l = l.strip()
            if not l: continue
            op = l.split()[0]
            rest = l[len(op):].split(";")[0]
            ops = [x.strip() for x in rest.split(",")]
            m0w = ops[0] == "m0" and not op.startswith("s_cmp")
            self.emit(Ins(l, "salu", srd=_sregs(rest), m0w=m0w))
    def ds_read(self, op, d, n, addr, off=0):
        assert 0 <= off < 65536, off
        for p in self.pend: assert not (p & R(d, n)), "WAW on pending ds_read dest"
        if len(self.pend) >= 15: self.lgkm(14)
        self.emit(Ins(f"{op} {vr(d,n)}, v{addr}" + (f" offset:{off}" if off else ""), "ds", rd=R(addr), wr=R(d, n)))
        self.push_pend(R(d, n))
    def ds128(self, d, addr, off=0): self.ds_read("ds_read_b128", d, 4, addr, off)
    def dstr(self, d, addr, off=0): self.ds_read("ds_read_b64_tr_b16", d, 2, addr, off)
    def ds32(self, d, addr, off=0): self.ds_read("ds_read_b32", d, 1, addr, off)
    def ds_write(self, op, addr, s, n, off=0):
        assert 0 <= off < 65536, off
        if len(self.pend) >= 15: self.lgkm(13)
        self.emit(Ins(f"{op} v{addr}, {vr(s,n)}" + (f" offset:{off}" if off else ""), "ds", rd=R(addr) | R(s, n)))
        self.push_pend(E)
    def lgkm(self, n=0):
        self._push(Ins(f"s_waitcnt lgkmcnt({n})", "other"))
        self.pend = self.pend[len(self.pend) - n:] if (n and n < len(self.pend)) else ([] if n == 0 else self.pend)
        self._sync()
    def vmcnt(self, n): self._push(Ins(f"s_waitcnt vmcnt({n})", "other"))
    def barrier(self): self._push(Ins("s_barrier", "other"))
    def other(self, txt): self._push(Ins(txt, "other"))
    def dma(self, vaddr, srd, soff, off=0, flags=""):
        t = f"buffer_load_dwordx4 v{vaddr}, {sr(srd,4)}, {soff} offen" + (f" offset:{off}" if off else "") + (f" {flags}" if flags else "") + " lds"
        self.emit(Ins(t, "vmem", rd=R(vaddr), srd=_sregs(f"{sr(srd,4)} {soff}"), dma=True))
    def bload(self, op, d, n, vaddr, srd, soff, off=0, flags=""):
        t = f"{op} {vr(d,n)}, v{vaddr}, {sr(srd,4)}, {soff} offen" + (f" offset:{off}" if off else "") + (f" {flags}" if flags else "")
        self.emit(Ins(t, "vmem", rd=R(vaddr), wr=R(d, n), srd=_sregs(f"{sr(srd,4)} {soff}")))
    def bstore(self, op, s, n, vaddr, srd, soff, off=0, flags=""):
        t = f"{op} {vr(s,n)}, v{vaddr}, {sr(srd,4)}, {soff} offen" + (f" offset:{off}" if off else "") + (f" {flags}" if flags else "")
        self.emit(Ins(t, "vmem", rd=R(vaddr) | R(s, n), srd=_sregs(f"{sr(srd,4)} {soff}"), wide=(R(s, n) if n >= 3 else E)))
    def flush(self):
        self.lgkm(0); self.nop(12); self.hist = []
    def text(self): return "\n".join(self.out) + "\n"
```

```python
import sys, math, struct
from emit import *

NAME = "concat_heads__gqa_block_cached__gqa_block_cached__near_ridge"
KN = NAME + "_kernel"

def f2u(f): return struct.unpack("<I", struct.pack("<f", f))[0]

DEF = dict(
    NF=8, L1=5, W1=2, L2=7, W2=4, L3=7, W3=4, GX=9,
    r1b=(2, 8), r1h=4,
    r3b=(1, 2),
    fx="", fq="", fk="", fv="", fo="",
    kvpre=16,
    NREG=0, PACE3=None, PUBG=6, PREPOLL=9, wopos=(7, 9, 11, 13, 14, 15),
    prio_c=0, prio_h=0,
    stamp=0, dump=None, FLAGLAG=1, touch=1, NB3=6, rounds=tuple((i,) for i in range(8)), l2pf=1, TPOS=1, PSLEEP=0, fpoll='sc1', fgat='sc1', fpub='sc1', fflag='sc1', tlbpf=1, kvalt=0, kvrot=1, trace=0, DEFER=(), DEFAT=(8, 15), KA=2, QT=1, nobar=0, S3K=1, s3pos=(16, 16), CZ=1, nst=0, S3AT='BK_17', LCH=1, NORMV=1, GEARLY=2, FLMAX=3, BY=1, GLATE=1, A3=(2, 2, 3, 4), skip=(), warm=0, warmd=0, SENT=8, CLRJ=2, CLRF=5, noclear=0, B17=1, RSLEEP=4, wsoff=0, fout='sc1', CAP=64, CAP0=None, CAPE=(40, 2), CAPS=None, XFIRST=0, pad=None, nodma=0, tab=None, nopub=0,
)

W0 = 0; KR = 98304; VR = 131072; LDS = 163840
XSLOT = [KR, KR + 8192, VR, KR + 16384, VR + 8192, KR + 24576, VR + 16384, VR + 24576]
WOSLOT = [0, 32768, 65536, VR, KR, 0, 32768, 65536]
WS_X = 0
WS_F = 16 << 20
WS_DBG = 17 << 20
WS_SIZE = 32 << 20
S_WAVE, S_BR, S_B, S_HP, S_D = 3, 4, 5, 6, 7
SRD_X, SRD_K, SRD_V, SRD_WQ, SRD_WO, SRD_WS, SRD_OUT, SRD_DBG = 8, 12, 16, 20, 24, 28, 32, 36
S_GRP, S_R1, S_R3, S_T0, S_T1, S_T2, S_T3 = 40, 41, 42, 43, 44, 45, 46
S_CX, S_CQ, S_CKV, S_CO, S_M2, S_M4, S_FIN, S_SC = 47, 48, 49, 50, 51, 52, 53, 54
S_CNT = 56
S_CLR = 100
S_KP, S_KQ, S_KE, S_KF = 96, 97, 98, 99
S_STAMP = 60
V_LANE = 1
A_WQ = 2
A_X = 10
A_K = 14
A_V = 22
A_WO = 26
V_PUB, V_FLG, V_XW, V_XR, V_L0, V_L1 = 32, 33, 34, 35, 36, 37
T0 = 38
FR = 48
XB = 80
PP = 80
QP = 92
ACC = 128
SS = 192
CT = 224
OWN = 192
OTH = 128
AC3A, AC3B = 224, 160
PK = 176
V_ONE, V_RDY = 240, 241
V_M1 = 244
H_X, H_Q, H_K, H_V, H_O = 2, 4, 8, 10, 12
H_G, H_F, H_OUT, H_T = 16, 17, 18, 19
H_OWN, H_PRM = 42, 43
H_ACC = 24
H_TMP = 32
H_BUF = 160
H_REG = 64
H_W = 40


class Gen:
    def __init__(self, **kw):
        self.c = dict(DEF); self.c.update(kw)
        for k in kw: assert k in DEF, k
        self.e = Em()
        self.XR, self.S3 = (VR, KR) if self.c["S3K"] else (KR, VR)
        self.WOSLOT = [0, 32768, 65536, self.S3, self.XR, 0, 32768, 65536]
        self.nst = {"c": 0, "h": 0}
        self.stamp_names = {"c": [], "h": []}

    def stamp(self, who, name):
        if not self.c["stamp"]: return
        if self.c["nst"] and who == "c" and name in ("setup", "preB1_0", "postB1_0", "preB1_8", "postBK_0", "preBK_1", "preBK_8"): return
        if name.startswith("n_") and not self.c["nst"]: return
        k = self.nst[who]; self.nst[who] += 1
        assert k < 19
        self.stamp_names[who].append(name)
        self.e.other(f"{'s_memrealtime' if self.c['stamp'] == 2 else 's_memtime'} s[{S_STAMP+2*k}:{S_STAMP+2*k+1}]")

    def write_stamps(self, who):
        if not self.c["stamp"]: return
        e = self.e
        if self.c["pad"]:
            T, w, nm = self.c["pad"]
            if w == who:
                k = self.stamp_names[who].index(nm)
                e.lgkm(0)
                e.s(f"s_add_u32 s{S_T0}, s{S_STAMP+2*k}, {T//10}")
                e.label(f"L_pad{who}")
                e.other("s_memrealtime s[98:99]"); e.lgkm(0)
                e.s(f"s_sub_u32 s{S_T1}, s98, s{S_T0}\ns_cmp_lt_i32 s{S_T1}, 0\ns_cbranch_scc1 L_pad{who}")
            return
        e.other("s_memrealtime s[98:99]")
        e.lgkm(0)
        e.v("v_mov_b32 v44, 0")
        for k in range(self.nst[who]): e.v(f"v_writelane_b32 v44, s{S_STAMP+2*k}, {k}")
        e.v("v_writelane_b32 v44, s98, 30"); e.v("v_writelane_b32 v44, s58, 31")
        e.v(f"v_lshlrev_b32 v45, 2, v{V_LANE}")
        e.s(f"s_lshl_b32 s{S_T0}, s2, 3\ns_add_u32 s{S_T0}, s{S_T0}, s{S_WAVE}\ns_lshl_b32 s{S_T0}, s{S_T0}, 8\ns_add_u32 s{S_T0}, s{S_T0}, {WS_DBG}")
        e.bstore("buffer_store_dword", 44, 1, 45, SRD_WS, f"s{S_T0}")
        if self.c["trace"] and who == "h":
            e.s(f"s_add_u32 s{S_T0}, s{S_T0}, 0x80000")
            e.bstore("buffer_store_dword", 46, 1, 45, SRD_WS, f"s{S_T0}")

    def plan(self):
        c = self.c
        bars = [f"B1_{k}" for k in range(16)] + [f"BK_{k}" for k in range(17 + c["B17"])] + ["BX"] + ["BY"] * c["BY"] + [f"B3_{k}" for k in range(2, c["NB3"] + 1)]
        bi = {n: i for i, n in enumerate(bars)}
        items = {}
        def add(name, lds, after, needed): items[name] = dict(name=name, lds=lds, after=after, need=needed)
        xfree = lambda cc: bi[f"B1_{2*cc+3}"] if cc <= 6 else bi["BK_0"]
        qfree = lambda kt: bi[f"B1_{kt+2}"] if kt <= 13 else bi["BK_0"]
        for cc in range(8): add(f"x{cc}", XSLOT[cc], -1, bi[f"B1_{2*cc}"])
        for kt in range(16): add(f"q{kt}", W0 + (kt % 6) * 16384, -1 if kt < 6 else qfree(kt - 6), bi[f"B1_{kt}"])
        for j in range(16):
            a = KR + (j % 4) * 8192
            add(f"k{j}", a, xfree(XSLOT.index(a)) if j < 4 else bi[f"BK_{max(j-3, 2)}"], bi[f"BK_{j}"])
            a = VR + (j % 4) * 8192
            add(f"v{j}", a, xfree(XSLOT.index(a)) if j < 4 else bi[f"BK_{j-1}"], bi[f"BK_{j+1}"])
        NREG = c["NREG"]
        for i in range(8):
            for hf in range(2):
                a = self.WOSLOT[i] + hf * 16384
                if i < 3:
                    last = max(kt for kt in range(16) if (kt % 6) * 16384 == a)
                    aft = qfree(last)
                else: aft = bi[c["S3AT"] if c["B17"] else "BX"] if i == 3 else (bi["BY"] if (i == 4 and c["BY"]) else bi[f"B3_{c['A3'][i-4]}"])
                if i == 3 and c["S3K"]:
                    assert c["B17"] and c["s3pos"][hf] >= (14, 16)[hf]
                    aft = bi[f"BK_{c['s3pos'][hf]}"]
                if i >= 8 - NREG:
                    add(f"o{i}{'ab'[hf]}", a, -1, aft)
                    items[f"o{i}{'ab'[hf]}"]["reg"] = H_REG + 32 * (i - (8 - NREG)) + 16 * hf
                else:
                    add(f"o{i}{'ab'[hf]}", a, aft, bi[f"BK_{16 + c['B17']}"] if i <= 1 else bi[f"B3_{min(i, c['NB3'])}"])
        order = []
        kvq = ["k0", "k1", "v0", "k2", "v1", "k3", "v2"]
        XF = c["XFIRST"]
        for kt in range(16):
            if kt == 0 and XF: order += ["x0", "x1"][:XF]
            if kt % 2 == 0 and f"x{kt//2}" not in order: order.append(f"x{kt//2}")
            order.append(f"q{kt}")
            if kt + 1 >= c["kvpre"] and kt < 15 and kvq and items[kvq[0]]["after"] <= items[f"q{kt}"]["after"]:
                order.append(kvq.pop(0))
        order += kvq
        wo = [f"o{i}{h}" for i in list(range(3)) + list(range(8 - NREG, 8)) for h in "ab"]
        wp = list(c["wopos"])
        order.append("v3")
        for n in range(0, 17 + c["B17"]):
            if 4 <= n + 1 <= 15: order.append(f"v{n+1}")
            if n == 2: order.append("k4")
            if 5 <= n + 3 <= 15: order.append(f"k{n+3}")
            while wp and wo and wp[0] <= n:
                nm = wo.pop(0); wp.pop(0)
                items[nm]["after"] = max(items[nm]["after"], bi[f"BK_{n}"])
                order.append(nm)
            if c["S3K"]:
                for hf in range(2):
                    if c["s3pos"][hf] == n: order.append("o3" + "ab"[hf])
        order += wo
        order += [f"o{i}{h}" for i in range(3, 8 - NREG) for h in "ab" if f"o{i}{h}" not in order]
        assert sorted(order) == sorted(items), (set(items) - set(order), len(order), len(items))
        cur = -1
        sched = {i: [] for i in range(-1, len(bars))}
        size = lambda n: 16 if n[0] in "qo" else 8
        issued = []
        nP1 = bi["BK_0"]
        for n in order:
            it = items[n]
            cur = max(cur, it["after"])
            while cur < nP1 and sum(size(m) for m in issued if items[m]["need"] > cur) + size(n) > (c["CAPS"][cur + 1] if (c["CAPS"] and cur + 1 < len(c["CAPS"])) else c["CAP0"] if (cur < 0 and c["CAP0"]) else (c["CAPE"][0] if (c["CAPE"] and cur < c["CAPE"][1]) else c["CAP"])):
                cur += 1
            assert cur < it["need"], (n, bars[cur], bars[it["need"]])
            sched[cur].append(it); issued.append(n)
        self.bars, self.bi, self.items, self.sched, self.order = bars, bi, items, sched, order
        self.size = size

    def cbar(self, nm):
        e = self.e; n = self.bi[nm]
        e._sync()
        for it in self.sched[n]:
            lo, hi = it["lds"], it["lds"] + self.size(it["name"]) * 1024
            for o in list(e.live):
                olo, ohi = self.rng[o]
                if olo < hi and lo < ohi:
                    assert o not in e.ptag, ("slot of %s refilled with %s while a read is pending at %s" % (o, it["name"], nm))
                    e.live.discard(o)
        for it in self.items.values():
            if it["need"] == n:
                e.live.add(it["name"]); self.rng[it["name"]] = (it["lds"], it["lds"] + self.size(it["name"]) * 1024)
        if not (self.c["nobar"] and nm.startswith("BK_") and 1 <= int(nm[3:]) <= 15): e.barrier()

    def T(self, tag, fn):
        def f():
            self.e.tag = tag; fn()
        return f

    def prologue(self):
        e, c = self.e, self.c
        KA = c["KA"]
        e.s("s_cmp_ge_u32 s2, 256\ns_cbranch_scc1 L_end")
        if KA >= 2:
            e.v(f"v_lshrrev_b32 v2, 6, v0")
        e.s(f"""
s_and_b32 s{S_T0}, s2, 7
s_lshr_b32 s{S_BR}, s{S_T0}, 2
s_mul_i32 s{S_T1}, s{S_BR}, 40
s_add_u32 s56, s0, s{S_T1}
s_addc_u32 s57, s1, 0""")
        if KA == 0:
            for srd, off in ((SRD_X, 0), (SRD_WQ, 24), (SRD_K, 8), (SRD_V, 16), (SRD_WO, 32)):
                e.other(f"s_load_dwordx2 s[{srd}:{srd+1}], s[56:57], {off}")
            for srd, off in ((SRD_OUT, 80), (SRD_DBG, 88), (SRD_WS, 96)):
                e.other(f"s_load_dwordx2 s[{srd}:{srd+1}], s[0:1], {off}")
        elif KA == 1:
            for srd, off in ((SRD_X, 0), (SRD_WQ, 24)):
                e.other(f"s_load_dwordx2 s[{srd}:{srd+1}], s[56:57], {off}")
        else:
            e.v(f"v_readfirstlane_b32 s{S_WAVE}, v2")
            e.s(f"s_cmp_ge_u32 s{S_WAVE}, 4\ns_cbranch_scc1 L_helper")
        self.decode("c")
        if KA < 2: e.s(f"s_cmp_ge_u32 s{S_WAVE}, 4\ns_cbranch_scc1 L_helper")
        self.compute_setup()
        e.s("s_branch L_compute")

    def decode(self, who):
        e, c = self.e, self.c
        KA = c["KA"]
        if c["stamp"]: e.other("s_memrealtime s[58:59]")
        self.stamp(who, "start")
        if KA < 2: self.nst["h"] = self.nst["c"]; self.stamp_names["h"] = list(self.stamp_names["c"])
        if KA < 2: e.v(f"v_lshrrev_b32 v2, 6, v0")
        e.v(f"v_and_b32 v{V_LANE}, 63, v0")
        if KA < 2: e.v(f"v_readfirstlane_b32 s{S_WAVE}, v2")
        for srd, n in ((SRD_X, 512 << 10), (SRD_K, 8 << 20), (SRD_V, 8 << 20), (SRD_WQ, 4 << 20), (SRD_WO, 4 << 20),
                       (SRD_WS, WS_SIZE), (SRD_OUT, 1 << 20), (SRD_DBG, 256)):
            e.s(f"s_mov_b32 s{srd+2}, {n}\ns_mov_b32 s{srd+3}, 0x20000")
        e.s(f"""
s_and_b32 s{S_T0}, s{S_T0}, 3
s_lshr_b32 s{S_T1}, s2, 3
s_and_b32 s{S_B}, s{S_T1}, 7
s_lshr_b32 s{S_T1}, s{S_T1}, 3
s_lshl_b32 s{S_T0}, s{S_T0}, 2
s_add_u32 s{S_HP}, s{S_T0}, s{S_T1}
s_lshl_b32 s{S_GRP}, s{S_BR}, 3
s_add_u32 s{S_GRP}, s{S_GRP}, s{S_B}
s_lshr_b32 s{S_T0}, s{S_B}, {c['r1b'][0]}
s_mul_i32 s{S_T0}, s{S_T0}, {c['r1b'][1]}
s_mul_i32 s{S_T1}, s{S_T1}, {c['r1h']}
s_add_u32 s{S_R1}, s{S_T0}, s{S_T1}
s_and_b32 s{S_R1}, s{S_R1}, 15
s_lshr_b32 s{S_T0}, s{S_B}, {c['r3b'][0]}
s_mul_i32 s{S_T0}, s{S_T0}, {2*c['r3b'][1]}
s_add_u32 s{S_D}, s{S_HP}, s{S_T0}
s_and_b32 s{S_D}, s{S_D}, 15
s_lshr_b32 s{S_R3}, s{S_D}, 1
s_add_u32 s{S_R3}, s{S_R3}, 1
s_and_b32 s{S_R3}, s{S_R3}, 7""")

    def helper(self):
        e, c = self.e, self.c
        L = V_LANE
        e.label("L_helper"); e.hist = []
        if c["KA"] >= 2:
            e.other("s_load_dwordx8 s[80:87], s[56:57], 0")
            self.decode("h")
        HW = S_T3
        e.s(f"s_sub_u32 s{HW}, s{S_WAVE}, 4")
        if c["prio_h"]: e.other(f"s_setprio {c['prio_h']}")
        t, u = 20, 21
        e.v(f"v_lshrrev_b32 v{t}, 3, v{L}")
        e.s(f"s_lshl_b32 s{S_T0}, s{HW}, 4\ns_lshl_b32 s{S_T1}, s{S_B}, 6\ns_add_u32 s{S_T0}, s{S_T0}, s{S_T1}")
        e.v(f"v_add_lshl_u32 v{H_X}, v{t}, s{S_T0}, 10")
        e.v(f"v_lshrrev_b32 v{u}, 4, v{L}")
        e.v(f"v_and_b32 v22, 7, v{L}")
        e.v(f"v_xor_b32 v22, v22, v{u}")
        e.v(f"v_xor_b32 v23, 4, v22")
        e.v(f"v_lshl_add_u32 v{H_X+1}, v23, 4, v{H_X}")
        e.v(f"v_add_u32 v{H_X+1}, {8*1024-1024}, v{H_X+1}")
        e.v(f"v_lshl_add_u32 v{H_X}, v22, 4, v{H_X}")
        e.v(f"v_lshrrev_b32 v22, 5, v{L}")
        e.s(f"s_lshl_b32 s{S_T0}, s{HW}, 3\ns_lshl_b32 s{S_T1}, s{S_HP}, 9")
        e.v(f"v_add_lshl_u32 v23, v22, s{S_T0}, 13")
        e.v(f"v_add_u32 v23, s{S_T1}, v23")
        e.v(f"v_lshlrev_b32 v22, 2, v22")
        e.v(f"v_and_b32 v19, 31, v{L}")
        e.v(f"v_xor_b32 v22, v22, v19")
        e.v(f"v_lshl_add_u32 v{H_Q}, v22, 4, v23")
        e.v(f"v_xor_b32 v22, 8, v22")
        e.v(f"v_lshl_add_u32 v{H_Q+1}, v22, 4, v23")
        e.v(f"v_add_u32 v{H_Q+2}, {2*(16384-1024)}, v{H_Q}")
        e.v(f"v_add_u32 v{H_Q+3}, {3*(16384-1024)}, v{H_Q+1}")
        e.v(f"v_add_u32 v{H_Q+1}, {16384-1024}, v{H_Q+1}")
        e.s(f"""s_lshl_b32 s{S_CQ}, s{S_R1}, 18
s_lshl_b32 s{S_CX}, s{S_R1}, 6
s_lshl_b32 s{S_M2}, s{HW}, 11
s_lshl_b32 s{S_M4}, s{HW}, 12""")
        first = list(self.sched[-1])
        e.other("s_waitcnt lgkmcnt(0)")
        if c["KA"] >= 2:
            e.s(f"s_mov_b64 s[{SRD_X}:{SRD_X+1}], s[80:81]\ns_mov_b64 s[{SRD_WQ}:{SRD_WQ+1}], s[86:87]\ns_mov_b64 s[{SRD_K}:{SRD_K+1}], s[82:83]\ns_mov_b64 s[{SRD_V}:{SRD_V+1}], s[84:85]")
        self.stamp("h", "karg")
        if not c["KA"]: self.wsoff()
        self.hseq = 0
        nfirst = 0
        while nfirst < len(first) and first[nfirst]["name"][0] in "xq" and nfirst < 3:
            self.issue(first[nfirst]); nfirst += 1
        self.stamp("h", "iss3")
        self.karg2("h")
        e.s(f"""s_lshr_b32 s{S_T0}, s{S_HP}, 1
s_lshl_b32 s{S_T1}, s{S_B}, 3
s_add_u32 s{S_T0}, s{S_T0}, s{S_T1}
s_lshl_b32 s{S_T0}, s{S_T0}, 17
s_lshl_b32 s{S_T1}, s{HW}, 11
s_add_u32 s{S_T0}, s{S_T0}, s{S_T1}
s_and_b32 s{S_T1}, s{HW}, 1
s_lshl_b32 s{S_T1}, s{S_T1}, 3""")
        e.v(f"v_lshlrev_b32 v23, 8, v{u}")
        e.v(f"v_add_u32 v23, s{S_T0}, v23")
        e.v(f"v_and_b32 v19, 15, v{L}")
        e.v(f"v_add_u32 v22, s{S_T1}, v{u}")
        e.v(f"v_xor_b32 v22, v22, v19")
        e.v(f"v_lshl_add_u32 v{H_K}, v22, 4, v23")
        e.v(f"v_xor_b32 v22, 4, v22")
        e.v(f"v_lshl_add_u32 v{H_K+1}, v22, 4, v23")
        e.v(f"v_lshlrev_b32 v22, 2, v{u}")
        e.v(f"v_xor_b32 v22, v22, v19")
        e.v(f"v_lshl_add_u32 v{H_V}, v22, 4, v23")
        e.s(f"""s_lshr_b32 s{S_T0}, s{S_HP}, 1
s_and_b32 s{S_T0}, s{S_T0}, 1
s_lshl_b32 s{S_T0}, s{S_T0}, 3
s_add_u32 s{S_T0}, s{S_T0}, s{S_B}
s_mul_i32 s{S_T0}, s{S_T0}, {c['kvrot']}
s_lshl_b32 s{S_KP}, s{S_T0}, 13""")
        if c["kvalt"]:
            d = c["kvalt"] & 3
            e.s(f"""s_and_b32 s{S_T0}, s{S_HP}, 1
s_lshl_b32 s{S_T0}, s{S_T0}, {12 + d}
s_and_b32 s{S_T1}, s{S_B}, {0 if c['kvalt'] & 4 else 1}
s_cmp_eq_u32 s{S_T1}, 0
s_cselect_b32 s{S_T1}, s{S_T0}, 0
s_cselect_b32 s{S_T0}, 0, s{S_T0}
s_add_u32 s{S_KE}, s{S_KP}, s{S_T1}
s_sub_u32 s{S_KF}, s{S_KP}, s{S_T1}
s_add_u32 s{S_KQ}, s{S_KF}, s{S_T0}
s_sub_u32 s{S_KP}, s{S_KE}, s{S_T0}""")
        e.s(f"s_lshl_b32 s{S_T0}, s{HW}, 5\ns_lshl_b32 s{S_T1}, s{S_HP}, 8\ns_add_u32 s{S_T0}, s{S_T0}, s{S_T1}")
        e.v(f"v_add_lshl_u32 v23, v{t}, s{S_T0}, 10")
        e.v(f"v_and_b32 v22, 1, v{u}")
        e.v(f"v_lshlrev_b32 v22, 2, v22")
        e.v(f"v_and_b32 v19, 7, v{L}")
        e.v(f"v_xor_b32 v22, v22, v19")
        e.v(f"v_lshl_add_u32 v{H_O}, v22, 4, v23")
        for k in range(1, 4): e.v(f"v_add_u32 v{H_O+k}, {k*(8192-1024)}, v{H_O}")
        e.v(f"v_lshl_add_u32 v{H_W}, v{L}, 4, s{S_M4}")
        e.v(f"v_add_u32 v{H_W+1}, 0x10000, v{H_W}")
        e.s(f"""s_lshl_b32 s{S_T0}, s{S_GRP}, 4
s_add_u32 s{S_T0}, s{S_T0}, s{S_D}
s_lshl_b32 s{S_T1}, s{S_T0}, 7
s_add_u32 s{S_T1}, s{S_T1}, {WS_F}
s_lshl_b32 s{S_T0}, s{S_T0}, 16
s_lshl_b32 s{S_T2}, s{HW}, 7""")
        e.v(f"v_and_b32 v22, 7, v{L}")
        e.v(f"v_bfe_u32 v23, v{L}, 3, 1")
        e.v(f"v_lshl_add_u32 v22, v23, 5, v22")
        e.v(f"v_lshl_add_u32 v22, v22, 4, s{S_T2}")
        e.v(f"v_lshrrev_b32 v23, 4, v{L}")
        e.v(f"v_lshl_add_u32 v{H_G}, v23, 10, v22")
        e.v(f"v_add_u32 v{H_G}, s{S_T0}, v{H_G}")
        e.v(f"v_lshl_add_u32 v{H_OWN}, v23, 11, v22")
        e.v(f"v_add_u32 v{H_OWN}, {self.S3}, v{H_OWN}")
        e.v(f"v_and_b32 v22, 31, v{L}")
        e.v(f"v_lshl_add_u32 v{H_F}, v22, 2, s{S_T1}")
        e.s(f"""s_lshl_b32 s{S_T0}, s{S_B}, 1
s_and_b32 s{S_T1}, s{S_D}, 1
s_add_u32 s{S_T0}, s{S_T0}, s{S_T1}
s_lshl_b32 s{S_T0}, s{S_T0}, 2
s_add_u32 s{S_T0}, s{S_T0}, s{HW}
s_lshl_b32 s{S_T0}, s{S_T0}, 14
s_lshl_b32 s{S_T1}, s{S_BR}, 10
s_add_u32 s{S_T0}, s{S_T0}, s{S_T1}
s_lshr_b32 s{S_T1}, s{S_D}, 1
s_lshl_b32 s{S_T1}, s{S_T1}, 7
s_add_u32 s{S_T0}, s{S_T0}, s{S_T1}""")
        e.v(f"v_lshl_add_u32 v{H_OUT}, v{t}, 11, s{S_T0}")
        e.v(f"v_and_b32 v22, 7, v{L}")
        e.v(f"v_lshl_add_u32 v{H_OUT}, v22, 4, v{H_OUT}")
        e.v(f"v_bfe_u32 v22, v{L}, 2, 1")
        e.v(f"v_lshl_add_u32 v{H_PRM}, v22, 5, v{t}")
        e.v(f"v_and_b32 v22, 1, v{L}")
        e.v(f"v_lshl_add_u32 v{H_PRM}, v22, 4, v{H_PRM}")
        e.v(f"v_bfe_u32 v22, v{L}, 1, 1")
        e.v(f"v_lshl_add_u32 v{H_PRM}, v22, 3, v{H_PRM}")
        e.v(f"v_lshlrev_b32 v{H_PRM}, 2, v{H_PRM}")
        e.v(f"v_and_b32 v{H_T}, 3, v{L}")
        e.v(f"v_lshlrev_b32 v{H_T}, 13, v{H_T}")
        e.v(f"v_add_u32 v{H_T}, {self.XR}, v{H_T}")
        for it in first[nfirst:]: self.issue(it)
        if c["KA"]: e.other("s_waitcnt lgkmcnt(0)"); self.wsoff()
        self.stamp("h", "issued0")
        waited = -1; self.prepolled = False
        if c["trace"]: e.v("v_mov_b32 v46, 0")
        for n, bn in enumerate(self.bars):
            lastneed = max([it["last"] for it in self.items.values() if it["need"] <= n and "last" in it] + [-1])
            assert all("last" in it for it in self.items.values() if it["need"] <= n)
            if lastneed > waited and not c["nodma"]:
                e.vmcnt(self.hseq - 1 - lastneed); waited = lastneed
            if e.pend: e.lgkm(0)
            if bn in ("B1_0", "B1_8", "BK_0", "BK_8", "BK_16", "B3_4", "B3_6"): self.stamp("h", "pre" + bn)
            if not (c["nobar"] and bn.startswith("BK_") and 1 <= int(bn[3:]) <= 15): e.barrier()
            if c["trace"]:
                e.other("s_memrealtime s[94:95]"); e.other("s_waitcnt lgkmcnt(0)")
                e.v(f"v_writelane_b32 v46, s94, {n}")
            if bn == "BX":
                e.ds32(22, H_T)
                e.v("v_cmp_eq_u32 vcc, -1, v22")
                e.s(f"s_cbranch_vccnz L_hslow")
                e.label("L_hgo")
            for it in self.sched[n]: self.issue(it)
            if bn == f"B3_{c['PREPOLL']}" and not c["nodma"]:
                e.bload("buffer_load_dword", 22, 1, H_F, SRD_WS, "0", flags=c["fpoll"])
                self.hseq += 1; self.prepolled = True
            for it in self.items.values():
                if "reg" in it and it["need"] == n:
                    for j in range(4):
                        a = it["lds"] + 1024 * j
                        e.ds_write("ds_write_b128", H_W + (a >> 16), it["reg"] + 4 * j, 4, a & 0xffff)
            if bn == "B1_6":
                e.s("s_branch L_h2"); e.raw(".p2align 12\nL_pg1:\n;@PAGED\n;@MARK"); e.label("L_h2")
        OWNA = H_OWN
        e.s(f"""s_and_b32 s{S_CX}, s{S_D}, 1
s_xor_b32 s{S_CX}, s{S_CX}, 1
s_lshl_b32 s{S_CQ}, s{S_CX}, 1
s_add_u32 s{S_CQ}, s{S_CQ}, 28
s_lshl_b32 s{S_CQ}, 3, s{S_CQ}
s_lshl_b32 s{S_CX}, s{S_CX}, 12
s_add_u32 s{S_CX}, s{S_CX}, {14*4096}""")
        first_acc = [True]
        if c['SENT'] == 0:
            for j in range(8): e.v(f'v_mov_b32 v{H_ACC+j}, 0')
            first_acc[0] = False
        def accum(k):
            dst = H_ACC if first_acc[0] else H_TMP
            for j in range(4):
                e.v(f"v_lshlrev_b32 v{dst+2*j}, 16, v{H_BUF+4*k+j}")
                e.v(f"v_and_b32 v{dst+2*j+1}, 0xffff0000, v{H_BUF+4*k+j}")
            if not first_acc[0]:
                for j in range(4):
                    e.v(f"v_pk_add_f32 v[{H_ACC+2*j}:{H_ACC+2*j+1}], v[{H_ACC+2*j}:{H_ACC+2*j+1}], v[{H_TMP+2*j}:{H_TMP+2*j+1}]")
            first_acc[0] = False
        prev = []
        e.s(f"s_mov_b32 s{S_CNT}, 0")
        def be():
            e.barrier()
            e.ds128(H_BUF + 60, OWNA, 0); e.ds128(H_BUF + 64, OWNA, 1024)
        if c["GLATE"] and not c["GEARLY"]: be()
        if not self.prepolled:
            e.bload("buffer_load_dword", 22, 1, H_F, SRD_WS, "0", flags=c["fpoll"])
        e.vmcnt(0)
        e.v("v_cmp_eq_u32 vcc, 1, v22")
        SENT = c["SENT"]
        rounds = [tuple(i for i in st if i < SENT) for st in c["rounds"]]
        rounds = [st for st in rounds if st] or [()]
        for r, steps in enumerate(rounds):
            fsteps = tuple(steps) + (tuple(range(SENT, 8)) if r == 0 else ())
            mask = sum(15 << (4 * i) for i in fsteps if i < 7)
            e.s(f"s_mov_b32 s{S_CKV}, {mask:#x}")
            if 7 in fsteps: e.s(f"s_or_b32 s{S_CKV}, s{S_CKV}, s{S_CQ}")
            if c["GLATE"] and c["GEARLY"] and steps and steps[0] == c["GEARLY"]: be()
            e.label(f"L_poll{r}")
            e.s(f"s_and_b32 s{S_T0}, vcc_lo, s{S_CKV}\ns_cmp_eq_u32 s{S_T0}, s{S_CKV}\ns_cbranch_scc1 L_got{r}")
            if c["PSLEEP"]: e.other(f"s_sleep {c['PSLEEP']}")
            e.bload("buffer_load_dword", 22, 1, H_F, SRD_WS, "0", flags=c["fpoll"])
            e.s(f"s_add_u32 s{S_CNT}, s{S_CNT}, 1")
            e.vmcnt(0)
            e.v("v_cmp_eq_u32 vcc, 1, v22")
            e.s(f"s_cmp_lt_u32 s{S_CNT}, 0x40000\ns_cbranch_scc1 L_poll{r}")
            e.label(f"L_got{r}"); e.hist = []
            if 0 in steps or 3 in steps or 5 in steps or 7 in steps: self.stamp("h", f"got{r}")
            for i in steps:
                for p in range(1 if i == 7 else 2):
                    k = 2 * i + p
                    if i == 7: so = f"s{S_CX}"
                    elif k == 0: so = "0"
                    else:
                        e.s(f"s_mov_b32 s{S_T0}, {k*4096}"); so = f"s{S_T0}"
                    e.bload("buffer_load_dwordx4", H_BUF + 4 * k, 4, H_G, SRD_WS, so, flags=c["fgat"])
                    prev.append(k)
        def own():
            if c["GLATE"]: return
            e.barrier()
            e.ds128(H_BUF + 60, OWNA, 0); e.ds128(H_BUF + 64, OWNA, 1024)
        def ownadd():
            for j in range(4):
                e.v(f"v_pk_add_f32 v[{H_ACC+2*j}:{H_ACC+2*j+1}], v[{H_ACC+2*j}:{H_ACC+2*j+1}], v[{H_BUF+60+2*j}:{H_BUF+61+2*j}]")
        if SENT > 7:
            nearly = len(prev) - 3
            for n, k in enumerate(prev[:nearly]):
                e.vmcnt(len(prev) - 1 - n); accum(k)
            prev = prev[nearly:]
            own(); ownadd()
            for n, k in enumerate(prev):
                e.vmcnt(len(prev) - 1 - n); accum(k)
        else:
            own()
            self.stamp("h", "BE")
            for n, k in enumerate(prev):
                e.vmcnt(len(prev) - 1 - n); accum(k)
            ownadd()
            ks = [2 * i + p for i in range(SENT, 8) for p in range(1 if i == 7 else 2)]
            e.s(f"s_mov_b32 s{S_CNT}, 0")
            for k in ks:
                e.label(f"L_si{k}"); e.hist = []
                if k == 14: so = f"s{S_CX}"
                else:
                    e.s(f"s_mov_b32 s{S_T0}, {k*4096}"); so = f"s{S_T0}"
                e.bload("buffer_load_dwordx4", H_BUF + 4 * k, 4, H_G, SRD_WS, so, flags=c["fgat"])
            e.s(f"s_add_u32 s{S_CNT}, s{S_CNT}, 1\ns_cmp_ge_u32 s{S_CNT}, 0x40000\ns_cbranch_scc1 L_sdone")
            e.vmcnt(0)
            for k in ks:
                b = H_BUF + 4 * k
                e.v(f"v_max3_u32 v22, v{b}, v{b+1}, v{b+2}")
                e.v(f"v_max_u32 v22, v22, v{b+3}")
                e.v("v_cmp_eq_u32 vcc, -1, v22")
                e.s(f"s_cbranch_vccz L_sok{k}")
                if c["RSLEEP"]: e.other(f"s_sleep {c['RSLEEP']}")
                e.s(f"s_branch L_si{k}")
                e.label(f"L_sok{k}")
            e.label("L_sdone"); e.hist = []
            e.vmcnt(0)
            self.stamp("h", "sent")
            for k in ks: accum(k)
        for j in range(4): e.v(f"v_cvt_pk_bf16_f32 v{H_TMP+j}, v{H_ACC+2*j}, v{H_ACC+2*j+1}")
        for j in range(4):
            e.emit(Ins(f"ds_bpermute_b32 v{H_TMP+4+j}, v{H_PRM}, v{H_TMP+j}", "ds", rd=R(H_PRM) | R(H_TMP + j), wr=R(H_TMP + 4 + j)))
            e.push_pend(R(H_TMP + 4 + j))
        e.bstore("buffer_store_dwordx4", H_TMP + 4, 4, H_OUT, SRD_OUT, "0", flags=c["fout"])
        self.stamp("h", "stored")
        if c["stamp"]:
            e.vmcnt(0); self.stamp("h", "end")
        self.write_stamps("h")
        e.other("s_endpgm")
        e.label("L_hslow"); e.hist = []
        e.barrier()
        e.barrier()
        e.s("s_branch L_hgo")

    def karg2(self, who):
        e = self.e
        if self.c["KA"]:
            for srd, off in (((SRD_K, 8), (SRD_V, 16), (SRD_WO, 32)) if (self.c["KA"] == 1 or who == "c") else ((SRD_WO, 32),)):
                e.other(f"s_load_dwordx2 s[{srd}:{srd+1}], s[56:57], {off}")
            for srd, off in ((SRD_OUT, 80), (SRD_DBG, 88), (SRD_WS, 96)):
                if who == "c" or srd != SRD_DBG: e.other(f"s_load_dwordx2 s[{srd}:{srd+1}], s[0:1], {off}")

    def wsoff(self):
        if self.c["wsoff"]:
            self.e.s(f"s_add_u32 s{SRD_WS}, s{SRD_WS}, {self.c['wsoff'] << 20}\ns_addc_u32 s{SRD_WS+1}, s{SRD_WS+1}, 0")

    def issue(self, it):
        e, c = self.e, self.c
        n = it["name"]; k = n[0]
        if c["nodma"]:
            cnt = 0
        elif k == "x":
            e.s(f"s_add_u32 m0, s{S_M2}, {it['lds']}")
            e.dma(H_X, SRD_X, f"s{S_CX}", 0, c["fx"]); e.dma(H_X + 1, SRD_X, f"s{S_CX}", 1024, c["fx"])
            if n != "x7": e.s(f"s_add_u32 s{S_CX}, s{S_CX}, 128\ns_and_b32 s{S_CX}, s{S_CX}, 0x3ff")
            cnt = 2
        elif k == "q":
            e.s(f"s_add_u32 m0, s{S_M4}, {it['lds']}")
            for j in range(4): e.dma(H_Q + j, SRD_WQ, f"s{S_CQ}", 1024 * j, c["fq"])
            if n != "q15": e.s(f"s_add_u32 s{S_CQ}, s{S_CQ}, 0x40000\ns_and_b32 s{S_CQ}, s{S_CQ}, 0x3fffff")
            cnt = 4
        elif k in "kv":
            j = int(n[1:])
            e.s(f"s_add_u32 m0, s{S_M2}, {it['lds']}")
            sreg = S_KP
            if c["kvalt"]:
                d = c["kvalt"] & 3
                sreg = S_KE if j < d else (S_KF if j >= 16 - d else (S_KP if j % (2 * d) < d else S_KQ))
            e.s(f"s_add_u32 s{S_CKV}, s{sreg}, {j*8192}\ns_and_b32 s{S_CKV}, s{S_CKV}, 0x1ffff")
            if k == "k":
                e.dma(H_K, SRD_K, f"s{S_CKV}", 0, c["fk"]); e.dma(H_K + 1, SRD_K, f"s{S_CKV}", 1024, c["fk"])
            else:
                e.dma(H_V, SRD_V, f"s{S_CKV}", 0, c["fv"]); e.dma(H_V, SRD_V, f"s{S_CKV}", 1024, c["fv"])
            cnt = 2
        else:
            if "reg" not in it: e.s(f"s_add_u32 m0, s{S_M4}, {it['lds']}")
            if n[2] == "a":
                e.s(f"s_add_u32 s{S_CO}, s{S_R3}, {n[1]}\ns_and_b32 s{S_CO}, s{S_CO}, 7\ns_lshl_b32 s{S_CO}, s{S_CO}, 7")
            else: e.s(f"s_add_u32 s{S_CO}, s{S_CO}, 0x20000")
            for j in range(4):
                if "reg" in it: e.bload("buffer_load_dwordx4", it["reg"] + 4 * j, 4, H_O + j, SRD_WO, f"s{S_CO}", 1024 * j, c["fo"])
                else:
                    if c["PACE3"] is not None and int(n[1]) >= 3: e.vmcnt(c["PACE3"])
                    e.dma(H_O + j, SRD_WO, f"s{S_CO}", 1024 * j, c["fo"])
            cnt = 4
        self.hseq += cnt
        it["last"] = self.hseq - 1

    def wave0_only(self, fn, tag, sreg=S_WAVE):
        e = self.e
        e.s(f"s_cmp_lg_u32 s{sreg}, 0\ns_cbranch_scc1 L_w0_{tag}")
        h0 = len(e.out); mark = list(e.hist)
        fn()
        blk = [i for i in e.hist if i not in mark]
        for i in blk: i.states = 0
        e.label(f"L_w0_{tag}")

    def compute_setup(self):
        e, c = self.e, self.c
        L = V_LANE
        if c["prio_c"]: e.other(f"s_setprio {c['prio_c']}")
        if c["KA"] == 1: self.karg2("c")
        if c["l2pf"]:
            e.other("s_getpc_b64 s[92:93]")
            e.s(f"s_and_b32 s92, s92, 0xfffff000\ns_mov_b32 s94, L_end-L_pg1+4096\ns_mov_b32 s95, 0x20000\ns_lshr_b32 s{S_T0}, s2, 3\ns_lshl_b32 s{S_T0}, s{S_T0}, 10")
            e.v(f"v_lshlrev_b32 v48, 7, v{L}")
            e.v(f"v_lshrrev_b32 v49, 3, v{L}")
            e.v(f"v_lshl_or_b32 v48, v49, 28, v48")
            self.wave0_only(lambda: e.bload("buffer_load_dword", 242, 1, 48, 92, f"s{S_T0}"), "pf")
        MB, HH = S_T0, S_T1
        e.s(f"s_and_b32 s{MB}, s{S_WAVE}, 1\ns_lshr_b32 s{HH}, s{S_WAVE}, 1")
        h, rr, g, c0, c1, l32, a, b = 48, 49, 50, 51, 52, 53, 54, 55
        e.v(f"v_lshrrev_b32 v{h}, 5, v{L}")
        e.v(f"v_bfe_u32 v{rr}, v{L}, 2, 2")
        e.v(f"v_bfe_u32 v{g}, v{L}, 4, 1")
        e.v(f"v_and_b32 v{c0}, 1, v{L}")
        e.v(f"v_bfe_u32 v{c1}, v{L}, 1, 1")
        e.v(f"v_and_b32 v{l32}, 31, v{L}")
        e.v(f"v_lshl_add_u32 v{a}, v{h}, 3, v{rr}")
        e.v(f"v_lshlrev_b32 v{a}, 9, v{a}")
        e.s(f"s_lshl_b32 s{S_T2}, s{HH}, 8")
        e.v(f"v_lshl_add_u32 v{a}, v{g}, 5, v{a}")
        e.v(f"v_lshl_add_u32 v{a}, v{c0}, 4, v{a}")
        e.v(f"v_lshl_add_u32 v{a}, v{c1}, 3, v{a}")
        e.v(f"v_add_u32 v{a}, s{S_T2}, v{a}")
        e.v(f"v_lshl_add_u32 v{A_WQ}, v{rr}, 6, v{a}")
        for t in range(1, 4): e.v(f"v_xor_b32 v{A_WQ+t}, {t<<6}, v{A_WQ}")
        for t in range(4): e.v(f"v_add_u32 v{A_WQ+4+t}, 0x10000, v{A_WQ+t}")
        e.s(f"s_lshl_b32 s{S_T2}, s{MB}, 12\ns_add_u32 s{S_T2}, s{S_T2}, {KR}")
        e.v(f"v_lshl_add_u32 v{a}, v{l32}, 7, s{S_T2}")
        e.v(f"v_bfe_u32 v{b}, v{L}, 1, 3")
        e.v(f"v_xor_b32 v{b}, v{b}, v{h}")
        e.v(f"v_lshl_add_u32 v{A_X}, v{b}, 4, v{a}")
        for s in range(1, 4): e.v(f"v_xor_b32 v{A_X+s}, {s<<5}, v{A_X}")
        e.v(f"v_lshlrev_b32 v{a}, 8, v{l32}")
        e.v(f"v_add_u32 v{a}, {KR}, v{a}")
        e.v(f"v_and_b32 v{b}, 15, v{L}")
        e.v(f"v_xor_b32 v{b}, v{b}, v{h}")
        e.v(f"v_lshl_add_u32 v{A_K}, v{b}, 4, v{a}")
        for s in range(1, 8): e.v(f"v_xor_b32 v{A_K+s}, {s<<5}, v{A_K}")
        e.v(f"v_lshl_add_u32 v{a}, v{h}, 2, v{rr}")
        e.v(f"v_lshlrev_b32 v{b}, 8, v{a}")
        e.v(f"v_add_u32 v{b}, {VR}, v{b}")
        e.v(f"v_lshl_add_u32 v{b}, v{g}, 5, v{b}")
        e.v(f"v_lshl_add_u32 v{b}, v{c1}, 4, v{b}")
        e.v(f"v_lshl_add_u32 v{b}, v{c0}, 3, v{b}")
        e.v(f"v_lshl_add_u32 v{A_V}, v{rr}, 6, v{b}")
        for t in range(1, 4): e.v(f"v_xor_b32 v{A_V+t}, {t<<6}, v{A_V}")
        e.v(f"v_lshlrev_b32 v{a}, 7, v{a}")
        e.v(f"v_lshl_add_u32 v{a}, v{c0}, 5, v{a}")
        e.v(f"v_lshl_add_u32 v{a}, v{g}, 4, v{a}")
        e.v(f"v_lshl_add_u32 v{a}, v{c1}, 3, v{a}")
        e.v(f"v_lshrrev_b32 v{b}, 1, v{rr}")
        e.v(f"v_xor_b32 v{b}, s{HH}, v{b}")
        e.v(f"v_lshl_add_u32 v{a}, v{b}, 6, v{a}")
        e.s(f"s_lshl_b32 s{S_T2}, s{HH}, 14")
        e.v(f"v_add_u32 v{A_WO}, s{S_T2}, v{a}")
        e.v(f"v_xor_b32 v{A_WO+1}, 0x4000, v{A_WO}")
        for w in (1, 2):
            e.v(f"v_add_u32 v{A_WO+2*w}, {w*0x10000}, v{A_WO}")
            e.v(f"v_add_u32 v{A_WO+2*w+1}, {w*0x10000}, v{A_WO+1}")
        if c["KA"] >= 2: self.karg2("c")
        e.s(f"s_lshl_b32 s{S_T2}, s{S_WAVE}, 13\ns_add_u32 s{S_T2}, s{S_T2}, {self.XR}")
        e.v(f"v_lshl_add_u32 v{V_XW}, v{L}, 4, s{S_T2}")
        e.v(f"v_xor_b32 v{V_XR}, 0x4000, v{V_XW}")
        e.s(f"""s_lshl_b32 s{S_T2}, s{S_GRP}, 20
s_lshl_b32 s{S_T3}, s{MB}, 16
s_add_u32 s{S_T2}, s{S_T2}, s{S_T3}
s_and_b32 s{S_T3}, s{S_D}, 1
s_lshl_b32 s{S_T3}, s{S_T3}, 12
s_add_u32 s{S_T2}, s{S_T2}, s{S_T3}
s_lshl_b32 s{S_T3}, s{HH}, 11
s_add_u32 s{S_T2}, s{S_T2}, s{S_T3}""")
        e.v(f"v_lshl_add_u32 v{V_PUB}, v{L}, 4, s{S_T2}")
        e.s(f"""s_lshl_b32 s{S_T2}, s{S_GRP}, 4
s_add_u32 s{S_T2}, s{S_T2}, s{MB}
s_lshl_b32 s{S_T2}, s{S_T2}, 5
s_and_b32 s{S_T3}, s{S_D}, 1
s_lshl_b32 s{S_T3}, s{S_T3}, 1
s_add_u32 s{S_T2}, s{S_T2}, s{S_T3}
s_add_u32 s{S_T2}, s{S_T2}, s{HH}
s_lshl_b32 s{S_T2}, s{S_T2}, 2
s_add_u32 s{S_T2}, s{S_T2}, {WS_F}""")
        e.v(f"v_min_u32 v{a}, 1, v{L}")
        e.v(f"v_lshlrev_b32 v{a}, 31, v{a}")
        e.v(f"v_add_u32 v{V_FLG}, s{S_T2}, v{a}")
        e.s(f"s_lshl_b32 s{S_T2}, s{S_GRP}, 4")
        e.v(f"v_add_u32 v{V_RDY}, s{S_T2}, v{a}")
        e.v(f"v_mov_b32 v{V_ONE}, 1")
        if c["SENT"] < 8:
            for r in range(4): e.v(f"v_mov_b32 v{V_M1+r}, -1")
        e.v(f"v_mov_b32 v{V_L0}, 0"); e.v(f"v_mov_b32 v{V_L1}, 0")
        for r in range(4 if c["CZ"] else 16): e.v(f"v_mov_b32 v{CT+r}, 0")
        sc = f2u(math.log2(math.e) / math.sqrt(128.0))
        e.s(f"s_mov_b32 s{S_SC}, {sc:#x}\ns_mov_b32 s{S_SC+1}, {sc:#x}\ns_mov_b32 s{S_FIN}, 0")
        e.s(f"""s_lshl_b32 s{S_T2}, s{S_GRP}, 11
s_add_u32 s{S_T2}, s{S_T2}, {WS_F}
s_or_b32 s{S_CLR}, s{S_WAVE}, s{S_HP}""")
        e.v(f"v_lshl_add_u32 v{T0}, v{L}, 4, s{S_T2}")
        e.other("s_waitcnt lgkmcnt(0)")
        self.wsoff()
        def clr():
            e.bstore("buffer_store_dwordx4", CT, 4, T0, SRD_WS, "0", flags="sc1")
            e.bstore("buffer_store_dwordx4", CT, 4, T0, SRD_WS, "0", 1024, flags="sc1")
        self.wave0_only(clr, "clr", S_CLR)
        if c["tlbpf"]:
            def tl():
                e.s(f"""s_lshr_b32 s{S_T2}, s{S_HP}, 1
s_lshl_b32 s{S_T3}, s{S_B}, 3
s_add_u32 s{S_T2}, s{S_T2}, s{S_T3}
s_lshl_b32 s{S_T2}, s{S_T2}, 17
s_lshl_b32 s{S_T3}, s{S_HP}, 18""")
                e.v(f"v_min_u32 v{T0+1}, 1, v{L}")
                e.v(f"v_lshlrev_b32 v{T0+1}, 31, v{T0+1}")
                e.bload("buffer_load_dword", 243, 1, T0 + 1, SRD_K, f"s{S_T2}")
                e.bload("buffer_load_dword", 243, 1, T0 + 1, SRD_V, f"s{S_T2}")
                e.bload("buffer_load_dword", 243, 1, T0 + 1, SRD_WO, f"s{S_T3}")
                e.s(f"s_lshl_b32 s{S_T2}, s{S_GRP}, 20\ns_lshl_b32 s{S_T3}, s{S_B}, 17")
                e.bload("buffer_load_dword", 243, 1, T0 + 1, SRD_WS, f"s{S_T2}")
                e.bload("buffer_load_dword", 243, 1, T0 + 1, SRD_OUT, f"s{S_T3}")
                e.s(f"s_mov_b32 s{S_T2}, {WS_F + 0x10000}")
                e.bload("buffer_load_dword", 243, 1, T0 + 1, SRD_WS, f"s{S_T2}")
            e.s(f"s_xor_b32 s{S_CNT}, s{S_WAVE}, 1")
            self.wave0_only(tl, "tlb", S_CNT)

    def dump(self, base, n, tag):
        e = self.e
        e.nop(12)
        e.s(f"s_lshl_b32 s{S_T0}, s2, 2\ns_add_u32 s{S_T0}, s{S_T0}, s{S_WAVE}\ns_mul_i32 s{S_T0}, s{S_T0}, {n*256}\ns_add_u32 s{S_T0}, s{S_T0}, {18<<20}")
        e.v(f"v_lshlrev_b32 v{T0+1}, 2, v{V_LANE}")
        for r in range(n):
            if r and r % 16 == 0: e.s(f"s_add_u32 s{S_T0}, s{S_T0}, 4096")
            e.bstore("buffer_store_dword", base + r, 1, T0 + 1, SRD_WS, f"s{S_T0}", (r % 16) * 256)
        e.vmcnt(0)

    def run_mfmas(self, M, fill, W, pre=None, ph=0):
        e = self.e
        for g, (d, a, b, cc) in enumerate(M):
            for f in (pre or {}).get(g, []): f()
            if W > 1 and g % W == 0:
                regs = R(b, 4)
                for k in range(g, min(g + W, len(M))): regs = regs | R(M[k][1], 4)
                e.wait_regs(regs)
            if any(ph == p and a0 <= g < a1 and g % m == m - 1 for p, a0, a1, m in self.c["skip"]) and cc is not None: e.wait_regs(R(a, 4) | R(b, 4)); e.nop(6)
            else: e.mfma(d, a, b, cc)
            for f in fill.get(g, []): f()

    def place(self, reads, bar, n, LEAD):
        e = self.e
        fill = {}; head = []
        for g in range(n):
            ops = []
            if g in bar:
                def fb(nm=bar[g]):
                    if nm in ("B1_0", "B1_8", "BK_1", "BK_8", "BK_16", "B3_2", "B3_4", "B3_6"): self.stamp("c", "pre" + nm)
                    self.cbar(nm)
                    if nm in ("B1_0", "BK_0"): self.stamp("c", "post" + nm)
                ops.append(fb)
            ops += reads.get(g, [])
            if g < LEAD: head += ops
            else: fill.setdefault(g - LEAD, []).extend(ops)
        return fill, head

    def compute(self):
        e, c = self.e, self.c
        NF = c["NF"]
        e.raw(".p2align 12\n;@PAGED")
        e.label("L_compute"); e.hist = []
        e.live = set(); self.rng = {}
        self.stamp("c", "setup")
        for n in range(c["warm"]):
            e.mfma(SS, A_WQ, A_K, None if n == 0 else SS)
            if c["warmd"]: e.nop(c["warmd"])
        fr = lambda g: FR + 4 * (g % NF)
        def spread(fill, ops, g0, per):
            for n, f in enumerate(ops): fill.setdefault(g0 + n // per, []).append(f)
        M = []; reads = {}; bar = {}
        DEFER = list(c["DEFER"]); assert len(DEFER) <= 4 and all(st % 2 == 1 for st in DEFER)
        spareA = [SS, SS + 16, QP, QP + 16]; spareB = [CT, CT + 4, CT + 8, CT + 12]
        later = [(ACC + 16 * t, spareA[n] + 4 * t, spareB[n], ACC + 16 * t) for n in range(len(DEFER)) for t in range(4)]
        d0, d1 = c["DEFAT"]
        nring = 0
        for kt in range(16):
            slot = self.items[f"q{kt}"]["lds"]
            win, so = (0, slot) if slot < 65536 else (4, slot - 65536)
            bar[len(M)] = f"B1_{kt}"
            seq1 = [(s2, t) for s2 in range(2) for t in range(4)]
            if kt == 15 and c["QT"]: seq1 = [(s2, t) for t in range(4) for s2 in range(2)]
            nextra = 0
            if d0 <= kt < d1 and later:
                nextra = -(-len(later) // (d1 - kt))
            for idx, (s2, t) in enumerate(seq1):
                st = kt * 2 + s2
                dn = DEFER.index(st) if st in DEFER else None
                xb = XB + 4 * (st % 3) if dn is None else spareB[dn]
                a = FR + 4 * (nring % NF) if dn is None else spareA[dn] + 4 * t
                rl = []
                if t == 0:
                    xo = self.items[f"x{kt//2}"]["lds"] - KR
                    rl.append(self.T(f"x{kt//2}", lambda xb=xb, s=st % 4, xo=xo: e.ds128(xb, A_X + s, xo)))
                o = so + s2 * 8192
                rl.append(self.T(f"q{kt}", lambda d=a, t=t, o=o, win=win: e.dstr(d, A_WQ + win + t, o)))
                rl.append(self.T(f"q{kt}", lambda d=a, t=t, o=o, win=win: e.dstr(d + 2, A_WQ + win + t, o + 2048)))
                if dn is None:
                    g = len(M); nring += 1
                    M.append((ACC + 16 * t, a, xb, None if st == 0 else ACC + 16 * t))
                    reads[g] = reads.get(g, []) + rl
                else:
                    g = len(M) - 4 + t
                    reads[g] = reads.get(g, []) + rl
                if nextra and idx % 2 == 1 and idx // 2 < nextra and later:
                    M.append(later.pop(0))
        assert not later and len(M) == 128
        fill, head = self.place(reads, bar, len(M), c["L1"])
        if c["TPOS"] < 0: e.raw(";@TOUCH2")
        else: fill.setdefault([g for g, n in bar.items() if n == f"B1_{c['TPOS']}"][0], []).append(lambda: e.raw(";@TOUCH2"))
        def arrive():
            e.vmcnt(0)
            e.bstore("buffer_store_dword", V_ONE, 1, V_RDY, SRD_DBG, "0", flags="sc1")
        fill.setdefault(41, []).append(lambda: self.wave0_only(arrive, "arr", S_CLR))
        def qscale(t, pk):
            ops = []
            for k in range(8):
                r = ACC + 16 * t + 2 * k
                if pk: ops.append(lambda r=r: e.v(f"v_pk_mul_f32 v[{r}:{r+1}], v[{r}:{r+1}], s[{S_SC}:{S_SC+1}]"))
                else: ops += [lambda r=r: e.v(f"v_mul_f32 v{r}, s{S_SC}, v{r}"), lambda r=r: e.v(f"v_mul_f32 v{r+1}, s{S_SC}, v{r+1}")]
            for k in range(8):
                r = ACC + 16 * t + 2 * k
                ops.append(lambda r=r, k=k: e.v(f"v_cvt_pk_bf16_f32 v{QP+8*t+k}, v{r}, v{r+1}"))
            return ops
        if c["QT"] and c["dump"] != "q":
            q0 = qscale(0, False)
            spread(fill, q0[:5], 124, 5); spread(fill, q0[5:11], 125, 6); spread(fill, q0[11:17], 126, 6); spread(fill, q0[17:], 127, 7)
        for f in head: f()
        self.run_mfmas(M, fill, c["W1"], ph=1)
        self.stamp("c", "P1end")
        M = []; reads = {}; bar = {}
        def addQK(j):
            bar[len(M)] = f"BK_{j}"
            so = self.items[f"k{j}"]["lds"] - KR
            for s in range(8):
                g = len(M); S = SS + 16 * (j % 2)
                M.append((S, fr(g), QP + 4 * s, (None if c['CZ'] else CT) if s == 0 else S))
                reads[g] = [self.T(f"k{j}", lambda d=fr(g), s=s, so=so: e.ds128(d, A_K + s, so))]
        def addPV(j):
            so = self.items[f"v{j}"]["lds"] - VR
            for u in range(2):
                for t in range(4):
                    g = len(M)
                    M.append((ACC + 16 * t, fr(g), PP + 4 * u, None if (j == 0 and u == 0) else ACC + 16 * t))
                    o = so + u * 4096
                    reads[g] = [self.T(f"v{j}", lambda d=fr(g), t=t, o=o: e.dstr(d, A_V + t, o)),
                                self.T(f"v{j}", lambda d=fr(g), t=t, o=o: e.dstr(d + 2, A_V + t, o + 2048))]
        addQK(0)
        for j in range(15): addQK(j + 1); addPV(j)
        bar[len(M)] = "BK_16"
        addPV(15)
        fill, head = self.place(reads, bar, len(M), c["L2"])
        def ex(j, r): return lambda: e.v(f"v_exp_f32 v{SS+16*(j%2)+r}, v{SS+16*(j%2)+r}")
        def cv(j, k): return lambda: e.v(f"v_cvt_pk_bf16_f32 v{PP+k}, v{SS+16*(j%2)+2*k}, v{SS+16*(j%2)+2*k+1}")
        def ad(j, r): return lambda: e.v(f"v_add_f32 v{V_L0+(r%2)}, v{V_L0+(r%2)}, v{SS+16*(j%2)+r}")
        def put(j, g, spec):
            front = []
            for tok in spec.split():
                first = tok[0] == "<"
                if first: tok = tok[1:]
                f = {"e": ex, "c": cv, "a": ad}[tok[0]](j, int(tok[1:]))
                if first: front.append(f)
                else: fill.setdefault(g, []).append(f)
            fill[g] = front + fill.get(g, [])
        TAB = c["tab"] or {-5: "e0", -4: "e1 e2", -3: "e3 e4 c0", -2: "e5 e6 c1", -1: "e7 c2 a0", 0: "e8 e9 c3", 1: "e10 c4",
                           2: "e11 a1 a2", 3: "e12 c5", 4: "e13 a3 a4", 5: "e14 c6 a5", 6: "e15 a6 a7", 7: "c7 a8",
                           8: "a9 a10 a11", 9: "a12 a13", 10: "a14 a15"}
        TAB0 = {1: "e0", 2: "e1 e2 e3", 3: "e4 e5 c0", 4: "e6 e7 c1", 5: "e8 c2 c3", 6: "e9 e10 c4", 7: "e11 e12", 8: "e13 e14 c5",
                9: "e15 c6 a0", 10: "c7 a1 a2 a3 a4", 11: "a5 a6 a7", 12: "a8 a9", 13: "a10 a11", 14: "a12 a13", 15: "a14 a15"}
        neg = " ".join(v for k, v in TAB.items() if k < 0).split()
        rest = [t for t in " ".join(v for k, v in TAB.items() if k >= 0).split()]
        for j in range(15):
            for k, sp in (TAB0 if j == 0 else TAB).items(): put(j, 8 + 16 * j + k, sp)
        g0 = 8 + 16 * 15
        for k, sp in TAB.items():
            if k < 0: put(15, g0 + k, sp)
        assert "c3" in rest and "e7" in neg and "e8" in rest
        put(15, g0 - 1, "c3")
        adds = [t for t in rest if t[0] == "a"]
        for k, sp in enumerate(["e8 e9 " + adds[0], "e10 e11 c4 " + adds[1], "e12 e13 c5 " + adds[2], "<e14 <e15 <c6 <c7 " + adds[3],
                                " ".join(adds[4:10]), " ".join(adds[10:])]):
            put(15, g0 + k, sp)
        l, t1, t2, RC = V_L0, T0, T0 + 1, T0 + 3
        def lchain():
            e.v(f"v_add_f32 v{l}, v{V_L0}, v{V_L1}")
            e.v(f"v_mov_b32 v{t1}, v{l}")
            e.s(f"s_mov_b32 s{S_T0}, {f2u(2.0**-24):#x}\ns_mov_b32 s{S_T1}, {f2u(2.0**24):#x}")
            e.v(f"v_permlane32_swap_b32 v{l}, v{t1}")
            e.v(f"v_add_f32 v{l}, v{l}, v{t1}")
            e.v(f"v_rcp_f32 v{RC}, v{l}")
            e.v(f"v_cmp_nle_f32 vcc, s{S_T0}, v{l}")
            e.v(f"v_cmp_nge_f32 s[56:57], s{S_T1}, v{l}")
        self.lchain = lchain
        if c["LCH"]: fill.setdefault(g0 + 6, []).append(lchain)
        def rdyload(): e.bload("buffer_load_dword", T0 + 2, 1, V_RDY, SRD_DBG, "0", flags="sc1")
        def rdy():
            e.label("L_rdy"); e.vmcnt(0)
            e.v(f"v_readfirstlane_b32 s{S_T0}, v{T0+2}")
            e.s(f"s_cmp_eq_u32 s{S_T0}, 1\ns_cbranch_scc1 L_rdyok")
            e.bload("buffer_load_dword", T0 + 2, 1, V_RDY, SRD_DBG, "0", flags="sc1")
            e.s(f"s_add_u32 s{S_CNT}, s{S_CNT}, 1\ns_cmp_lt_u32 s{S_CNT}, 0x40000\ns_cbranch_scc1 L_rdy")
            e.label("L_rdyok")
        SENT = c["SENT"]
        J0 = 8 + 16 * c["CLRJ"]; J1 = 8 + 16 * c["CLRF"]
        fill.setdefault(8 + 10, []).append(lambda: self.wave0_only(rdyload, "rl"))
        def rdychk():
            e.s(f"s_mov_b32 s{S_CNT}, 0"); self.wave0_only(rdy, "rdy")
        gb = J1 - 16 + 16 - c["L2"]
        fill[gb] = [rdychk] + fill.get(gb, [])
        def so_pub(i):
            e.s(f"s_add_u32 s{S_T0}, s{S_R3}, {i}\ns_and_b32 s{S_T0}, s{S_T0}, 7\ns_lshl_b32 s{S_T1}, s{S_T0}, 17")
            if i: e.s(f"s_add_u32 s{S_T1}, s{S_T1}, {i*8192}")
        def so_flag(i):
            e.s(f"s_add_u32 s{S_T2}, s{S_R3}, {i}\ns_and_b32 s{S_T2}, s{S_T2}, 7\ns_lshl_b32 s{S_T2}, s{S_T2}, 8")
        for n, i in enumerate(range(SENT, 8)):
            if not c["noclear"]:
                fill.setdefault(J0 + 16 * (n // 2) + 9 + 2 * (n % 2), []).append(lambda i=i: so_pub(i))
                for q in range(2):
                    fill.setdefault(J0 + 16 * (n // 2) + 10 + 2 * (n % 2) + 0 * q, []).append(
                        lambda q=q: e.bstore("buffer_store_dwordx4", V_M1, 4, V_PUB, SRD_WS, f"s{S_T1}", 1024 * q, flags=c["fpub"]))
            def fl(i=i, n=n):
                so_flag(i)
                if n == 0: e.vmcnt(0)
                e.bstore("buffer_store_dword", V_ONE, 1, V_FLG, SRD_WS, f"s{S_T2}", 16 * i, flags=c["fflag"])
            fill.setdefault(J1 + 16 * (n // 2) + 9 + (n % 2), []).append(fl)
        if c["dump"] == "q":
            for f in qscale(0, True): f()
            for f in head: f()
            for f in qscale(1, True) + qscale(2, True) + qscale(3, True): f()
            self.dump(QP, 32, "q")
        elif c["QT"]:
            for f in head: f()
            for f in qscale(1, True): f()
            if c["QT"] == 2:
                for f in qscale(2, True): f()
                spread(fill, qscale(3, False), 0, 5)
            else:
                spread(fill, qscale(2, False), 0, 7)
                spread(fill, qscale(3, False)[:12], 3, 4); spread(fill, qscale(3, False)[12:], 4, 6)
        else:
            for f in qscale(0, True): f()
            for f in head: f()
            for f in qscale(1, True): f()
            spread(fill, qscale(2, False), 0, 7)
            spread(fill, qscale(3, False)[:12], 3, 4); spread(fill, qscale(3, False)[12:], 4, 6)
        self.stamp("c", "P2start")
        self.run_mfmas(M, fill, c["W2"], ph=2)
        self.stamp("c", "P2end")
        AC = lambda i: (AC3A, AC3B)[i % 2]
        M = []; reads = {}; bar = {}; done = {}
        seq = [(0, 0), (1, 0), (0, 1), (1, 1)] + [(i, hs) for i in range(2, 8) for hs in range(2)]
        for i, hs in seq:
            slot = self.WOSLOT[i]; win = slot >> 16; so = slot & 0xffff
            if hs == 0 and 2 <= i <= c["NB3"]: bar[len(M)] = f"B3_{i}"
            for k in range(8):
                g = len(M)
                M.append((AC(i), fr(g), (OWN if hs == 0 else OTH) + 4 * k, None if (hs == 0 and k == 0) else AC(i)))
                o = so + k * 2048
                reads[g] = [self.T(f"o{i}a", lambda d=fr(g), o=o, a=A_WO + 2 * win + hs: e.dstr(d, a, o)),
                            self.T(f"o{i}b", lambda d=fr(g), o=o, a=A_WO + 2 * win + hs: e.dstr(d + 2, a, o + 1024))]
            if hs == 1: done[i] = len(M) - 1
        L3 = c["L3"]
        fill, head = self.place(reads, bar, len(M), L3)
        e.lgkm(0)
        if c["B17"]: self.cbar("BK_17")
        e.label("L_norm")
        for o in list(e.live):
            if self.rng[o][0] < self.XR + 32768 and self.XR < self.rng[o][1]:
                assert o[0] in "kv" and o not in e.ptag; e.live.discard(o)
        self.stamp("c", "n_17")
        if not c["LCH"]: lchain()
        for f in head[:8]: f()
        for gg in (0, 3, 7, 15): fill.setdefault(gg, []).insert(0, lambda gg=gg: self.stamp("c", f"n_m{gg}"))
        def onorm(t, pk):
            ops = []
            for k in range(8):
                r = ACC + 16 * t + 2 * k
                if pk: ops.append(lambda r=r: e.v(f"v_pk_mul_f32 v[{r}:{r+1}], v[{r}:{r+1}], v[{RC-1}:{RC}] op_sel:[0,1] op_sel_hi:[1,1]"))
                else: ops += [lambda r=r: e.v(f"v_mul_f32 v{r}, v{RC}, v{r}"), lambda r=r: e.v(f"v_mul_f32 v{r+1}, v{RC}, v{r+1}")]
            for k in range(8):
                r = ACC + 16 * t + 2 * k
                ops.append(lambda r=r, k=k: e.v(f"v_cvt_pk_bf16_f32 v{OWN+8*t+k}, v{r}, v{r+1}"))
            return ops
        wr = lambda k: (lambda: e.ds_write("ds_write_b128", V_XW, OWN + 4 * k, 4, 1024 * k))
        for f in onorm(0, True): f()
        e.s(f"s_or_b64 vcc, vcc, s[56:57]\ns_cmp_lg_u32 s{S_FIN}, 0\ns_cbranch_scc1 L_novote\ns_cbranch_vccz L_novote")
        mark = list(e.hist)
        e.v(f"v_mov_b32 v{OWN}, -1")
        for i in e.hist:
            if i not in mark: i.states = 0
        e.label("L_novote")
        for f in head[8:]: f()
        if c["dump"] == "o":
            wr(0)(); wr(1)()
            for t in (1, 2, 3):
                for f in onorm(t, True): f()
            self.dump(OWN, 32, "o")
            for k in range(2, 8): wr(k)()
        else:
            if c["NORMV"] == 0:
                wr(0)(); wr(1)()
                for f in onorm(1, True): f()
                for t in (2, 3):
                    ops = onorm(t, False)
                    spread(fill, [wr(2 * t - 2)] + ops[:12], 2 * t - 4, 13); spread(fill, [wr(2 * t - 1)] + ops[12:], 2 * t - 3, 13)
                fill.setdefault(4, []).append(wr(6)); fill.setdefault(5, []).append(wr(7))
            else:
                for t in (1, 2, 3):
                    ops = onorm(t, False)
                    spread(fill, [wr(2 * t - 2)] + ops[:12], 2 * t - 2, 13); spread(fill, [wr(2 * t - 1)] + ops[12:], 2 * t - 1, 13)
                fill.setdefault(6, []).append(wr(6)); fill.setdefault(7, []).append(wr(7))
        def bx():
            e.v(f"v_and_b32 v{t1}, 3, v{V_LANE}")
            e.v(f"v_lshlrev_b32 v{t1}, 13, v{t1}")
            e.v(f"v_add_u32 v{t1}, {self.XR}, v{t1}")
            nw = max(n for n, p in enumerate(e.pend) if not p) if any(not p for p in e.pend) else -1
            if nw >= 0: e.lgkm(len(e.pend) - 1 - nw)
            self.stamp("c", "preBX")
            self.cbar("BX")
            e.live.add("xchg"); self.rng["xchg"] = (self.XR, self.XR + 32768)
            self.stamp("c", "postBX")
            e.tag = "xchg"; e.ds32(t2, t1)
        GX = c["GX"]
        fill[GX] = [bx] + fill.get(GX, [])
        for k in range(8):
            fill.setdefault(GX + k // 2 if c["BY"] else min(GX + k, 11 + k), []).append(self.T("xchg", lambda k=k: e.ds128(OTH + 4 * k, V_XR, 1024 * k)))
        if c["BY"]:
            def by():
                e.wait_regs(R(OTH, 32) | R(t2)); self.cbar("BY")
            fill[GX + 6] = [by] + fill.get(GX + 6, [])
        def vote():
            e.v(f"v_cmp_eq_u32 vcc, -1, v{t2}")
            e.s(f"s_cmp_lg_u32 s{S_FIN}, 0\ns_cbranch_scc1 L_voted\ns_cbranch_vccnz L_slow")
            e.label("L_voted")
        fill[GX + 3] = [vote] + fill.get(GX + 3, [])
        FL = c["FLAGLAG"]
        vseq = []
        def pub_cvt(i, k): return lambda: e.v(f"v_cvt_pk_bf16_f32 v{PK+8*(i%2)+k}, v{AC(i)+2*k}, v{AC(i)+2*k+1}")
        def pub_min(i, k): return lambda: e.v(f"v_min_u32 v{PK+8*(i%2)+k}, -2, v{PK+8*(i%2)+k}")
        def pub_so(i): return lambda: so_pub(i)
        def pub_st(i, q):
            def f():
                if c["nopub"]:
                    vseq.append(("S", i)); return
                e.bstore("buffer_store_dwordx4", PK + 8 * (i % 2) + 4 * q, 4, V_PUB, SRD_WS, f"s{S_T1}", 1024 * q, flags=c["fpub"])
                vseq.append(("S", i))
            return f
        def pub_flag(i):
            def f():
                so_flag(i)
                last = max(n for n, x in enumerate(vseq) if x == ("S", i))
                e.vmcnt(len(vseq) - 1 - last)
                e.bstore("buffer_store_dword", V_ONE, 1, V_FLG, SRD_WS, f"s{S_T2}", 16 * i, flags=c["fflag"])
                vseq.append(("F", i))
            return f
        late = []
        for i in range(7):
            g = done[i] + 1 + (min(c["PUBG"], 3) if i == 0 else c["PUBG"])
            fill.setdefault(g - 1, []).append(pub_so(i))
            for k in range(8):
                fill.setdefault(g + k // 2, []).append(pub_cvt(i, k))
                if i >= SENT: fill.setdefault(g + k // 2 + 1, []).insert(0, pub_min(i, k))
            fill.setdefault(g + 2, []).append(pub_st(i, 0))
            fill.setdefault(g + 4, []).append(pub_st(i, 1))
            if i >= SENT: continue
            gf = g + 7 + 16 * FL
            if gf < len(M) and i < c["FLMAX"]: fill.setdefault(gf, []).append(pub_flag(i))
            else: late.append(i)
        self.run_mfmas(M, fill, c["W3"], ph=3)
        self.stamp("c", "P3end")
        e.s(f"s_and_b32 s{S_T0}, s{S_D}, 1\ns_and_b32 s{S_T1}, s{S_WAVE}, 1\ns_cmp_eq_u32 s{S_T0}, s{S_T1}\ns_cbranch_scc1 L_own")
        h0 = list(e.hist); v0 = list(vseq)
        pub_so(7)()
        for k in range(8): pub_cvt(7, k)()
        if SENT <= 7:
            for k in range(8): pub_min(7, k)()
        pub_st(7, 0)(); pub_st(7, 1)()
        if c["GLATE"]: e.barrier()
        for i in late + ([7] if SENT > 7 else []): pub_flag(i)()
        e.s("s_branch L_fin")
        e.label("L_own"); e.hist = h0; vseq[:] = v0
        e.s(f"s_lshr_b32 s{S_T0}, s{S_WAVE}, 1\ns_lshl_b32 s{S_T0}, s{S_T0}, 12\ns_add_u32 s{S_T0}, s{S_T0}, {self.S3}")
        e.v(f"v_lshl_add_u32 v{T0}, v{V_LANE}, 4, s{S_T0}")
        for p in range(4): e.ds_write("ds_write_b128", T0, AC(7) + 4 * p, 4, 1024 * p)
        if c["GLATE"]: e.lgkm(0); e.barrier()
        for i in late: pub_flag(i)()
        e.lgkm(0)
        e.label("L_fin")
        if not c["GLATE"]: e.barrier()
        self.stamp("c", "flagged")
        self.write_stamps("c")
        e.other("s_endpgm")
        self.slow()

    def slow(self):
        e = self.e
        L = V_LANE
        e.raw(";@UNPAGED")
        e.label("L_slow"); e.hist = []; e.pend = []; e.ptag = []; e.live = None
        e.other("s_waitcnt vmcnt(0) lgkmcnt(0)"); e.nop(16)
        e.barrier()
        KA, VA, MX, t1 = T0, T0 + 1, T0 + 6, T0 + 7
        e.s(f"""s_mov_b32 s{S_FIN}, 1
s_lshr_b32 s{S_T0}, s{S_HP}, 1
s_lshl_b32 s{S_T1}, s{S_B}, 3
s_add_u32 s{S_T0}, s{S_T0}, s{S_T1}
s_lshl_b32 s{S_T0}, s{S_T0}, 17""")
        e.v(f"v_and_b32 v{t1}, 31, v{L}")
        e.v(f"v_lshrrev_b32 v{MX}, 5, v{L}")
        e.v(f"v_lshlrev_b32 v{KA}, 8, v{t1}")
        e.v(f"v_lshl_add_u32 v{KA}, v{MX}, 4, v{KA}")
        e.v(f"v_add_u32 v{KA}, s{S_T0}, v{KA}")
        e.v(f"v_lshlrev_b32 v{VA}, 10, v{MX}")
        e.v(f"v_lshl_add_u32 v{VA}, v{t1}, 1, v{VA}")
        e.v(f"v_add_u32 v{VA}, s{S_T0}, v{VA}")
        e.v(f"v_mov_b32 v{MX}, 0xff800000")
        def qk(cinit):
            for s in range(8): e.bload("buffer_load_dwordx4", FR + 4 * s, 4, KA, SRD_K, f"s{S_T1}", 32 * s)
            e.vmcnt(0)
            for s in range(8): e.mfma(SS, FR + 4 * s, QP + 4 * s, cinit if s == 0 else SS)
        e.s(f"s_mov_b32 s{S_T1}, 0")
        e.label("L_s1"); e.nop(12)
        qk(None)
        for r in range(0, 16, 2): e.v(f"v_max3_f32 v{MX}, v{MX}, v{SS+r}, v{SS+r+1}")
        e.s(f"s_add_u32 s{S_T1}, s{S_T1}, 8192\ns_cmp_lt_u32 s{S_T1}, 0x20000\ns_cbranch_scc1 L_s1")
        e.v(f"v_mov_b32 v{t1}, v{MX}")
        e.v(f"v_permlane32_swap_b32 v{MX}, v{t1}")
        e.v(f"v_max_f32 v{MX}, v{MX}, v{t1}")
        for r in range(16): e.v(f"v_sub_f32 v{CT+r}, 0, v{MX}")
        for r in range(64): e.v(f"v_mov_b32 v{ACC+r}, 0")
        e.v(f"v_mov_b32 v{V_L0}, 0"); e.v(f"v_mov_b32 v{V_L1}, 0")
        e.s(f"s_mov_b32 s{S_T1}, 0")
        e.label("L_s2"); e.nop(12)
        qk(CT)
        for r in range(16): e.v(f"v_exp_f32 v{SS+r}, v{SS+r}")
        for r in range(16): e.v(f"v_add_f32 v{V_L0}, v{V_L0}, v{SS+r}")
        for k in range(8): e.v(f"v_cvt_pk_bf16_f32 v{PP+k}, v{SS+2*k}, v{SS+2*k+1}")
        for u in range(2):
            e.s(f"s_add_u32 s{S_T2}, s{S_T1}, {u*4096}")
            for t in range(4):
                for j in range(8):
                    row = 8 * (j // 4) + j % 4
                    e.bload("buffer_load_ushort", SS + 16 + j, 1, VA, SRD_V, f"s{S_T2}", row * 256 + t * 64)
                e.vmcnt(0)
                for j in range(4): e.v(f"v_lshl_or_b32 v{FR+4*t+j}, v{SS+16+2*j+1}, 16, v{SS+16+2*j}")
            for t in range(4): e.mfma(ACC + 16 * t, FR + 4 * t, PP + 4 * u, ACC + 16 * t)
            e.nop(8)
        e.s(f"s_add_u32 s{S_T1}, s{S_T1}, 8192\ns_cmp_lt_u32 s{S_T1}, 0x20000\ns_cbranch_scc1 L_s2")
        e.nop(16)
        if self.c["LCH"]: self.lchain()
        e.nop(2)
        e.s("s_branch L_norm")

    def build(self):
        e = self.e
        self.plan()
        e.raw(f"""; Fused GQA block, two independent branches, gfx950.  Emitted by the author's own generator script (no compiler output).
;
; with sc1 stores (flag after the tile's stores are acknowledged) and read with sc1 loads, so any placement on the XCDs works.
; @launch grid=(256,1,1) block=(512,1,1) lds={LDS}
.amdgcn_target "amdgcn-amd-amdhsa--gfx950"
.text
.globl {KN}
.p2align 8
.type {KN},@function
{KN}:""")
        self.prologue()
        self.helper()
        self.compute()
        e.label("L_end"); e.other("s_endpgm")
        e.raw(f""".section .rodata,"a"
.p2align 6
.amdhsa_kernel {KN}
  .amdhsa_next_free_vgpr 248
  .amdhsa_next_free_sgpr 102
  .amdhsa_accum_offset 248
  .amdhsa_group_segment_fixed_size 0
  .amdhsa_kernarg_size 104
  .amdhsa_user_sgpr_count 2
  .amdhsa_user_sgpr_kernarg_segment_ptr 1
  .amdhsa_system_sgpr_workgroup_id_x 1
.end_amdhsa_kernel""")
        assert e.maxv < 248
        return self.paginate(e.out)

    def paginate(self, lines):
        import subprocess, re, tempfile, os
        isins = lambda l: l.startswith("    ") and not l.strip().startswith((";", "."))
        with tempfile.TemporaryDirectory() as d:
            open(d + "/a.s", "w").write("\n".join(lines) + "\n")
            subprocess.run(["clang", "-x", "assembler", "-target", "amdgcn-amd-amdhsa", "-mcpu=gfx950", "-c",
                            "-o", d + "/a.o", d + "/a.s".replace("a.s", "a.s")], check=True)
            dis = subprocess.run(["llvm-objdump", "-d", "--mcpu=gfx950", d + "/a.o"], capture_output=True, text=True).stdout
        enc = [(int(m.group(1), 16), len(m.group(2).split()) * 4, m.group(0)) for m in re.finditer(r"// ([0-9A-F]{12}): ((?:[0-9A-F]{8} ?)+)", dis)]
        sizes = []; j = 0; addr = 0
        for l in lines:
            if l.startswith(".p2align 12"):
                addr = (addr + 4095) // 4096 * 4096
                while enc[j][0] < addr: j += 1
            if isins(l):
                assert enc[j][0] == addr, (l, hex(addr), enc[j])
                sizes.append(enc[j][1]); addr += enc[j][1]; j += 1
        n2 = 0
        while True:
            out, nm = self._marks(lines, sizes, isins, n2)
            if nm == n2: break
            n2 = nm
        return self._touches(out, nm)

    def _marks(self, lines, sizes, isins, n2):
        out = []; paged = False; off = 0; nm = 0; k = 0; self.page0 = None; tot = 0
        for l in lines:
            if l == ";@TOUCH2" and n2: off += 8 + 8 * n2
            if l == ";@PAGED":
                paged = True; off = 0
                if self.page0 is None: self.page0 = tot
                continue
            if l == ";@UNPAGED": paged = False; continue
            if l == ";@MARK":
                if self.c["touch"]:
                    nm += 1; out += [f"L_mk{nm}:", f"    s_cbranch_execz L_rt{nm}"]; off += 4
                continue
            if isins(l):
                sz = sizes[k]; k += 1; tot += sz
                if paged and self.c["touch"]:
                    if off % 4096 and off // 4096 != (off + sz - 1) // 4096:
                        out.append("    s_nop 0"); off += 4
                    if off and off % 4096 == 0:
                        nm += 1; out += [f"L_mk{nm}:", f"    s_cbranch_execz L_rt{nm}"]; off += 4
                off += sz
            out.append(l)
        return out, nm

    def _touches(self, out, nm):
        res = []
        for l in out:
            if l in (";@TOUCH1", ";@TOUCH2"):
                ks = list(range(1, nm + 1))
                if not ks: continue
                res.append("    s_mov_b64 exec, 0")
                for n, kk in enumerate(ks):
                    res += [f"    s_cmp_eq_u32 s{S_WAVE}, {n % 4}", f"    s_cbranch_scc1 L_mk{kk}", f"L_rt{kk}:"]
                res.append("    s_mov_b64 exec, -1")
            else: res.append(l)
        assert self.page0 + 80 < 4096 - 768, self.page0
        self.npages = nm
        return "\n".join(res) + "\n"

if __name__ == "__main__":
    kw = eval("dict(%s)" % (sys.argv[2] if len(sys.argv) > 2 else ""))
    g = Gen(**kw)
    t = g.build()
    open(sys.argv[1], "w").write(t)
    print("page0", g.page0, "marks", g.npages, "nops", g.e.nnop, "waits", g.e.nwait, "lines", len(g.e.out))
    for n in range(-1, len(g.bars)):
        print(g.bars[n] if n >= 0 else "start", [i["name"] for i in g.sched[n]])
```
